```python
import torch

def _softmax(x, axis=-1):
    return torch.softmax(x, dim=axis)
def _gelu(x):
    return torch.nn.functional.gelu(x, approximate="tanh")
def _silu(x):
    return torch.nn.functional.silu(x)
def _sigmoid(x):
    return torch.sigmoid(x)
def _layernorm(x, axis=-1, eps=1e-5):
    m = x.mean(dim=axis, keepdim=True)
    v = x.var(dim=axis, keepdim=True, unbiased=False)
    return (x - m) / torch.sqrt(v + eps)
def _scatter_add(tgt, idx, src, axis=0):
    return tgt.clone().index_add_(axis, idx, src)
def _segment_sum(src, seg, n):
    out = torch.zeros((n,) + src.shape[1:], dtype=src.dtype)
    return out.index_add_(0, seg, src)
def _pad(x, pw):
    flat = tuple(v for pair in reversed(pw) for v in pair)
    return torch.nn.functional.pad(x, flat)

kernel_name = 'standalone__seq2seq_rnn_t_joint__speech'

def setup_inputs():

    _w = (lambda a: (lambda t: t.to(torch.bfloat16) if t.is_floating_point() else t)(torch.as_tensor(a)))
    B, T, D, K = 2, 4000, 512, 5
    U = 8
    sc = (1.0 / (K * D)) ** 0.5
    sd = (1.0 / D) ** 0.5
    return {
        "x": _w((lambda *s: torch.randn(*s, dtype=torch.bfloat16) * 0.2)(B, T, D) * 0.5),
        "w1": _w((lambda *s: torch.randn(*s, dtype=torch.bfloat16) * 3.2)(K, D, D) * sc),
        "w2": _w((lambda *s: torch.randn(*s, dtype=torch.bfloat16) * 3.2)(K, D, D) * sc),
        "g": _w((lambda *s: torch.randn(*s, dtype=torch.bfloat16) * 3.2)(B, U, D) * 0.5),
        "w_f": _w((lambda *s: torch.randn(*s, dtype=torch.bfloat16) * 3.2)(D, D) * sd),
        "w_g": _w((lambda *s: torch.randn(*s, dtype=torch.bfloat16) * 3.2)(D, D) * sd),
        "w_o": _w((lambda *s: torch.randn(*s, dtype=torch.bfloat16) * 3.2)(D, D) * sd),
    }

def reference(x, w1, w2, g, w_f, w_g, w_o):
    B, T, D = x.shape
    K = w1.shape[0]
    pad = K // 2
    xp = _pad(x, ((0,0),(pad,pad),(0,0)))
    h = torch.zeros_like(x)
    for i in range(K):
        h = h + torch.einsum("btc,cd->btd", xp[:, i:i+T, :], w1[i])
    h = _gelu(h)[:, ::2, :]
    T1 = h.shape[1]
    hp = _pad(h, ((0,0),(pad,pad),(0,0)))
    f = torch.zeros_like(h)
    for i in range(K):
        f = f + torch.einsum("btc,cd->btd", hp[:, i:i+T1, :], w2[i])
    f = _gelu(f)[:, ::2, :]
    fe = torch.einsum("btd,de->bte", f, w_f)
    ge = torch.einsum("bud,de->bue", g, w_g)
    j = torch.tanh(fe[:, :, None, :] + ge[:, None, :, :])
    return torch.einsum("btud,dv->btuv", j, w_o)
```

```python
KN = "standalone__seq2seq_rnn_t_joint__speech_kernel"

HEADER_ARGS = """; Kernarg layout for this problem (80 bytes, ptrs only, base s[0:1]):
"""

class Asm:
    def __init__(self):
        self.lines = []
        self.nlab = 0
    def __call__(self, s=""):
        for l in s.split("\n"):
            l = l.rstrip()
            if l.strip() == "":
                continue
            if l.strip().endswith(":") or l.startswith("."):
                self.lines.append(l.strip())
            else:
                self.lines.append("    " + l.strip())
    def raw(self, s): self.lines.append(s)
    def comment(self, s): self.lines.append("    ; " + s)
    def label(self, prefix="L"):
        self.nlab += 1
        return f"{prefix}_{self.nlab}"
    def text(self): return "\n".join(self.lines) + "\n"

def kernel_begin(a, name):
    a.raw(f".globl {name}")
    a.raw(".p2align 8")
    a.raw(f".type {name},@function")
    a.raw(f"{name}:")

def kernel_desc(name, vgpr=256, sgpr=102, accum=None, wgy=False, extra=""):
    if accum is None:
        accum = min(256, (vgpr + 3) // 4 * 4)
    s = f""".amdhsa_kernel {name}
  .amdhsa_next_free_vgpr {vgpr}
  .amdhsa_next_free_sgpr {sgpr}
  .amdhsa_accum_offset {accum}
  .amdhsa_group_segment_fixed_size 0
  .amdhsa_kernarg_size 80
  .amdhsa_user_sgpr_count 2
  .amdhsa_user_sgpr_kernarg_segment_ptr 1
  .amdhsa_system_sgpr_workgroup_id_x 1
"""
    if wgy: s += "  .amdhsa_system_sgpr_workgroup_id_y 1\n"
    s += extra
    s += ".end_amdhsa_kernel\n"
    return s

def file_text(launches, body, descs):
    t = HEADER_ARGS
    t += "; Override launch geometry by editing the next line (default: block=256,\n"
    for (k, g, b, lds) in launches:
        if k is None:
            t += f"; @launch grid=({g[0]},{g[1]},{g[2]}) block=({b[0]},{b[1]},{b[2]}) lds={lds}\n"
        else:
            t += f"; @launch kernel={k} grid=({g[0]},{g[1]},{g[2]}) block=({b[0]},{b[1]},{b[2]}) lds={lds}\n"
    t += '.amdgcn_target "amdgcn-amd-amdhsa--gfx950"\n.text\n'
    t += body
    t += '.section .rodata,"a"\n'
    for d in descs:
        t += ".p2align 6\n" + d
    return t

def srd(a, dst, base_lo, nbytes, base_hi=None):
    a(f"s_mov_b32 s{dst}, s{base_lo}")
    a(f"s_and_b32 s{dst+1}, s{base_lo+1}, 0xffff")
    a(f"s_mov_b32 s{dst+2}, {hex(nbytes)}")
    a(f"s_mov_b32 s{dst+3}, 0x20000")
```

```python
import sys
from asmlib import *

WS_H   = 0x0000000
WS_F   = 0x0500000
WS_P   = 0x0800000
WS_WO  = 0x0D00000
WS_WF  = 0x0E00000
WS_QE  = 0x0F00000
WS_QR  = 0x0F10000
WS_UNS = 0x0F20000
OOB    = 0x80000000
C2LOG2E = 2.0 * 1.4426950408889634

def f2h(x):
    import struct
    return hex(struct.unpack("<I", struct.pack("<f", x))[0])

S_WG = 2
SRD_X, SRD_W, SRD_WS, SRD_OUT, SRD_T = 8, 12, 16, 20, 24
S_PX, S_PW1, S_PW2, S_PG, S_PWF, S_PWG, S_PWO, S_POUT, S_PDBG, S_PWS = 28, 30, 32, 34, 36, 38, 40, 42, 44, 46
S_X, S_Q, S_B, S_QQ, S_M, S_N, S_WAVE, S_LW = 48, 49, 50, 51, 52, 53, 54, 55
S_T0 = 56
S_SLOT, S_CNT, S_SOFA, S_SOFW, S_GRP = 80, 81, 82, 83, 84
S_UNS = 85

def load_ptrs(a):
    a(f"s_load_dwordx16 s[{S_PX}:{S_PX+15}], s[0:1], 0")
    a(f"s_load_dwordx4 s[{S_PDBG}:{S_PDBG+3}], s[0:1], 64")

def ids(a):
    a(f"""
    s_and_b32 s{S_X}, s{S_WG}, 7
    s_lshr_b32 s{S_Q}, s{S_WG}, 3
    s_lshr_b32 s{S_B}, s{S_X}, 2
    s_and_b32 s{S_QQ}, s{S_X}, 3
    v_lshrrev_b32 v1, 6, v0
    v_and_b32 v0, 63, v0
    s_nop 0
    v_readfirstlane_b32 s{S_WAVE}, v1
    s_nop 3
    s_and_b32 s{S_LW}, s{S_WAVE}, 3
    """)

def mk_srd(a, dst, ptr, nbytes, add=None):
    if add is None:
        a(f"s_mov_b32 s{dst}, s{ptr}")
        a(f"s_and_b32 s{dst+1}, s{ptr+1}, 0xffff")
    else:
        a(f"s_add_u32 s{dst}, s{ptr}, {add}")
        a(f"s_addc_u32 s{dst+1}, s{ptr+1}, 0")
        a(f"s_and_b32 s{dst+1}, s{dst+1}, 0xffff")
    a(f"s_mov_b32 s{dst+2}, {hex(nbytes)}")
    a(f"s_mov_b32 s{dst+3}, 0x20000")

STAMP = False
HOT = False
EXP = set()
CYC = False
WS_STAMP = 0x1000000
S_ST = 86
def stamp(a, i):
    if STAMP:
        a(f"{'s_memtime' if CYC else 's_memrealtime'} s[{S_ST+2*i}:{S_ST+2*i+1}]")
def stamp_flush(a, kidx, n, lab):
    if not STAMP: return
    a("s_waitcnt lgkmcnt(0)")
    a(f"s_and_b32 s{S_T0}, s{S_WAVE}, 3\ns_cmp_eq_u32 s{S_T0}, 0\ns_cbranch_scc0 {lab}")
    a(f"s_lshr_b32 s{S_T0}, s{S_WAVE}, 2\ns_lshl_b32 s{S_T0}, s{S_T0}, 5")
    a(f"s_lshl_b32 s{S_T0+1}, s{S_WG}, 6\ns_add_u32 s{S_T0}, s{S_T0}, s{S_T0+1}")
    a(f"s_add_u32 s{S_T0}, s{S_T0}, {WS_STAMP + kidx*16384}")
    for i in range(n):
        a(f"v_mov_b32 v2, s{S_ST+2*i}\nv_mov_b32 v3, s{S_T0}")
        a(f"buffer_store_dword v2, v3, s[{SRD_WS}:{SRD_WS+3}], 0 offen offset:{4*i}")
    a("s_waitcnt vmcnt(0)")
    a(f"{lab}:")

RING33 = True
class Conv:
    def __init__(s, idx):
        s.idx = idx
        if idx == 1:
            s.NL, s.U, s.NST = 32, 1, 16
            s.RA, s.RW = (3, 3) if RING33 else (2, 4)
            s.MAGIC = 1986
        else:
            s.NL, s.U, s.NST = 16, 2, 8
            s.RA, s.RW = 3, 5
            s.MAGIC = 3856
        s.RS = s.NL + 1
        s.nA = s.RS
        s.AB = s.nA * 1024
        s.WB = 20480
        s.WOFF = s.RA * s.AB
        s.NU = 16
        s.NA = 8
        s.tag = f"c{idx}"
        assert s.WOFF + s.RW * s.WB <= 160 * 1024

SWZ_TBL = 0x42764210

V_ACC = 32
V_E0  = 64
V_E1  = 88
V_O   = 112
V_W   = 132
V_XA0, V_XA1, V_WA0, V_WA1 = 8, 9, 10, 11
V_XB = 12
V_WB0, V_WB1 = 16, 17
S_SLOTA, S_SLOTW = 80, 79

def swz_of(a, vL, vdst, stmp):
    a(f"v_lshlrev_b32 v{vdst}, 1, v{vL}")
    a(f"v_and_b32 v{vdst}, 28, v{vdst}")
    a(f"s_mov_b32 s{stmp}, {hex(SWZ_TBL)}")
    a(f"v_lshrrev_b32 v{vdst}, v{vdst}, s{stmp}")
    a(f"v_and_b32 v{vdst}, 7, v{vdst}")

def conv_c_setup(a, c):
    a(f"""
    v_and_b32 v2, 15, v0
    v_lshrrev_b32 v3, 4, v0
    """)
    if c.idx == 1:
        a(f"s_lshr_b32 s{S_T0}, s{S_LW}, 1")
        a(f"s_lshl_b32 s{S_T0}, s{S_T0}, 11")
        a(f"s_mov_b32 s{S_T0+1}, {c.WOFF}")
        a(f"s_mov_b32 s{S_T0+3}, 0")
    else:
        a(f"s_mov_b32 s{S_T0}, 0")
        a(f"s_lshr_b32 s{S_T0+3}, s{S_LW}, 1")
        a(f"s_mul_i32 s{S_T0+1}, s{S_T0+3}, {c.WB}")
        a(f"s_add_u32 s{S_T0+1}, s{S_T0+1}, {c.WOFF}")
        a(f"s_lshl_b32 s{S_T0+3}, s{S_T0+3}, 2")
    for d in range(2):
        a(f"v_add_u32 v5, {d}, v2")
        swz_of(a, 5, 4, S_T0+2)
        a(f"v_xor_b32 v4, v4, v3")
        a(f"v_xor_b32 v4, s{S_T0+3}, v4")
        a(f"v_lshlrev_b32 v4, 4, v4")
        a(f"v_lshl_add_u32 v4, v5, 7, v4")
        a(f"v_add_u32 v{V_XB+d}, s{S_T0}, v4")
        if c.idx == 1:
            a(f"v_xor_b32 v{V_XB+2+d}, 64, v{V_XB+d}")
    a(f"""
    v_lshrrev_b32 v4, 2, v2
    v_lshl_add_u32 v5, v3, 3, v4
    v_lshlrev_b32 v5, 7, v5
    v_and_b32 v6, 3, v2
    v_lshl_add_u32 v5, v6, 3, v5
    v_lshrrev_b32 v6, 1, v4
    v_and_b32 v6, 1, v6
    v_and_b32 v7, 1, v3
    v_lshl_or_b32 v6, v7, 1, v6
    s_and_b32 s{S_T0+2}, s{S_LW}, 1
    s_lshl_b32 s{S_T0+2}, s{S_T0+2}, 1
    v_xor_b32 v6, s{S_T0+2}, v6
    v_lshl_add_u32 v7, v6, 5, v5
    v_add_u32 v{V_WB0}, s{S_T0+1}, v7
    v_xor_b32 v6, 1, v6
    v_lshl_add_u32 v7, v6, 5, v5
    v_add_u32 v{V_WB1}, s{S_T0+1}, v7
    """)
    for r in range(32):
        a(f"v_mov_b32 v{V_ACC+r}, 0")
    a(f"s_mov_b32 s{S_SLOTA}, 0")
    a(f"s_mov_b32 s{S_SLOTW}, 0")
    for (cur, base) in [(V_XA0, V_XB), (V_XA1, V_XB+1), (V_WA0, V_WB0), (V_WA1, V_WB1)]:
        a(f"v_mov_b32 v{cur}, v{base}")

def xfrag_read(c, eset, phase, jp):
    if phase == 0:
        reg = eset + 4 * jp
    else:
        reg = V_O + 4 * jp
    j, d = jp & 3, jp >> 2
    off = (phase * 4 + j) * c.RS * 128
    return f"ds_read_b128 v[{reg}:{reg+3}], v{V_XA1 if d else V_XA0} offset:{off}"

def wfrag_reads(c, wslot, tap):
    out = []
    for nb in range(2):
        reg = V_W + wslot * 8 + nb * 4
        for h in range(2):
            out.append(f"ds_read_b64_tr_b16 v[{reg+2*h}:{reg+2*h+1}], v{V_WA1 if nb else V_WA0} offset:{tap*4096 + h*512}")
    return out

def group_reads(c, eset, tap, wslot):
    r = []
    if tap == 0:
        r += [xfrag_read(c, eset, 0, j) for j in range(4)]
    elif tap == 1:
        r += [xfrag_read(c, eset, 1, j) for j in range(4)]
    elif tap == 2:
        r += [xfrag_read(c, eset, 0, 4)]
    elif tap == 3:
        r += [xfrag_read(c, eset, 1, 4)]
    else:
        r += [xfrag_read(c, eset, 0, 5)]
    w = wfrag_reads(c, wslot, tap)
    if "noxr" in EXP: r = []
    if "nowr" in EXP: w = []
    if "noxr" in EXP or "nowr" in EXP: return w + r
    return w[:2] + r[:1] + w[2:] + r[1:]

def group_mfmas(eset, tap, wslot):
    out = []
    for jj in range(4):
        if tap % 2 == 0:
            xr = eset + 4 * (jj + tap // 2)
        else:
            xr = V_O + 4 * (jj + tap // 2)
        for nb in range(2):
            acc = V_ACC + (jj * 2 + nb) * 4
            wr = V_W + wslot * 8 + nb * 4
            out.append(f"v_mfma_f32_16x16x32_bf16 v[{acc}:{acc+3}], v[{wr}:{wr+3}], v[{xr}:{xr+3}], v[{acc}:{acc+3}]")
    return out


def interleave(a, mf, others):
    k = 0
    for i, m in enumerate(mf):
        a(m)
        if k < len(others):
            a(others[k]); k += 1
    while k < len(others):
        a(others[k]); k += 1

V_DUMMY = 200
def prefetch_start(a):
    if "nopf" in EXP: return
    d = V_DUMMY
    a(f"v_lshlrev_b32 v4, 4, v0")
    a(f"s_mul_i32 s{S_T0}, s{S_QQ}, 1000")
    a(f"s_mul_i32 s{S_T0+1}, s{S_Q}, 33")
    a(f"s_add_u32 s{S_T0}, s{S_T0}, s{S_T0+1}")
    a(f"s_lshl_b32 s{S_T0+1}, s{S_LW}, 3")
    a(f"s_add_u32 s{S_T0}, s{S_T0}, s{S_T0+1}")
    a(f"s_sub_u32 s{S_T0}, s{S_T0}, 6")
    a(f"s_lshl_b32 s{S_T0}, s{S_T0}, 10")
    a(f"v_add_u32 v5, s{S_T0}, v4")
    a(f"s_mul_i32 s{S_T0+2}, s{S_WG}, 12288")
    a(f"s_mul_i32 s{S_T0+3}, s{S_LW}, 3072")
    a(f"s_add_u32 s{S_T0+2}, s{S_T0+2}, s{S_T0+3}")
    a(f"v_add_u32 v6, s{S_T0+2}, v4")
    for k in range(9):
        a(f"buffer_load_dwordx4 v[{d}:{d+3}], v5, s[{SRD_X}:{SRD_X+3}], 0 offen")
        a(f"v_add_u32 v5, 1024, v5")
        if k < 3:
            a(f"buffer_load_dwordx4 v[{d}:{d+3}], v6, s[{SRD_W}:{SRD_W+3}], 0 offen offset:{k*1024}")
    if "pfall" in EXP:
        mk_srd(a, SRD_T, S_PW2, 2621440)
        for k in range(3):
            a(f"buffer_load_dwordx4 v[{d}:{d+3}], v6, s[{SRD_T}:{SRD_T+3}], 0 offen offset:{k*1024}")

def conv_c_loop(a, c):
    t = c.tag
    stamp(a, 1)
    a("s_barrier")
    stamp(a, 2)
    for r in group_reads(c, V_E0, 0, 0): a(r)
    for r in group_reads(c, V_E0, 1, 1): a(r)
    a(f"s_mov_b32 s{S_CNT}, 0")
    a(f"L_{t}_cloop:")
    for par in range(2):
        es, en = (V_E0, V_E1) if par == 0 else (V_E1, V_E0)
        a("s_waitcnt lgkmcnt(8)")
        interleave(a, group_mfmas(es, 0, 0), group_reads(c, es, 2, 2))
        a("s_waitcnt lgkmcnt(5)")
        interleave(a, group_mfmas(es, 1, 1), group_reads(c, es, 3, 3))
        a("s_waitcnt lgkmcnt(5)")
        interleave(a, group_mfmas(es, 2, 2), group_reads(c, es, 4, 4))
        if c.idx == 1:
            a(f"s_add_u32 s{S_SLOTW}, s{S_SLOTW}, {c.WB}")
            a(f"s_cmp_ge_u32 s{S_SLOTW}, {c.RW * c.WB}")
            a(f"s_cselect_b32 s{S_SLOTW}, 0, s{S_SLOTW}")
            if par == 1:
                a(f"s_xor_b32 s{S_SLOTA}, s{S_SLOTA}, {c.AB}")
            xb = V_XB + (2 if par == 0 else 0)
        else:
            a(f"s_add_u32 s{S_SLOTW}, s{S_SLOTW}, {2 * c.WB}")
            a(f"s_add_u32 s{S_T0}, s{S_SLOTW}, s{S_GRP}")
            a(f"s_cmp_ge_u32 s{S_T0}, {c.RW * c.WB}")
            a(f"s_cselect_b32 s{S_T0}, {c.RW * c.WB}, 0")
            a(f"s_sub_u32 s{S_SLOTW}, s{S_SLOTW}, s{S_T0}")
            a(f"s_add_u32 s{S_SLOTA}, s{S_SLOTA}, {c.AB}")
            a(f"s_cmp_ge_u32 s{S_SLOTA}, {c.RA * c.AB}")
            a(f"s_cselect_b32 s{S_SLOTA}, 0, s{S_SLOTA}")
            xb = V_XB
        a("s_waitcnt lgkmcnt(0)")
        a("s_barrier")
        a(f"v_add_u32 v{V_WA0}, s{S_SLOTW}, v{V_WB0}")
        a(f"v_add_u32 v{V_XA0}, s{S_SLOTA}, v{xb}")
        a(f"v_add_u32 v{V_WA1}, s{S_SLOTW}, v{V_WB1}")
        a(f"v_add_u32 v{V_XA1}, s{S_SLOTA}, v{xb+1}")
        interleave(a, group_mfmas(es, 3, 3), group_reads(c, en, 0, 0))
        interleave(a, group_mfmas(es, 4, 4), group_reads(c, en, 1, 1))
    a(f"s_add_u32 s{S_CNT}, s{S_CNT}, 2")
    a(f"s_cmp_lt_u32 s{S_CNT}, {c.NST}")
    a(f"s_cbranch_scc1 L_{t}_cloop")
    a("s_waitcnt lgkmcnt(0)")
    stamp(a, 3)

V_LA = 8
V_LWV = 18

def conv_l_setup(a, c, row_base_sgpr, lo_valid, hi_valid):
    na = (c.nA + 3) // 4
    a(f"v_lshrrev_b32 v2, 3, v0")
    a(f"v_and_b32 v3, 7, v0")
    a(f"s_lshl_b32 s{S_T0}, s{S_LW}, 3")
    a(f"s_mov_b32 s{S_T0+1}, {c.MAGIC}")
    a(f"v_mov_b32 v7, {hex(OOB)}")
    for k in range(na):
        a(f"""
        v_add_u32 v4, s{S_T0}, v2
        v_add_u32 v4, {32*k}, v4
        v_mul_u32_u24 v5, s{S_T0+1}, v4
        v_lshrrev_b32 v5, 16, v5
        v_mul_u32_u24 v6, {c.RS}, v5
        v_sub_u32 v6, v4, v6
        v_and_b32 v20, 3, v5
        v_lshl_add_u32 v20, v6, 2, v20
        v_lshrrev_b32 v21, 2, v5
        v_lshl_add_u32 v20, v20, 1, v21
        v_add_u32 v20, s{row_base_sgpr}, v20
        """)
        swz_of(a, 6, 21, S_T0+2)
        a(f"""
        v_xor_b32 v21, v21, v3
        v_lshlrev_b32 v21, 4, v21
        v_lshl_add_u32 v21, v20, 10, v21
        v_subrev_u32 v22, {lo_valid}, v20
        v_cmp_gt_u32 vcc, {hi_valid}, v22
        s_nop 1
        v_cndmask_b32 v21, v7, v21, vcc
        v_cmp_gt_u32 vcc, {8*c.RS}, v4
        s_nop 1
        v_cndmask_b32 v{V_LA+k}, v7, v21, vcc
        """)
    a(f"""
    v_lshrrev_b32 v4, 3, v0
    v_lshrrev_b32 v5, 1, v4
    v_and_b32 v5, 1, v5
    s_and_b32 s{S_T0}, s{S_LW}, 1
    s_lshl_b32 s{S_T0}, s{S_T0}, 1
    v_or_b32 v5, s{S_T0}, v5
    v_lshlrev_b32 v5, 1, v5
    v_and_b32 v6, 7, v0
    v_xor_b32 v6, v6, v5
    v_lshlrev_b32 v6, 4, v6
    s_lshl_b32 s{S_T0}, s{S_LW}, 3
    v_add_u32 v4, s{S_T0}, v4
    v_lshl_add_u32 v{V_LWV}, v4, 10, v6
    """)

class LSched:
    def __init__(s): s.ops = []
    def add(s, tag, n): s.ops += [tag] * n
    def wait_for(s, tags):
        last = -1
        for i, t in enumerate(s.ops):
            if t in tags: last = i
        return len(s.ops) - 1 - last

S_OFA, S_OFW, S_LSA, S_LSW = 82, 83, 77, 78
LAB = [0]
def conv_l_issue_A(a, c, srdA, scA=""):
    na = (c.nA + 3) // 4
    a(f"s_lshl_b32 s{S_T0}, s{S_LW}, 10")
    a(f"s_add_u32 s{S_T0}, s{S_T0}, s{S_LSA}")
    for k in range(na):
        extra = (4 * k + 3 >= c.nA)
        if extra:
            LAB[0] += 1
            lab = f"L_xa{LAB[0]}"
            a(f"s_cmp_lt_u32 s{S_LW}, {c.nA - 4 * k}")
            a(f"s_cbranch_scc0 {lab}")
        a(f"s_add_u32 m0, s{S_T0}, {k*4096}")
        a("s_nop 0")
        if "noA" not in EXP: a(f"buffer_load_dwordx4 v{V_LA+k}, s[{srdA}:{srdA+3}], s{S_OFA} offen {scA} lds")
        if extra:
            a(f"{lab}:")
    a(f"s_add_u32 s{S_LSA}, s{S_LSA}, {c.AB}")
    a(f"s_cmp_ge_u32 s{S_LSA}, {c.RA * c.AB}")
    a(f"s_cselect_b32 s{S_LSA}, 0, s{S_LSA}")
    if not HOT: a(f"s_add_u32 s{S_OFA}, s{S_OFA}, 128")

def conv_l_issue_W(a, c, srdW):
    a(f"s_lshl_b32 s{S_T0}, s{S_LW}, 10")
    a(f"s_add_u32 s{S_T0}, s{S_T0}, s{S_LSW}")
    a(f"s_mov_b32 s{S_T0+1}, s{S_OFW}")
    for tap in range(5):
        a(f"s_add_u32 m0, s{S_T0}, {c.WOFF + tap*4096}")
        if tap: a(f"s_add_u32 s{S_T0+1}, s{S_T0+1}, 524288")
        else: a("s_nop 0")
        if "noW" not in EXP: a(f"buffer_load_dwordx4 v{V_LWV}, s[{srdW}:{srdW+3}], s{S_T0+1} offen lds")
    a(f"s_add_u32 s{S_LSW}, s{S_LSW}, {c.WB}")
    a(f"s_cmp_ge_u32 s{S_LSW}, {c.RW * c.WB}")
    a(f"s_cselect_b32 s{S_LSW}, 0, s{S_LSW}")
    if not HOT: a(f"s_add_u32 s{S_OFW}, s{S_OFW}, 32768")

def conv_l_loop(a, c, srdA, srdW, scA=""):
    t = c.tag
    nAmin = c.nA // 4
    sch = LSched()
    iA = [0]; iW = [0]
    def A():
        conv_l_issue_A(a, c, srdA, scA); sch.add(("A", iA[0]), nAmin); iA[0] += 1
    def W():
        conv_l_issue_W(a, c, srdW); sch.add(("W", iW[0]), 5); iW[0] += 1
    def need(stage):
        if c.idx == 1: return [("A", stage // 2), ("W", stage)]
        return [("A", stage), ("W", 2*stage), ("W", 2*stage+1)]
    a(f"s_mov_b32 s{S_LSA}, 0\ns_mov_b32 s{S_LSW}, 0\ns_mov_b32 s{S_OFA}, 0")
    stamp(a, 1)
    if c.idx == 1:
        W(); A(); W()
        a(f"s_waitcnt vmcnt({sch.wait_for(need(0))})"); a("s_barrier"); stamp(a, 2)
        A(); W(); W()
    else:
        W(); A(); W(); A(); W(); W()
        a(f"s_waitcnt vmcnt({sch.wait_for(need(0))})"); a("s_barrier"); stamp(a, 2)
        A(); W()
    for s in range(c.NST):
        if s + 1 < c.NST:
            a(f"s_waitcnt vmcnt({min(63, sch.wait_for(need(s+1)))})")
        a("s_barrier")
        if c.idx == 1:
            if s % 2 == 1 and iA[0] < c.NA: A()
            if iW[0] < c.NU: W()
        else:
            if iW[0] < c.NU: W()
            if iA[0] < c.NA: A()
            if iW[0] < c.NU: W()
    stamp(a, 3)

GC1 = -2.0 * 1.4426950408889634 * 0.7978845608028654
GC2 = GC1 * 0.044715
def gelu_consts(a, vc):
    a(f"v_mov_b32 v{vc}, {f2h(GC2)}\nv_mov_b32 v{vc+1}, {f2h(GC2)}")
    a(f"v_mov_b32 v{vc+2}, {f2h(GC1)}\nv_mov_b32 v{vc+3}, {f2h(GC1)}")
    a(f"v_mov_b32 v{vc+4}, 1.0\nv_mov_b32 v{vc+5}, 1.0")

def gelu_block(a, src, n, tmp, vc, dst):
    P = range(0, n, 2)
    for p in P: a(f"v_pk_mul_f32 v[{tmp+p}:{tmp+p+1}], v[{src+p}:{src+p+1}], v[{src+p}:{src+p+1}]")
    for p in P: a(f"v_pk_fma_f32 v[{tmp+p}:{tmp+p+1}], v[{tmp+p}:{tmp+p+1}], v[{vc}:{vc+1}], v[{vc+2}:{vc+3}]")
    for p in P: a(f"v_pk_mul_f32 v[{tmp+p}:{tmp+p+1}], v[{tmp+p}:{tmp+p+1}], v[{src+p}:{src+p+1}]")
    for p in range(n): a(f"v_exp_f32 v{tmp+p}, v{tmp+p}")
    for p in P: a(f"v_pk_add_f32 v[{tmp+p}:{tmp+p+1}], v[{tmp+p}:{tmp+p+1}], v[{vc+4}:{vc+5}]")
    for p in range(n): a(f"v_rcp_f32 v{tmp+p}, v{tmp+p}")
    for p in P: a(f"v_pk_mul_f32 v[{tmp+p}:{tmp+p+1}], v[{tmp+p}:{tmp+p+1}], v[{src+p}:{src+p+1}]")
    for p in P: a(f"v_cvt_pk_bf16_f32 v{dst+p//2}, v{tmp+p}, v{tmp+p+1}")

def tbuf_write_addr(a, rowshift_wm):
    a(f"""
    v_and_b32 v2, 15, v0
    v_lshrrev_b32 v3, 4, v0
    s_and_b32 s{S_T0}, s{S_LW}, 1
    s_lshl_b32 s{S_T0}, s{S_T0}, 3
    v_or_b32 v4, s{S_T0}, v3
    v_and_b32 v5, 14, v2
    v_xor_b32 v4, v4, v5
    v_lshlrev_b32 v4, 3, v4
    v_lshl_add_u32 v16, v2, 9, v4
    """)
    if rowshift_wm:
        a(f"s_lshr_b32 s{S_T0}, s{S_LW}, 1\ns_lshl_b32 s{S_T0}, s{S_T0}, 13\nv_add_u32 v16, s{S_T0}, v16")
    a("v_xor_b32 v17, 32, v16")

def conv1_epilogue_c(a):
    a("s_nop 7\ns_nop 7")
    tbuf_write_addr(a, True)
    gelu_consts(a, 20)
    for jj in range(4):
        gelu_block(a, V_ACC + jj*8, 8, 64, 20, 72 + jj*4)
    for jj in range(4):
        for nb in range(2):
            r = 72 + jj*4 + nb*2
            a(f"ds_write_b64 v{17 if nb else 16}, v[{r}:{r+1}] offset:{jj*128}")
    a("s_waitcnt lgkmcnt(0)")

def tbuf_store(a, ninstr_per_wave, base_off_sgpr, sc=""):
    for k in range(ninstr_per_wave):
        a(f"s_mul_i32 s{S_T0}, s{S_WAVE}, {ninstr_per_wave}")
        a(f"s_add_u32 s{S_T0}, s{S_T0}, {k}")
        a(f"s_lshl_b32 s{S_T0+1}, s{S_T0}, 10")
        a(f"v_lshl_add_u32 v4, v0, 4, s{S_T0+1}")
        a(f"ds_read_b128 v[{24+4*k}:{27+4*k}], v4")
        a(f"s_and_b32 s{S_T0+2}, s{S_T0}, 7")
        a(f"v_and_b32 v5, 7, v0")
        a(f"v_xor_b32 v5, s{S_T0+2}, v5")
        a(f"v_lshlrev_b32 v5, 4, v5")
        a(f"v_lshrrev_b32 v6, 3, v0")
        a(f"v_lshl_add_u32 v5, v6, 10, v5")
        a(f"s_lshl_b32 s{S_T0+1}, s{S_T0}, 13")
        a(f"v_add_u32 v{18+k}, s{S_T0+1}, v5")
    a("s_waitcnt lgkmcnt(0)")
    for k in range(ninstr_per_wave):
        a(f"buffer_store_dwordx4 v[{24+4*k}:{27+4*k}], v{18+k}, s[{SRD_WS}:{SRD_WS+3}], s{base_off_sgpr} offen {sc}")

def conv2_epilogue_c(a, c):
    a("s_nop 7\ns_nop 7")
    XB = 16384
    a(f"s_lshl_b32 s{S_T0}, s{S_LW}, 12")
    a(f"v_lshl_add_u32 v4, v0, 4, s{S_T0}")
    a(f"s_xor_b32 s{S_T0}, s{S_LW}, 2\ns_lshl_b32 s{S_T0}, s{S_T0}, 12")
    a(f"v_lshl_add_u32 v5, v0, 4, s{S_T0}")
    a(f"s_cmp_ge_u32 s{S_LW}, 2")
    a(f"s_cbranch_scc1 L_c2_kh1")
    for q in range(4):
        a(f"ds_write_b128 v4, v[{V_ACC+16+4*q}:{V_ACC+19+4*q}] offset:{XB + q*1024}")
    a("s_branch L_c2_khj")
    a("L_c2_kh1:")
    for q in range(4):
        a(f"ds_write_b128 v4, v[{V_ACC+4*q}:{V_ACC+3+4*q}] offset:{XB + q*1024}")
    a("s_waitcnt lgkmcnt(0)")
    for r in range(16):
        a(f"v_mov_b32 v{V_ACC+r}, v{V_ACC+16+r}")
    a("L_c2_khj:")
    a("s_waitcnt lgkmcnt(0)")
    a("s_barrier")
    for q in range(4):
        a(f"ds_read_b128 v[{64+4*q}:{67+4*q}], v5 offset:{XB + q*1024}")
    tbuf_write_addr(a, False)
    gelu_consts(a, 20)
    a(f"s_lshr_b32 s{S_T0}, s{S_LW}, 1\ns_lshl_b32 s{S_T0}, s{S_T0}, 8")
    a(f"v_add_u32 v16, s{S_T0}, v16\nv_add_u32 v17, s{S_T0}, v17")
    a("s_waitcnt lgkmcnt(0)")
    for p in range(0, 16, 2):
        a(f"v_pk_add_f32 v[{V_ACC+p}:{V_ACC+p+1}], v[{V_ACC+p}:{V_ACC+p+1}], v[{64+p}:{64+p+1}]")
    for jj in range(2):
        gelu_block(a, V_ACC + jj*8, 8, 80, 20, 72 + jj*4)
    for jj in range(2):
        for nb in range(2):
            r = 72 + jj*4 + nb*2
            a(f"ds_write_b64 v{17 if nb else 16}, v[{r}:{r+1}] offset:{jj*128}")
    a("s_waitcnt lgkmcnt(0)")

def emit_conv_kernel(idx, name):
    c = Conv(idx)
    a = Asm()
    kernel_begin(a, name)
    t = c.tag
    a(f"s_cmp_ge_u32 s{S_WG}, 256\ns_cbranch_scc1 L_{t}_end")
    stamp(a, 0)
    load_ptrs(a)
    ids(a)
    a(f"s_lshr_b32 s{S_M}, s{S_Q}, 3\ns_and_b32 s{S_N}, s{S_Q}, 7")
    a("s_waitcnt lgkmcnt(0)")
    mk_srd(a, SRD_WS, S_PWS, 0x10000000)
    if idx == 1:
        a(f"s_mul_i32 s{S_T0}, s{S_B}, 4096000")
        mk_srd(a, SRD_X, S_PX, 4096000, add=f"s{S_T0}")
        mk_srd(a, SRD_W, S_PW1, 2621440)
    else:
        a(f"s_lshl_b32 s{S_T0}, s{S_X}, 19")
        a(f"s_add_u32 s{S_T0}, s{S_T0}, {WS_H}")
        mk_srd(a, SRD_X, S_PWS, 0x100000, add=f"s{S_T0}")
        mk_srd(a, SRD_W, S_PW2, 2621440)
    a(f"s_cmp_ge_u32 s{S_WAVE}, 4")
    a(f"s_cbranch_scc1 L_{t}_L")
    if idx == 2:
        a(f"s_lshr_b32 s{S_GRP}, s{S_LW}, 1\ns_mul_i32 s{S_GRP}, s{S_GRP}, {c.WB}")
    if idx == 1: prefetch_start(a)
    conv_c_setup(a, c)
    conv_c_loop(a, c)
    if idx == 1:
        conv1_epilogue_c(a)
    else:
        conv2_epilogue_c(a, c)
    a(f"s_branch L_{t}_join")
    a(f"L_{t}_L:")
    if idx == 1:
        a(f"s_mul_i32 s{S_T0+8}, s{S_QQ}, 1000")
        a(f"s_lshl_b32 s{S_T0+9}, s{S_M}, 8")
        a(f"s_add_u32 s{S_T0+8}, s{S_T0+8}, s{S_T0+9}")
        a(f"s_sub_u32 s{S_T0+8}, s{S_T0+8}, 6")
        conv_l_setup(a, c, S_T0+8, 0, 4000)
    else:
        a(f"s_lshl_b32 s{S_T0+8}, s{S_M}, 7")
        conv_l_setup_c2(a, c)
    a(f"s_lshl_b32 s{S_OFW}, s{S_N}, 7")
    conv_l_loop(a, c, SRD_X, SRD_W)
    if idx == 2:
        a("s_barrier")
    a(f"L_{t}_join:")
    stamp(a, 4)
    a("s_barrier")
    if idx == 1:
        a(f"s_lshl_b32 s{S_T0+8}, s{S_X}, 19")
        a(f"s_lshl_b32 s{S_T0+9}, s{S_M}, 17")
        a(f"s_add_u32 s{S_T0+8}, s{S_T0+8}, s{S_T0+9}")
        a(f"s_lshl_b32 s{S_T0+9}, s{S_N}, 7")
        a(f"s_add_u32 s{S_T0+8}, s{S_T0+8}, s{S_T0+9}")
        a(f"s_add_u32 s{S_T0+8}, s{S_T0+8}, {WS_H}")
        tbuf_store(a, 2, S_T0+8)
    else:
        a(f"s_lshl_b32 s{S_T0+8}, s{S_X}, 18")
        a(f"s_lshl_b32 s{S_T0+9}, s{S_M}, 16")
        a(f"s_add_u32 s{S_T0+8}, s{S_T0+8}, s{S_T0+9}")
        a(f"s_lshl_b32 s{S_T0+9}, s{S_N}, 7")
        a(f"s_add_u32 s{S_T0+8}, s{S_T0+8}, s{S_T0+9}")
        a(f"s_add_u32 s{S_T0+8}, s{S_T0+8}, {WS_F}")
        tbuf_store(a, 1, S_T0+8)
    a("s_waitcnt vmcnt(0)")
    stamp(a, 5)
    stamp_flush(a, idx, 6, f"L_{t}_stx")
    a(f"L_{t}_end:")
    a("s_endpgm")
    return a.text(), c

def conv_l_setup_c2(a, c):
    a(f"s_cmp_eq_u32 s{S_QQ}, 0\ns_cselect_b32 s{S_T0+10}, 2, 0")
    a(f"s_cmp_eq_u32 s{S_QQ}, 3\ns_cselect_b32 s{S_T0+11}, 0, 522\ns_add_u32 s{S_T0+11}, s{S_T0+11}, 502")
    a(f"s_sub_u32 s{S_T0+11}, s{S_T0+11}, s{S_T0+10}")
    conv_l_setup(a, c, S_T0+8, f"s{S_T0+10}", f"s{S_T0+11}")


def relayout_unit(a, lab):
    U = S_T0 + 8
    a(f"s_lshr_b32 s{U+1}, s{U}, 2\ns_and_b32 s{U+1}, s{U+1}, 15")
    a(f"s_and_b32 s{U+2}, s{U}, 3")
    a(f"s_cmp_ge_u32 s{U}, 64")
    a(f"s_cselect_b32 s{SRD_T}, s{S_PWF}, s{S_PWO}")
    a(f"s_cselect_b32 s{SRD_T+1}, s{S_PWF+1}, s{S_PWO+1}")
    a(f"s_and_b32 s{SRD_T+1}, s{SRD_T+1}, 0xffff")
    a(f"s_mov_b32 s{SRD_T+2}, 524288\ns_mov_b32 s{SRD_T+3}, 0x20000")
    a(f"""
    v_and_b32 v2, 15, v0
    v_lshrrev_b32 v3, 4, v0
    v_lshlrev_b32 v4, 13, v3
    v_lshl_add_u32 v4, v2, 4, v4
    s_lshl_b32 s{U+3}, s{U+1}, 15
    s_lshl_b32 s{U+4}, s{U+2}, 8
    s_add_u32 s{U+3}, s{U+3}, s{U+4}
    v_add_u32 v4, s{U+3}, v4
    """)
    for e in range(8):
        a(f"buffer_load_dwordx4 v[{32+4*e}:{35+4*e}], v4, s[{SRD_T}:{SRD_T+3}], 0 offen" + (f" offset:{e*1024}" if e < 4 else ""))
        if e == 3: a("v_add_u32 v4, 4096, v4")
        if e >= 4: a.lines[-1] = a.lines[-1] + f" offset:{(e-4)*1024}"
    a(f"s_cmp_ge_u32 s{U}, 64\ns_cbranch_scc1 {lab}_f")
    a(f"""
    v_lshrrev_b32 v5, 3, v2
    v_lshlrev_b32 v5, 16, v5
    v_and_b32 v6, 7, v2
    v_lshlrev_b32 v6, 5, v6
    v_add_u32 v5, v5, v6
    v_lshl_add_u32 v5, v3, 8, v5
    s_lshl_b32 s{U+3}, s{U+2}, 17
    s_lshl_b32 s{U+4}, s{U+1}, 12
    s_add_u32 s{U+3}, s{U+3}, s{U+4}
    s_add_u32 s{U+3}, s{U+3}, {WS_WO}
    v_add_u32 v5, s{U+3}, v5
    """)
    for b in range(8):
        a(f"v_add_u32 v{8+b}, {(b&3)*1024 + (b>>2)*16}, v5")
    a(f"s_branch {lab}_j")
    a(f"{lab}_f:")
    a(f"""
    v_lshrrev_b32 v5, 1, v2
    v_lshlrev_b32 v5, 14, v5
    v_and_b32 v6, 1, v2
    v_lshlrev_b32 v6, 7, v6
    v_add_u32 v5, v5, v6
    v_lshl_add_u32 v5, v3, 8, v5
    s_lshl_b32 s{U+3}, s{U+2}, 17
    s_lshl_b32 s{U+4}, s{U+1}, 10
    s_add_u32 s{U+3}, s{U+3}, s{U+4}
    s_add_u32 s{U+3}, s{U+3}, {WS_WF}
    v_add_u32 v5, s{U+3}, v5
    """)
    for b in range(8):
        a(f"v_add_u32 v{8+b}, {b*16}, v5")
    a(f"{lab}_j:")
    a(f"s_mov_b32 s{U+3}, 0x05040100\ns_mov_b32 s{U+4}, 0x07060302")
    a("s_waitcnt vmcnt(0)")
    for b in range(8):
        d = b >> 1
        sel = U + 3 + (b & 1)
        for m in range(4):
            lo, hi = 32 + 4*(2*m) + d, 32 + 4*(2*m+1) + d
            a(f"v_perm_b32 v{64+4*b+m}, v{hi}, v{lo}, s{sel}")
    for b in range(8):
        a(f"buffer_store_dwordx4 v[{64+4*b}:{67+4*b}], v{8+b}, s[{SRD_WS}:{SRD_WS+3}], 0 offen {SC_G}")

SC_G = ""

def ge_unit(a, lds_off, lab):
    U = S_T0 + 8
    mk_srd(a, SRD_T, S_PWG, 524288)
    a(f"""
    v_lshrrev_b32 v2, 1, v0
    v_and_b32 v3, 1, v0
    v_lshlrev_b32 v3, 4, v3
    v_lshl_add_u32 v2, v2, 10, v3
    s_lshl_b32 s{U+1}, s{U}, 5
    v_add_u32 v2, s{U+1}, v2
    s_mov_b32 s{U+2}, 0
    """)
    for k in range(16):
        a(f"s_mov_b32 m0, {lds_off + k*1024}")
        a(f"s_nop 0")
        a(f"buffer_load_dwordx4 v2, s[{SRD_T}:{SRD_T+3}], s{U+2} offen lds")
        a(f"s_add_u32 s{U+2}, s{U+2}, 32768")
    mk_srd(a, SRD_T, S_PG, 16384)
    a(f"""
    v_and_b32 v4, 15, v0
    v_lshrrev_b32 v5, 4, v0
    v_lshlrev_b32 v6, 10, v4
    v_lshl_add_u32 v6, v5, 4, v6
    """)
    for sidx in range(16):
        a(f"buffer_load_dwordx4 v[{64+4*sidx}:{67+4*sidx}], v6, s[{SRD_T}:{SRD_T+3}], 0 offen offset:{sidx*64}")
    a(f"""
    v_lshrrev_b32 v7, 2, v4
    v_lshl_add_u32 v7, v5, 3, v7
    v_lshlrev_b32 v7, 5, v7
    v_and_b32 v8, 3, v4
    v_lshl_add_u32 v7, v8, 3, v7
    v_add_u32 v7, {lds_off}, v7
    v_mov_b32 v32, 0
    v_mov_b32 v33, 0
    v_mov_b32 v34, 0
    v_mov_b32 v35, 0
    s_waitcnt vmcnt(0)
    """)
    for sidx in range(16):
        r = 136 + 4*(sidx & 3)
        a(f"ds_read_b64_tr_b16 v[{r}:{r+1}], v7 offset:{sidx*1024}")
        a(f"ds_read_b64_tr_b16 v[{r+2}:{r+3}], v7 offset:{sidx*1024 + 128}")
        a("s_waitcnt lgkmcnt(0)")
        a(f"v_mfma_f32_16x16x32_bf16 v[32:35], v[{r}:{r+3}], v[{64+4*sidx}:{67+4*sidx}], v[32:35]")
    a("s_nop 7\ns_nop 7")
    a(f"s_mov_b32 s{U+1}, {f2h(C2LOG2E)}")
    for r in range(4): a(f"v_mul_f32 v{32+r}, s{U+1}, v{32+r}")
    a(f"v_max3_f32 v40, abs(v32), abs(v33), abs(v34)\nv_max_f32 v40, v40, v40\nv_max_f32 v41, abs(v35), abs(v35)\nv_max_f32 v40, v40, v41")
    a(f"s_mov_b32 s{U+2}, {f2h(96.0)}")
    a(f"v_cmp_nle_f32 vcc, v40, s{U+2}") if False else None
    a(f"v_mov_b32 v42, s{U+2}")
    a(f"v_cmp_nle_f32 vcc, v40, v42")
    for r in range(4): a(f"v_exp_f32 v{36+r}, v{32+r}")
    a("s_nop 1")
    a(f"s_cmp_lg_u64 vcc, 0\ns_cselect_b32 s{U+3}, 1, 0")
    a(f"""
    v_lshlrev_b32 v9, 11, v4
    v_lshl_add_u32 v9, v5, 4, v9
    s_lshl_b32 s{U+1}, s{U}, 6
    v_add_u32 v9, s{U+1}, v9
    v_add_u32 v10, {WS_QR}, v9
    v_add_u32 v9, {WS_QE}, v9
    buffer_store_dwordx4 v[32:35], v10, s[{SRD_WS}:{SRD_WS+3}], 0 offen {SC_G}
    buffer_store_dwordx4 v[36:39], v9, s[{SRD_WS}:{SRD_WS+3}], 0 offen {SC_G}
    v_mov_b32 v11, s{U+3}
    s_lshl_b32 s{U+1}, s{U}, 2
    s_add_u32 s{U+1}, s{U+1}, {WS_UNS}
    v_mov_b32 v12, s{U+1}
    buffer_store_dword v11, v12, s[{SRD_WS}:{SRD_WS+3}], 0 offen {SC_G}
    """)

def emit_prep_kernel(name):
    a = Asm()
    kernel_begin(a, name)
    a(f"s_cmp_ge_u32 s{S_WG}, 256\ns_cbranch_scc1 L_p_end")
    load_ptrs(a)
    ids(a)
    a("s_waitcnt lgkmcnt(0)")
    mk_srd(a, SRD_WS, S_PWS, 0x10000000)
    a(f"s_cmp_eq_u32 s{S_WAVE}, 0\ns_cbranch_scc0 L_p_end")
    a(f"s_cmp_lt_u32 s{S_WG}, 128\ns_cbranch_scc0 L_p_ge")
    a(f"s_mov_b32 s{S_T0+8}, s{S_WG}")
    relayout_unit(a, "L_p_rl")
    a("s_branch L_p_fin")
    a("L_p_ge:")
    a(f"s_cmp_ge_u32 s{S_WG}, 224\ns_cbranch_scc0 L_p_end")
    a(f"s_sub_u32 s{S_T0+8}, s{S_WG}, 224")
    ge_unit(a, 0, "L_p_g")
    a("L_p_fin:")
    a("s_waitcnt vmcnt(0)")
    a("L_p_end:")
    a("s_endpgm")
    return a.text()

def load_unsafe(a, lab):
    a(f"""
    v_and_b32 v14, 31, v0
    v_lshlrev_b32 v14, 2, v14
    v_add_u32 v14, {WS_UNS}, v14
    buffer_load_dword v15, v14, s[{SRD_WS}:{SRD_WS+3}], 0 offen {LD_G}
    s_waitcnt vmcnt(0)
    v_cmp_ne_u32 vcc, 0, v15
    s_nop 4
    s_cmp_lg_u64 vcc, 0
    s_cselect_b32 s{S_UNS}, 1, 0
    """)
LD_G = ""

FE_A = 0
def fe_c(a):
    a(f"s_and_b32 s{S_T0}, s{S_Q}, 3\ns_lshl_b32 s{S_T0}, s{S_T0}, 3\ns_lshl_b32 s{S_T0+1}, s{S_LW}, 1\ns_add_u32 s{S_T0}, s{S_T0}, s{S_T0+1}")
    a(f"s_lshl_b32 s{S_T0}, s{S_T0}, 14\ns_add_u32 s{S_T0}, s{S_T0}, {WS_WF}")
    a("v_lshlrev_b32 v4, 4, v0")
    for f in range(32):
        if f % 4 == 0 and f: a(f"s_add_u32 s{S_T0}, s{S_T0}, 4096")
        a(f"buffer_load_dwordx4 v[{128+4*f}:{131+4*f}], v4, s[{SRD_WS}:{SRD_WS+3}], s{S_T0} offen offset:{(f%4)*1024} {LD_G}")
    a("v_and_b32 v2, 15, v0\nv_lshrrev_b32 v3, 4, v0")
    swz_of(a, 2, 4, S_T0+2)
    a("v_xor_b32 v4, v4, v3\nv_lshlrev_b32 v4, 4, v4\nv_lshl_add_u32 v8, v2, 7, v4\nv_xor_b32 v9, 64, v8")
    for r in range(16): a(f"v_mov_b32 v{32+r}, 0")
    load_unsafe(a, "L_fe_u")
    def rd(sidx):
        du, h = sidx >> 1, sidx & 1
        reg = 64 + (sidx & 3) * 8
        return [f"ds_read_b128 v[{reg+4*tb}:{reg+4*tb+3}], v{8+h} offset:{FE_A + du*4096 + tb*2048}" for tb in range(2)]
    a("s_waitcnt vmcnt(0)")
    for ph in range(4):
        a("s_barrier")
        for sidx in range(4*ph, 4*ph+4):
            for r in rd(sidx): a(r)
        for j, sidx in enumerate(range(4*ph, 4*ph+4)):
            a(f"s_waitcnt lgkmcnt({2*(3-j)})")
            reg = 64 + (sidx & 3) * 8
            for tb in range(2):
                for nbl in range(2):
                    acc = 32 + (tb*2 + nbl) * 4
                    w = 128 + 4 * (nbl*16 + sidx)
                    a(f"v_mfma_f32_16x16x32_bf16 v[{acc}:{acc+3}], v[{w}:{w+3}], v[{reg+4*tb}:{reg+4*tb+3}], v[{acc}:{acc+3}]")
    a("s_nop 7\ns_nop 7")
    a(f"s_mov_b32 s{S_T0}, {f2h(C2LOG2E)}")
    for r in range(16): a(f"v_mul_f32 v{32+r}, s{S_T0}, v{32+r}")
    a(f"s_cmp_eq_u32 s{S_UNS}, 0\ns_cbranch_scc0 L_fe_raw")
    a(f"v_mov_b32 v6, {f2h(126.0)}\nv_mov_b32 v7, {f2h(-126.0)}")
    for r in range(16): a(f"v_med3_f32 v{32+r}, v{32+r}, v7, v6")
    for r in range(16): a(f"v_exp_f32 v{32+r}, v{32+r}")
    a("L_fe_raw:")
    a(f"""
    v_lshlrev_b32 v4, 11, v2
    v_lshl_add_u32 v4, v3, 4, v4
    s_lshr_b32 s{S_T0}, s{S_Q}, 2
    s_lshl_b32 s{S_T0}, s{S_T0}, 16
    s_and_b32 s{S_T0+1}, s{S_Q}, 3
    s_lshl_b32 s{S_T0+1}, s{S_T0+1}, 9
    s_add_u32 s{S_T0}, s{S_T0}, s{S_T0+1}
    s_lshl_b32 s{S_T0+1}, s{S_LW}, 7
    s_add_u32 s{S_T0}, s{S_T0}, s{S_T0+1}
    s_lshl_b32 s{S_T0+1}, s{S_X}, 19
    s_add_u32 s{S_T0}, s{S_T0}, s{S_T0+1}
    s_add_u32 s{S_T0}, s{S_T0}, {WS_P}
    v_add_u32 v5, 0x8000, v4
    s_nop 0
    """)
    for tb in range(2):
        for nbl in range(2):
            acc = 32 + (tb*2 + nbl) * 4
            a(f"buffer_store_dwordx4 v[{acc}:{acc+3}], v{4+tb}, s[{SRD_WS}:{SRD_WS+3}], s{S_T0} offen offset:{nbl*64} {SC_L}")
SC_L = ""
LD_L = ""

def fe_l(a):
    a(f"v_lshrrev_b32 v2, 3, v0\ns_lshl_b32 s{S_T0}, s{S_LW}, 3\nv_add_u32 v2, s{S_T0}, v2\nv_and_b32 v3, 7, v0")
    swz_of(a, 2, 4, S_T0+2)
    a(f"v_xor_b32 v4, v4, v3\nv_lshlrev_b32 v4, 4, v4\nv_lshl_add_u32 v4, v2, 10, v4")
    a(f"s_lshr_b32 s{S_T0}, s{S_Q}, 2\ns_lshl_b32 s{S_T0}, s{S_T0}, 15\ns_lshl_b32 s{S_T0+1}, s{S_X}, 18\ns_add_u32 s{S_T0}, s{S_T0}, s{S_T0+1}\ns_add_u32 s{S_T0}, s{S_T0}, {WS_F}")
    a(f"s_lshl_b32 s{S_T0+1}, s{S_LW}, 10")
    for du in range(8):
        a(f"s_add_u32 m0, s{S_T0+1}, {FE_A + du*4096}")
        a("s_nop 0")
        a(f"buffer_load_dwordx4 v4, s[{SRD_WS}:{SRD_WS+3}], s{S_T0} offen {LD_L} lds")
        a(f"s_add_u32 s{S_T0}, s{S_T0}, 128")
    for ph in range(4):
        a(f"s_waitcnt vmcnt({6 - 2*ph})")
        a("s_barrier")

def emit_fe_kernel(name):
    a = Asm()
    kernel_begin(a, name)
    a(f"s_cmp_ge_u32 s{S_WG}, 256\ns_cbranch_scc1 L_fe_end")
    stamp(a, 0)
    load_ptrs(a)
    ids(a)
    a("s_waitcnt lgkmcnt(0)")
    mk_srd(a, SRD_WS, S_PWS, 0x10000000)
    a(f"s_cmp_ge_u32 s{S_WAVE}, 4\ns_cbranch_scc1 L_fe_L")
    fe_c(a)
    a("s_branch L_fe_join")
    a("L_fe_L:")
    fe_l(a)
    a("L_fe_join:")
    a("s_waitcnt vmcnt(0)")
    stamp(a, 5)
    stamp_flush(a, 3, 6, "L_fe_stx")
    a("L_fe_end:")
    a("s_endpgm")
    return a.text()

J_ACT = 0
J_P   = 65536
J_Q   = 65536 + 16384
def joint_l(a):
    a(f"s_cmp_eq_u32 s{S_UNS}, 0\ns_cselect_b32 s{S_T0}, {WS_QE}, {WS_QR}") if False else None
    a(f"s_mov_b32 s{S_T0}, {WS_QE}\ns_cmp_eq_u32 s{S_UNS}, 0\ns_cselect_b32 s{S_T0}, s{S_T0}, {WS_QR}")
    a(f"s_lshl_b32 s{S_T0+1}, s{S_B}, 14\ns_add_u32 s{S_T0}, s{S_T0}, s{S_T0+1}")
    a(f"s_lshl_b32 s{S_T0+1}, s{S_LW}, 12\ns_add_u32 s{S_T0}, s{S_T0}, s{S_T0+1}")
    a(f"s_mul_i32 s{S_T0+1}, s{S_LW}, {2*2064}")
    a("v_lshlrev_b32 v4, 4, v0")
    for k in range(4):
        a(f"s_add_u32 m0, s{S_T0+1}, {J_Q + (k>>1)*2064 + (k&1)*1024}")
        a("s_nop 0")
        a(f"buffer_load_dwordx4 v4, s[{SRD_WS}:{SRD_WS+3}], s{S_T0} offen {LD_G} lds")
        a(f"s_add_u32 s{S_T0}, s{S_T0}, 1024")
    a(f"""
    v_lshrrev_b32 v2, 3, v0
    v_and_b32 v3, 7, v0
    v_and_b32 v5, 6, v2
    v_xor_b32 v3, v3, v5
    v_lshlrev_b32 v3, 4, v3
    v_lshl_add_u32 v5, v2, 11, v3
    s_lshl_b32 s{S_T0}, s{S_X}, 19
    s_lshl_b32 s{S_T0+1}, s{S_Q}, 14
    s_add_u32 s{S_T0}, s{S_T0}, s{S_T0+1}
    s_add_u32 s{S_T0}, s{S_T0}, {WS_P}
    s_lshl_b32 s{S_T0+1}, s{S_LW}, 7
    s_add_u32 s{S_T0}, s{S_T0}, s{S_T0+1}
    s_lshl_b32 s{S_T0+1}, s{S_LW}, 10
    """)
    JOINT_P_ISSUE(a)
    a("s_waitcnt vmcnt(0)")
    a("s_barrier")
    a(f"v_and_b32 v6, 7, v0\nv_mul_u32_u24 v6, 2064, v6\ns_lshl_b32 s{S_T0}, s{S_LW}, 5\nv_add_u32 v6, s{S_T0}, v6\nv_add_u32 v6, {J_Q}, v6")
    for sidx in range(16):
        for hh in range(2):
            r = 128 + sidx*8 + hh*4
            a(f"ds_read_b128 v[{r}:{r+3}], v6 offset:{sidx*128 + hh*16}")
        if sidx % 4 == 3: a("s_waitcnt lgkmcnt(0)")
    a(f"""
    v_lshrrev_b32 v2, 3, v0
    v_and_b32 v5, 6, v2
    s_lshl_b32 s{S_T0}, s{S_LW}, 1
    v_xor_b32 v5, s{S_T0}, v5
    v_lshlrev_b32 v5, 4, v5
    v_lshl_add_u32 v7, v2, 7, v5
    v_add_u32 v7, {J_P}, v7
    s_lshl_b32 s{S_T0}, s{S_LW}, 10
    v_lshlrev_b32 v8, 4, v0
    v_add_u32 v8, s{S_T0}, v8
    v_mov_b32 v10, 1.0
    v_mov_b32 v11, 1.0
    v_mov_b32 v12, -2.0
    v_mov_b32 v13, -2.0
    """)
    def prd(sidx):
        r = 16 + (sidx & 1) * 8
        return [f"ds_read_b128 v[{r}:{r+3}], v7 offset:{sidx*1024}", f"ds_read_b128 v[{r+4}:{r+7}], v7 offset:{sidx*1024 + 16}"]
    def body(safe):
        for r in prd(0): a(r)
        for sidx in range(16):
            if sidx + 1 < 16:
                for r in prd(sidx+1): a(r)
                a("s_waitcnt lgkmcnt(2)")
            else:
                a("s_waitcnt lgkmcnt(0)")
            p = 16 + (sidx & 1) * 8
            q = 128 + sidx * 8
            t = 32
            if safe:
                for e in range(0, 8, 2): a(f"v_pk_fma_f32 v[{t+e}:{t+e+1}], v[{p+e}:{p+e+1}], v[{q+e}:{q+e+1}], v[10:11]")
            else:
                for e in range(0, 8, 2): a(f"v_pk_add_f32 v[{t+e}:{t+e+1}], v[{p+e}:{p+e+1}], v[{q+e}:{q+e+1}]")
                for e in range(8): a(f"v_exp_f32 v{t+e}, v{t+e}")
                for e in range(0, 8, 2): a(f"v_pk_add_f32 v[{t+e}:{t+e+1}], v[{t+e}:{t+e+1}], v[10:11]")
            for e in range(8): a(f"v_rcp_f32 v{t+e}, v{t+e}")
            for e in range(0, 8, 2): a(f"v_pk_fma_f32 v[{t+e}:{t+e+1}], v[{t+e}:{t+e+1}], v[12:13], v[10:11]")
            for e in range(0, 8, 2): a(f"v_cvt_pk_bf16_f32 v{40+e//2}, v{t+e}, v{t+e+1}")
            a(f"ds_write_b128 v8, v[40:43] offset:{J_ACT + sidx*4096}")
            if sidx >= 1:
                a("s_waitcnt lgkmcnt(0)")
                a("s_barrier")
    a(f"s_cmp_eq_u32 s{S_UNS}, 0\ns_cbranch_scc0 L_j_unsafe")
    body(True)
    a("s_branch L_j_ldone")
    a("L_j_unsafe:")
    body(False)
    a("L_j_ldone:")

def JOINT_P_ISSUE(a):
    for k in range(4):
        a(f"s_add_u32 m0, s{S_T0+1}, {J_P + k*4096}")
        a("s_nop 0")
        a(f"buffer_load_dwordx4 v5, s[{SRD_WS}:{SRD_WS+3}], s{S_T0} offen {LD_L} lds")
        a(f"s_add_u32 s{S_T0}, s{S_T0}, 512")

J_ACC = [0, 64]
def joint_c(a):
    ACC = [64, 128]; WR = 192; AF = 16
    a(f"s_lshl_b32 s{S_T0+4}, s{S_LW}, 17\ns_add_u32 s{S_T0+4}, s{S_T0+4}, {WS_WO}")
    a("v_lshlrev_b32 v4, 4, v0")
    def wld(n):
        r = WR + (n % 3) * 16
        out = [f"buffer_load_dwordx4 v[{r+4*b}:{r+4*b+3}], v4, s[{SRD_WS}:{SRD_WS+3}], s{S_T0+4} offen offset:{b*1024} {LD_G}" for b in range(4)]
        out.append(f"s_add_u32 s{S_T0+4}, s{S_T0+4}, 4096")
        return out
    for n in range(2):
        for r in wld(n): a(r)
    a("v_and_b32 v2, 15, v0\nv_lshrrev_b32 v3, 4, v0\nv_lshlrev_b32 v5, 10, v3\nv_lshl_add_u32 v5, v2, 4, v5")
    a(f"""
    s_mul_i32 s{S_T0}, s{S_B}, 1000
    s_mul_i32 s{S_T0+1}, s{S_QQ}, 250
    s_add_u32 s{S_T0}, s{S_T0}, s{S_T0+1}
    s_lshl_b32 s{S_T0+1}, s{S_Q}, 3
    s_add_u32 s{S_T0}, s{S_T0}, s{S_T0+1}
    s_lshl_b32 s{S_T0}, s{S_T0}, 13
    s_lshl_b32 s{S_T0+2}, s{S_LW}, 8
    s_add_u32 s{S_T0}, s{S_T0}, s{S_T0+2}
    v_lshlrev_b32 v6, 12, v3
    v_lshl_add_u32 v6, v2, 3, v6
    v_add_u32 v6, s{S_T0}, v6
    s_sub_u32 s{S_T0+3}, 250, s{S_T0+1}
    s_lshl_b32 s{S_T0+3}, s{S_T0+3}, 3
    """)
    stamp(a, 1)
    a("s_barrier")
    a("s_barrier")
    stamp(a, 2)
    def ard(sidx):
        r = AF + (sidx & 1) * 16
        return [f"ds_read_b128 v[{r+4*rb}:{r+4*rb+3}], v5 offset:{J_ACT + sidx*4096 + rb*256}" for rb in range(4)]
    def epi(p):
        acc = ACC[p]; out = []
        for rb in range(4):
            for r in range(4):
                tmp = 48 + 2 * ((rb*4 + r) & 3)
                regs = [acc + (rb*4 + b)*4 + r for b in range(4)]
                out.append(f"v_cvt_pk_bf16_f32 v{tmp}, v{regs[0]}, v{regs[1]}")
                out.append(f"v_cvt_pk_bf16_f32 v{tmp+1}, v{regs[2]}, v{regs[3]}")
                out.append(f"buffer_store_dwordx2 v[{tmp}:{tmp+1}], v{8+rb}, s[{SRD_OUT}:{SRD_OUT+3}], 0 offen offset:{r*1024 + p*128} {SC_OUT}")
        return out
    for rb in range(4):
        a(f"v_add_u32 v{8+rb}, {rb*16384}, v6")
        a(f"s_cmp_gt_u32 s{S_T0+3}, {rb*16}")
        a(f"s_cselect_b32 s{S_T0+2}, 0, {hex(OOB)}")
        a(f"v_or_b32 v{8+rb}, s{S_T0+2}, v{8+rb}")
    for r in ard(0): a(r)
    vm = []
    for n in range(2): vm += [("W", n)] * 4
    pend = []
    for n in range(32):
        p, sidx = n >> 4, n & 15
        acc = ACC[p]
        others = []
        if n + 2 < 32:
            ld = wld(n + 2)
        else:
            ld = []
        nxt = ard((sidx + 1) & 15) if n + 1 < 32 else []
        last = max(i for i, t in enumerate(vm) if t == ("W", n))
        a(f"s_waitcnt vmcnt({len(vm) - 1 - last}) lgkmcnt(0)")
        if p == 0 and 1 <= sidx + 1 <= 15 and sidx + 1 >= 2:
            a("s_barrier")
        others = nxt + ld
        if p == 1 and pend:
            k = min(len(pend), 6)
            others += pend[:k]; pend = pend[k:]
        mf = []
        w = WR + (n % 3) * 16
        af = AF + (sidx & 1) * 16
        for rb in range(4):
            for b in range(4):
                d = acc + (rb*4 + b) * 4
                c = "0" if sidx == 0 else f"v[{d}:{d+3}]"
                mf.append(f"v_mfma_f32_16x16x32_bf16 v[{d}:{d+3}], v[{af+4*rb}:{af+4*rb+3}], v[{w+4*b}:{w+4*b+3}], {c}")
        interleave(a, mf, others)
        for o in others:
            if o.startswith("buffer_load"): vm.append(("W", n + 2))
            elif o.startswith("buffer_store"): vm.append(("S", 0))
        if n == 15:
            pend = ["s_nop 7"] + epi(0)
    assert not pend
    a("s_nop 7\ns_nop 7")
    for o in epi(1): a(o)
SC_OUT = ""

def emit_joint_kernel(name):
    a = Asm()
    kernel_begin(a, name)
    a(f"s_cmp_ge_u32 s{S_WG}, 256\ns_cbranch_scc1 L_j_end")
    stamp(a, 0)
    load_ptrs(a)
    ids(a)
    a("s_waitcnt lgkmcnt(0)")
    mk_srd(a, SRD_WS, S_PWS, 0x10000000)
    mk_srd(a, SRD_OUT, S_POUT, 16384000)
    a(f"s_cmp_ge_u32 s{S_WAVE}, 4\ns_cbranch_scc1 L_j_L")
    joint_c(a)
    stamp(a, 3)
    a("s_branch L_j_join")
    a("L_j_L:")
    load_unsafe(a, "L_j_u")
    joint_l(a)
    stamp(a, 3)
    a("L_j_join:")
    a("s_waitcnt vmcnt(0)")
    stamp(a, 5)
    stamp_flush(a, 4, 6, "L_j_stx")
    a("L_j_end:")
    a("s_endpgm")
    return a.text()

if __name__ == "__main__":
    if "--stamp" in sys.argv:
        STAMP = True
    for arg in sys.argv:
        if arg.startswith("--x="): EXP |= set(arg[4:].split(","))
    if "--cyc" in sys.argv:
        CYC = True
    if "--hot" in sys.argv:
        HOT = True
    t0 = emit_prep_kernel("prep_kernel")
    t1, c1 = emit_conv_kernel(1, "conv1_kernel")
    t2, c2 = emit_conv_kernel(2, "conv2_kernel")
    t3 = emit_fe_kernel("fe_kernel")
    t4 = emit_joint_kernel("joint_kernel")
    names = ["prep_kernel", "conv1_kernel", "conv2_kernel", "fe_kernel", "joint_kernel"]
    txt = file_text([(n, (256,1,1), (512,1,1), 160*1024) for n in names],
                    t0 + t1 + t2 + t3 + t4, [kernel_desc(n, 256, 102) for n in names])
    open(sys.argv[1] if len(sys.argv) > 1 else "v1.s", "w").write(txt)
```

```python
import sys
from asmlib import *
import gen as G
from gen import (f2h, mk_srd, load_ptrs, ids, Conv, swz_of, xfrag_read, wfrag_reads, group_reads, group_mfmas, interleave,
                 gelu_consts, gelu_block, LSched, C2LOG2E, OOB, SWZ_TBL,
                 WS_H, WS_F, WS_P, WS_WO, WS_WF, WS_QE, WS_QR,
                 S_WG, SRD_X, SRD_W, SRD_WS, SRD_OUT, SRD_T, S_PX, S_PW1, S_PW2, S_PG, S_PWF, S_PWG, S_PWO, S_POUT, S_PDBG, S_PWS,
                 S_X, S_Q, S_B, S_QQ, S_M, S_N, S_WAVE, S_LW, S_T0, S_CNT, S_GRP, S_UNS,
                 V_ACC, V_E0, V_E1, V_O, V_W, V_XA0, V_XA1, V_WA0, V_WA1, V_XB, V_WB0, V_WB1, S_SLOTA, S_SLOTW,
                 V_LA, V_LWV, S_OFA, S_OFW, S_LSA, S_LSW)

WS_NONCE = 0x0F30000
WS_G0    = 0x0F31000
WS_F1    = 0x0F32000
WS_F2    = 0x0F33000
WS_F3    = 0x0F34000
WS_RL    = 0x0F35000
WS_GE    = 0x0F36000
WS_STAMP = 0x1000000
S_TAG, S_FAST = 86, 87
MISC = 163584
INBOX = MISC + 64
SPIN_MAX = 40000

OPT = dict(stamp=False, cyc=False, xpf="nt", xld="nt", scout="sc1 nt", scl_fast="", force_slow=False)
S_ST = 88
def stamp(a, i):
    if OPT["stamp"]:
        a(f"{'s_memtime' if OPT['cyc'] else 's_memrealtime'} s[74:75]")
        a("s_waitcnt lgkmcnt(0)")
        a(f"s_mov_b32 s{S_ST+i}, s74")
def stamp_flush(a, n, lab):
    if not OPT["stamp"]: return
    a(f"s_and_b32 s{S_T0}, s{S_WAVE}, 3\ns_cmp_eq_u32 s{S_T0}, 0\ns_cbranch_scc0 {lab}")
    a(f"s_lshr_b32 s{S_T0}, s{S_WAVE}, 2\ns_lshl_b32 s{S_T0}, s{S_T0}, 6")
    a(f"s_lshl_b32 s{S_T0+1}, s{S_WG}, 7\ns_add_u32 s{S_T0}, s{S_T0}, s{S_T0+1}")
    a(f"s_add_u32 s{S_T0}, s{S_T0}, {WS_STAMP}")
    for i in range(n):
        a(f"v_mov_b32 v2, s{S_ST+i}\nv_mov_b32 v3, s{S_T0}")
        a(f"buffer_store_dword v2, v3, s[{SRD_WS}:{SRD_WS+3}], 0 offen offset:{4*i}")
    a("s_waitcnt vmcnt(0)")
    a(f"{lab}:")

LABN = [0]
def lab(p="L"):
    LABN[0] += 1
    return f"{p}_{LABN[0]}"

WSR = f"s[{SRD_WS}:{SRD_WS+3}]"

def poll(a, vaddr, vtmp, width=1):
    l0, l1 = lab("Lp"), lab("Lp")
    a(f"s_mov_b32 s{S_T0+16}, 0")
    a(f"{l0}:")
    if width == 1: a(f"buffer_load_dword v{vtmp}, v{vaddr}, {WSR}, 0 offen sc1")
    else: a(f"buffer_load_dwordx2 v[{vtmp}:{vtmp+1}], v{vaddr}, {WSR}, 0 offen sc1")
    a(f"s_add_u32 s{S_T0+16}, s{S_T0+16}, 1")
    a(f"s_cmp_ge_u32 s{S_T0+16}, {SPIN_MAX}")
    a(f"s_cbranch_scc1 {l1}")
    a("s_waitcnt vmcnt(0)")
    a(f"v_cmp_ne_u32 vcc, s{S_TAG}, v{vtmp}")
    a(f"s_cbranch_vccnz {l0}")
    a(f"{l1}:")
    a("s_waitcnt vmcnt(0)")

def flag_store(a, off_sgpr, fast_variant=True):
    a(f"v_mov_b32 v2, s{S_TAG}\nv_mov_b32 v3, s{off_sgpr}")
    a(f"s_mov_b64 s[{S_T0+14}:{S_T0+15}], exec\ns_mov_b64 exec, 1")
    if fast_variant:
        l0, l1 = lab("Lf"), lab("Lf")
        a(f"s_cmp_eq_u32 s{S_FAST}, 0\ns_cbranch_scc1 {l0}")
        a(f"buffer_store_dword v2, v3, {WSR}, 0 offen")
        a(f"s_branch {l1}\n{l0}:")
        a(f"buffer_store_dword v2, v3, {WSR}, 0 offen sc1")
        a(f"{l1}:")
    else:
        a(f"buffer_store_dword v2, v3, {WSR}, 0 offen sc1")
    a(f"s_mov_b64 exec, s[{S_T0+14}:{S_T0+15}]")

def local_stores(a, instrs):
    l0, l1 = lab("Ls"), lab("Ls")
    a(f"s_cmp_eq_u32 s{S_FAST}, 0\ns_cbranch_scc1 {l0}")
    for i in instrs: a(i.replace("{SC}", OPT["scl_fast"]))
    a(f"s_branch {l1}\n{l0}:")
    for i in instrs: a(i.replace("{SC}", "sc1"))
    a(f"{l1}:")

def pair_sync(a, event, partner_xor):
    l0, l1 = lab("Ly"), lab("Ly")
    a("s_waitcnt lgkmcnt(0)")
    a(f"s_xor_b32 s{S_T0+12}, s{S_LW}, {partner_xor}")
    a(f"s_lshl_b32 s{S_T0+12}, s{S_T0+12}, 2\ns_add_u32 s{S_T0+12}, s{S_T0+12}, {INBOX + event*16}")
    a(f"s_lshl_b32 s{S_T0+13}, s{S_LW}, 2\ns_add_u32 s{S_T0+13}, s{S_T0+13}, {INBOX + event*16}")
    a(f"v_mov_b32 v2, s{S_T0+12}\nv_mov_b32 v3, 1\nds_write_b32 v2, v3")
    a(f"v_mov_b32 v2, s{S_T0+13}\ns_mov_b32 s{S_T0+16}, 0")
    a(f"{l0}:")
    a("ds_read_b32 v3, v2")
    a(f"s_add_u32 s{S_T0+16}, s{S_T0+16}, 1\ns_cmp_ge_u32 s{S_T0+16}, {SPIN_MAX*8}\ns_cbranch_scc1 {l1}")
    a("s_waitcnt lgkmcnt(0)")
    a("v_cmp_eq_u32 vcc, 0, v3")
    a(f"s_cbranch_vccnz {l0}")
    a(f"{l1}:")
    a("s_waitcnt lgkmcnt(0)")

def conv_c_loop(a, c, st0):
    t = c.tag
    stamp(a, st0)
    a("s_barrier")
    stamp(a, st0 + 1)
    for r in group_reads(c, V_E0, 0, 0): a(r)
    for r in group_reads(c, V_E0, 1, 1): a(r)
    a(f"s_mov_b32 s{S_CNT}, 0")
    a(f"L_{t}_cloop:")
    VN = [18, 19, 20, 21]
    for par in range(2):
        es, en = (V_E0, V_E1) if par == 0 else (V_E1, V_E0)
        a("s_waitcnt lgkmcnt(8)")
        interleave(a, group_mfmas(es, 0, 0), group_reads(c, es, 2, 2))
        a("s_waitcnt lgkmcnt(5)")
        sc = []
        if c.idx == 1:
            sc += [f"s_add_u32 s{S_SLOTW}, s{S_SLOTW}, {c.WB}", f"s_cmp_ge_u32 s{S_SLOTW}, {c.RW * c.WB}", f"s_cselect_b32 s{S_SLOTW}, 0, s{S_SLOTW}"]
            if par == 1: sc += [f"s_xor_b32 s{S_SLOTA}, s{S_SLOTA}, {c.AB}"]
            xb = V_XB + (2 if par == 0 else 0)
        else:
            sc += [f"s_add_u32 s{S_SLOTW}, s{S_SLOTW}, {2 * c.WB}", f"s_add_u32 s{S_T0}, s{S_SLOTW}, s{S_GRP}",
                   f"s_cmp_ge_u32 s{S_T0}, {c.RW * c.WB}", f"s_cselect_b32 s{S_T0}, {c.RW * c.WB}, 0", f"s_sub_u32 s{S_SLOTW}, s{S_SLOTW}, s{S_T0}",
                   f"s_add_u32 s{S_SLOTA}, s{S_SLOTA}, {2 * c.AB}", f"s_cmp_ge_u32 s{S_SLOTA}, {c.RA * c.AB}",
                   f"s_cselect_b32 s{S_T0}, {c.RA * c.AB}, 0", f"s_sub_u32 s{S_SLOTA}, s{S_SLOTA}, s{S_T0}"]
            xb = V_XB
        rd = group_reads(c, es, 3, 3)
        mf = group_mfmas(es, 1, 1)
        k = 0
        for i, m in enumerate(mf):
            a(m)
            if i < len(rd): a(rd[i])
            else:
                while k < len(sc) and k < 3 * (i - len(rd) + 1): a(sc[k]); k += 1
        while k < len(sc): a(sc[k]); k += 1
        a("s_waitcnt lgkmcnt(5)")
        rd = group_reads(c, es, 4, 4)
        nx = [f"v_add_u32 v{VN[0]}, s{S_SLOTW}, v{V_WB0}", f"v_add_u32 v{VN[1]}, s{S_SLOTA}, v{xb}",
              f"v_add_u32 v{VN[2]}, s{S_SLOTW}, v{V_WB1}", f"v_add_u32 v{VN[3]}, s{S_SLOTA}, v{xb+1}"]
        interleave(a, group_mfmas(es, 2, 2), rd + nx[:3])
        a(nx[3])
        a("s_waitcnt lgkmcnt(0)")
        a("s_barrier")
        def ren(r):
            return (r.replace(f", v{V_WA0} ", f", v{VN[0]} ").replace(f", v{V_XA0} ", f", v{VN[1]} ")
                     .replace(f", v{V_WA1} ", f", v{VN[2]} ").replace(f", v{V_XA1} ", f", v{VN[3]} "))
        mv = [f"v_mov_b32 v{V_WA0}, v{VN[0]}", f"v_mov_b32 v{V_XA0}, v{VN[1]}", f"v_mov_b32 v{V_WA1}, v{VN[2]}", f"v_mov_b32 v{V_XA1}, v{VN[3]}"]
        interleave(a, group_mfmas(es, 3, 3), [ren(r) for r in group_reads(c, en, 0, 0)])
        interleave(a, group_mfmas(es, 4, 4), [ren(r) for r in group_reads(c, en, 1, 1)])
        for m in mv: a(m)
    a(f"s_add_u32 s{S_CNT}, s{S_CNT}, 2")
    a(f"s_cmp_lt_u32 s{S_CNT}, {c.NST}")
    a(f"s_cbranch_scc1 L_{t}_cloop")
    a("s_waitcnt lgkmcnt(0)")
    stamp(a, st0 + 2)

def tbuf_write_addr(a, base, wm_shift):
    a(f"""
    v_and_b32 v2, 15, v0
    v_lshrrev_b32 v3, 4, v0
    s_and_b32 s{S_T0}, s{S_LW}, 1
    s_lshl_b32 s{S_T0}, s{S_T0}, 3
    v_or_b32 v4, s{S_T0}, v3
    v_and_b32 v5, 14, v2
    v_xor_b32 v4, v4, v5
    v_lshlrev_b32 v4, 3, v4
    v_lshl_add_u32 v16, v2, 9, v4
    """)
    if wm_shift:
        a(f"s_lshr_b32 s{S_T0}, s{S_LW}, 1\ns_lshl_b32 s{S_T0}, s{S_T0}, 13\nv_add_u32 v16, s{S_T0}, v16")
    a("v_xor_b32 v17, 32, v16")
    if base: a(f"v_add_u32 v16, {base}, v16\nv_add_u32 v17, {base}, v17")

def tbuf_store_c(a, base, dlist_sgpr_expr, n, goff_sgpr):
    pass

def conv1_tail_c(a):
    a("s_nop 7")
    tbuf_write_addr(a, 0, True)
    gelu_consts(a, 20)
    for jj in range(4):
        gelu_block(a, V_ACC + jj*8, 8, 64, 20, 72 + jj*4)
    for jj in range(4):
        for nb in range(2):
            r = 72 + jj*4 + nb*2
            a(f"ds_write_b64 v{17 if nb else 16}, v[{r}:{r+1}] offset:{jj*128}")
    pair_sync(a, 0, 1)
    a(f"s_lshl_b32 s{S_T0}, s{S_LW}, 2")
    a(f"s_lshl_b32 s{S_T0+1}, s{S_T0}, 10\nv_lshl_add_u32 v4, v0, 4, s{S_T0+1}")
    for k in range(4): a(f"ds_read_b128 v[{24+4*k}:{27+4*k}], v4 offset:{k*1024}")
    a("v_and_b32 v5, 7, v0\nv_lshrrev_b32 v6, 3, v0\nv_lshlrev_b32 v6, 10, v6")
    for k in range(4):
        a(f"s_and_b32 s{S_T0+2}, s{S_LW}, 1\ns_lshl_b32 s{S_T0+2}, s{S_T0+2}, 2\ns_add_u32 s{S_T0+2}, s{S_T0+2}, {k}")
        a(f"v_xor_b32 v7, s{S_T0+2}, v5\nv_lshl_add_u32 v7, v7, 4, v6\nv_add_u32 v{40+k}, {k*8192}, v7")
    a(f"""
    s_lshl_b32 s{S_T0+8}, s{S_X}, 19
    s_lshl_b32 s{S_T0+9}, s{S_M}, 17
    s_add_u32 s{S_T0+8}, s{S_T0+8}, s{S_T0+9}
    s_lshl_b32 s{S_T0+9}, s{S_N}, 7
    s_add_u32 s{S_T0+8}, s{S_T0+8}, s{S_T0+9}
    s_lshl_b32 s{S_T0+9}, s{S_LW}, 15
    s_add_u32 s{S_T0+8}, s{S_T0+8}, s{S_T0+9}
    s_add_u32 s{S_T0+8}, s{S_T0+8}, {WS_H}
    s_waitcnt lgkmcnt(0)
    """)
    local_stores(a, [f"buffer_store_dwordx4 v[{24+4*k}:{27+4*k}], v{40+k}, {WSR}, s{S_T0+8} offen {{SC}}" for k in range(4)])
    wave_flag(a, WS_F1)

def wave_flag(a, base):
    a(f"s_lshl_b32 s{S_T0+8}, s{S_X}, 9\ns_lshl_b32 s{S_T0+9}, s{S_Q}, 4\ns_add_u32 s{S_T0+8}, s{S_T0+8}, s{S_T0+9}")
    a(f"s_lshl_b32 s{S_T0+9}, s{S_LW}, 2\ns_add_u32 s{S_T0+8}, s{S_T0+8}, s{S_T0+9}\ns_add_u32 s{S_T0+8}, s{S_T0+8}, {base}")
    a("s_waitcnt vmcnt(0)")
    flag_store(a, S_T0+8)

C2_T = 131072
C2_X = C2_T + 8192
def conv2_tail_c(a):
    a("s_nop 7")
    a(f"s_lshl_b32 s{S_T0}, s{S_LW}, 12\ns_add_u32 s{S_T0}, s{S_T0}, {C2_X}\nv_lshl_add_u32 v4, v0, 4, s{S_T0}")
    a(f"s_xor_b32 s{S_T0}, s{S_LW}, 2\ns_lshl_b32 s{S_T0}, s{S_T0}, 12\ns_add_u32 s{S_T0}, s{S_T0}, {C2_X}\nv_lshl_add_u32 v5, v0, 4, s{S_T0}")
    l0, l1 = lab("Lk"), lab("Lk")
    a(f"s_cmp_ge_u32 s{S_LW}, 2\ns_cbranch_scc1 {l0}")
    for q in range(4): a(f"ds_write_b128 v4, v[{V_ACC+16+4*q}:{V_ACC+19+4*q}] offset:{q*1024}")
    a(f"s_branch {l1}\n{l0}:")
    for q in range(4): a(f"ds_write_b128 v4, v[{V_ACC+4*q}:{V_ACC+3+4*q}] offset:{q*1024}")
    a("s_waitcnt lgkmcnt(0)")
    for r in range(16): a(f"v_mov_b32 v{V_ACC+r}, v{V_ACC+16+r}")
    a(f"{l1}:")
    a("v_mov_b32 v6, v5")
    pair_sync(a, 1, 2)
    for q in range(4): a(f"ds_read_b128 v[{64+4*q}:{67+4*q}], v6 offset:{q*1024}")
    tbuf_write_addr(a, C2_T, False)
    gelu_consts(a, 20)
    a(f"s_lshr_b32 s{S_T0}, s{S_LW}, 1\ns_lshl_b32 s{S_T0}, s{S_T0}, 8")
    a(f"v_add_u32 v16, s{S_T0}, v16\nv_add_u32 v17, s{S_T0}, v17")
    a("s_waitcnt lgkmcnt(0)")
    for p in range(0, 16, 2):
        a(f"v_pk_add_f32 v[{V_ACC+p}:{V_ACC+p+1}], v[{V_ACC+p}:{V_ACC+p+1}], v[{64+p}:{64+p+1}]")
    for jj in range(2):
        gelu_block(a, V_ACC + jj*8, 8, 80, 20, 72 + jj*4)
    for jj in range(2):
        for nb in range(2):
            r = 72 + jj*4 + nb*2
            a(f"ds_write_b64 v{17 if nb else 16}, v[{r}:{r+1}] offset:{jj*128}")
    pair_sync(a, 2, 1)
    a(f"""
    v_lshrrev_b32 v2, 4, v0
    s_and_b32 s{S_T0}, s{S_LW}, 1
    s_lshl_b32 s{S_T0}, s{S_T0}, 3
    v_add_u32 v2, s{S_T0}, v2
    v_bfe_u32 v3, v0, 3, 1
    s_lshr_b32 s{S_T0+1}, s{S_LW}, 1
    s_lshl_b32 s{S_T0+1}, s{S_T0+1}, 1
    v_add_u32 v3, s{S_T0+1}, v3
    v_and_b32 v5, 7, v0
    """)
    for k in range(2):
        a(f"v_add_u32 v6, {4*k}, v2\nv_lshl_add_u32 v7, v6, 2, v3")
        a(f"v_lshlrev_b32 v8, 7, v7\nv_lshl_add_u32 v8, v5, 4, v8\nv_add_u32 v8, {C2_T}, v8")
        a(f"ds_read_b128 v[{24+4*k}:{27+4*k}], v8")
        a(f"v_bfe_u32 v9, v6, 1, 3\nv_xor_b32 v9, v9, v5\nv_lshlrev_b32 v9, 4, v9\nv_lshl_add_u32 v{40+k}, v7, 10, v9")
    a(f"""
    s_lshl_b32 s{S_T0+8}, s{S_X}, 18
    s_lshl_b32 s{S_T0+9}, s{S_M}, 16
    s_add_u32 s{S_T0+8}, s{S_T0+8}, s{S_T0+9}
    s_lshl_b32 s{S_T0+9}, s{S_N}, 7
    s_add_u32 s{S_T0+8}, s{S_T0+8}, s{S_T0+9}
    s_add_u32 s{S_T0+8}, s{S_T0+8}, {WS_F}
    s_waitcnt lgkmcnt(0)
    """)
    local_stores(a, [f"buffer_store_dwordx4 v[{24+4*k}:{27+4*k}], v{40+k}, {WSR}, s{S_T0+8} offen {{SC}}" for k in range(2)])
    wave_flag(a, WS_F2)

def read_misc(a, off, sreg):
    a(f"v_mov_b32 v2, {MISC + off}\nds_read_b32 v3, v2\ns_waitcnt lgkmcnt(0)\nv_readfirstlane_b32 s{sreg}, v3")
def write_misc(a, off, sreg):
    a(f"v_mov_b32 v2, {MISC + off}\nv_mov_b32 v3, s{sreg}\nds_write_b32 v2, v3\ns_waitcnt lgkmcnt(0)")

V_DUMMY = 200
def x_prefetch(a):
    d = V_DUMMY
    a(f"""
    v_lshlrev_b32 v4, 4, v0
    s_mul_i32 s{S_T0}, s{S_QQ}, 1000
    s_mul_i32 s{S_T0+1}, s{S_Q}, 33
    s_add_u32 s{S_T0}, s{S_T0}, s{S_T0+1}
    s_lshl_b32 s{S_T0+1}, s{S_LW}, 3
    s_add_u32 s{S_T0}, s{S_T0}, s{S_T0+1}
    s_sub_u32 s{S_T0}, s{S_T0}, 6
    s_lshl_b32 s{S_T0}, s{S_T0}, 10
    v_add_u32 v5, s{S_T0}, v4
    """)
    for k in range(9):
        a(f"buffer_load_dwordx4 v[{d}:{d+3}], v5, s[{SRD_X}:{SRD_X+3}], 0 offen {OPT['xpf']}")
        a(f"v_add_u32 v5, 1024, v5")

FE_W = 0
FE_A = 131072
def fe_c(a):
    a("v_and_b32 v2, 15, v0\nv_lshrrev_b32 v3, 4, v0")
    swz_of(a, 2, 4, S_T0+2)
    a(f"v_xor_b32 v4, v4, v3\nv_lshlrev_b32 v4, 4, v4\nv_lshl_add_u32 v8, v2, 7, v4\nv_add_u32 v8, {FE_A}, v8\nv_xor_b32 v9, 64, v8")
    a(f"s_lshl_b32 s{S_T0}, s{S_LW}, 15\nv_lshl_add_u32 v10, v0, 4, s{S_T0}")
    for r in range(16): a(f"v_mov_b32 v{32+r}, 0")
    def rd(sidx):
        du, h = sidx >> 1, sidx & 1
        reg = 64 + (sidx & 3) * 16
        out = [f"ds_read_b128 v[{reg+8+4*nbl}:{reg+11+4*nbl}], v10 offset:{nbl*16384 + sidx*1024}" for nbl in range(2)]
        out += [f"ds_read_b128 v[{reg+4*tb}:{reg+4*tb+3}], v{8+h} offset:{du*4096 + tb*2048}" for tb in range(2)]
        return out
    for ph in range(4):
        a("s_barrier")
        if ph == 0: stamp(a, 7)
        for sidx in range(4*ph, 4*ph+3):
            for r in rd(sidx): a(r)
        for j, sidx in enumerate(range(4*ph, 4*ph+4)):
            a(f"s_waitcnt lgkmcnt({[8, 8, 4, 0][j]})")
            reg = 64 + (sidx & 3) * 16
            mf = []
            for tb in range(2):
                for nbl in range(2):
                    acc = 32 + (tb*2 + nbl) * 4
                    mf.append(f"v_mfma_f32_16x16x32_bf16 v[{acc}:{acc+3}], v[{reg+8+4*nbl}:{reg+11+4*nbl}], v[{reg+4*tb}:{reg+4*tb+3}], v[{acc}:{acc+3}]")
            interleave(a, mf, rd(4*ph+3) if j == 0 else [])
    a("s_barrier")
    stamp(a, 8)
    a("s_nop 7")
    a(f"s_mov_b32 s{S_T0}, {f2h(C2LOG2E)}")
    for r in range(16): a(f"v_mul_f32 v{32+r}, s{S_T0}, v{32+r}")
    l0 = lab("Lr")
    a(f"s_cmp_eq_u32 s{S_UNS}, 0\ns_cbranch_scc0 {l0}")
    a(f"v_mov_b32 v6, {f2h(126.0)}\nv_mov_b32 v7, {f2h(-126.0)}")
    for r in range(16): a(f"v_med3_f32 v{32+r}, v{32+r}, v7, v6")
    for r in range(16): a(f"v_exp_f32 v{32+r}, v{32+r}")
    a(f"{l0}:")
    a(f"""
    v_lshlrev_b32 v4, 11, v2
    v_lshl_add_u32 v4, v3, 4, v4
    s_lshr_b32 s{S_T0}, s{S_Q}, 2
    s_lshl_b32 s{S_T0}, s{S_T0}, 16
    s_and_b32 s{S_T0+1}, s{S_Q}, 3
    s_lshl_b32 s{S_T0+1}, s{S_T0+1}, 9
    s_add_u32 s{S_T0}, s{S_T0}, s{S_T0+1}
    s_lshl_b32 s{S_T0+1}, s{S_LW}, 7
    s_add_u32 s{S_T0}, s{S_T0}, s{S_T0+1}
    s_lshl_b32 s{S_T0+1}, s{S_X}, 19
    s_add_u32 s{S_T0}, s{S_T0}, s{S_T0+1}
    s_add_u32 s{S_T0+8}, s{S_T0}, {WS_P}
    v_add_u32 v5, 0x8000, v4
    """)
    st = []
    for tb in range(2):
        for nbl in range(2):
            acc = 32 + (tb*2 + nbl) * 4
            st.append(f"buffer_store_dwordx4 v[{acc}:{acc+3}], v{4+tb}, {WSR}, s{S_T0+8} offen offset:{nbl*64} {{SC}}")
    local_stores(a, st)
    wave_flag(a, WS_F3)

def fe_l_wpre(a, sch):
    a(f"s_and_b32 s{S_T0}, s{S_Q}, 3\ns_lshl_b32 s{S_T0}, s{S_T0}, 17\ns_add_u32 s{S_T0}, s{S_T0}, {WS_WF}")
    a(f"s_lshl_b32 s{S_T0+1}, s{S_LW}, 15\ns_add_u32 s{S_T0}, s{S_T0}, s{S_T0+1}")
    a("v_lshlrev_b32 v4, 4, v0")
    for k in range(32):
        a(f"s_add_u32 m0, s{S_T0+1}, {FE_W + k*1024}")
        a("s_nop 0")
        a(f"buffer_load_dwordx4 v4, {WSR}, s{S_T0} offen sc1 lds")
        a(f"s_add_u32 s{S_T0}, s{S_T0}, 1024")
    sch.add("WF", 32)

def fe_l(a, sch):
    a(f"s_lshr_b32 s{S_T0}, s{S_Q}, 3\ns_lshl_b32 s{S_T0}, s{S_T0}, 7\ns_lshl_b32 s{S_T0+1}, s{S_X}, 9\ns_add_u32 s{S_T0}, s{S_T0}, s{S_T0+1}\ns_add_u32 s{S_T0}, s{S_T0}, {WS_F2}")
    a(f"v_and_b32 v6, 31, v0\nv_lshlrev_b32 v6, 2, v6\nv_add_u32 v6, s{S_T0}, v6")
    a(f"v_lshrrev_b32 v2, 3, v0\ns_lshl_b32 s{S_T0}, s{S_LW}, 3\nv_add_u32 v2, s{S_T0}, v2\nv_and_b32 v3, 7, v0")
    swz_of(a, 2, 4, S_T0+2)
    a(f"v_xor_b32 v4, v4, v3\nv_lshlrev_b32 v4, 4, v4\nv_lshl_add_u32 v4, v2, 10, v4")
    poll(a, 6, 7)
    stamp(a, 7)
    a(f"s_lshr_b32 s{S_T0}, s{S_Q}, 2\ns_lshl_b32 s{S_T0}, s{S_T0}, 15\ns_lshl_b32 s{S_T0+1}, s{S_X}, 18\ns_add_u32 s{S_T0}, s{S_T0}, s{S_T0+1}\ns_add_u32 s{S_T0}, s{S_T0}, {WS_F}")
    a(f"s_lshl_b32 s{S_T0+1}, s{S_LW}, 10")
    for du in range(8):
        a(f"s_add_u32 m0, s{S_T0+1}, {FE_A + du*4096}")
        a("s_nop 0")
        a(f"buffer_load_dwordx4 v4, {WSR}, s{S_T0} offen sc1 lds")
        a(f"s_add_u32 s{S_T0}, s{S_T0}, 128")
    for ph in range(4):
        a(f"s_waitcnt vmcnt({6 - 2*ph})")
        a("s_barrier")
    a("s_barrier")

J_ACT = 0
J_P   = 65536
J_Q   = 65536 + 16384
def joint_l(a):
    a(f"s_mov_b32 s{S_T0}, {WS_QE}\ns_cmp_eq_u32 s{S_UNS}, 0\ns_cselect_b32 s{S_T0}, s{S_T0}, {WS_QR}")
    a(f"s_lshl_b32 s{S_T0+1}, s{S_B}, 14\ns_add_u32 s{S_T0}, s{S_T0}, s{S_T0+1}")
    a(f"s_lshl_b32 s{S_T0+1}, s{S_LW}, 8\ns_add_u32 s{S_T0}, s{S_T0}, s{S_T0+1}")
    a(f"s_lshl_b32 s{S_T0+1}, s{S_LW}, 12")
    a("v_lshrrev_b32 v2, 4, v0\nv_and_b32 v3, 15, v0\nv_lshlrev_b32 v3, 4, v3\nv_lshl_add_u32 v4, v2, 10, v3")
    for j in range(4):
        a(f"s_add_u32 m0, s{S_T0+1}, {J_Q + j*1024}")
        a("s_nop 0")
        a(f"buffer_load_dwordx4 v4, {WSR}, s{S_T0} offen sc1 lds")
        a(f"s_add_u32 s{S_T0}, s{S_T0}, 4096")
    a(f"""
    v_lshrrev_b32 v2, 3, v0
    v_and_b32 v3, 7, v0
    v_and_b32 v5, 6, v2
    v_xor_b32 v3, v3, v5
    v_lshlrev_b32 v3, 4, v3
    v_lshl_add_u32 v5, v2, 11, v3
    s_lshr_b32 s{S_T0}, s{S_Q}, 2
    s_lshl_b32 s{S_T0}, s{S_T0}, 6
    s_lshl_b32 s{S_T0+2}, s{S_X}, 9
    s_add_u32 s{S_T0}, s{S_T0}, s{S_T0+2}
    s_add_u32 s{S_T0}, s{S_T0}, {WS_F3}
    v_and_b32 v6, 15, v0
    v_lshlrev_b32 v6, 2, v6
    v_add_u32 v9, s{S_T0}, v6
    s_waitcnt vmcnt(0)
    """)
    a(f"v_and_b32 v6, 7, v0\nv_lshlrev_b32 v6, 4, v6\ns_lshl_b32 s{S_T0}, s{S_LW}, 12\ns_add_u32 s{S_T0}, s{S_T0}, {J_Q}\nv_add_u32 v6, s{S_T0}, v6")
    for sidx in range(16):
        for hh in range(2):
            r = 128 + sidx*8 + hh*4
            a(f"ds_read_b128 v[{r}:{r+3}], v6 offset:{sidx*256 + hh*128}")
        if sidx % 4 == 3: a("s_waitcnt lgkmcnt(0)")
    poll(a, 9, 14)
    stamp(a, 9)
    a(f"""
    s_lshl_b32 s{S_T0}, s{S_X}, 19
    s_lshl_b32 s{S_T0+1}, s{S_Q}, 14
    s_add_u32 s{S_T0}, s{S_T0}, s{S_T0+1}
    s_add_u32 s{S_T0}, s{S_T0}, {WS_P}
    s_lshl_b32 s{S_T0+1}, s{S_LW}, 7
    s_add_u32 s{S_T0}, s{S_T0}, s{S_T0+1}
    s_lshl_b32 s{S_T0+1}, s{S_LW}, 10
    """)
    for k in range(4):
        a(f"s_add_u32 m0, s{S_T0+1}, {J_P + k*4096}")
        a("s_nop 0")
        a(f"buffer_load_dwordx4 v5, {WSR}, s{S_T0} offen sc1 lds")
        a(f"s_add_u32 s{S_T0}, s{S_T0}, 512")
    a(f"""
    v_lshrrev_b32 v2, 3, v0
    v_and_b32 v5, 6, v2
    s_lshl_b32 s{S_T0}, s{S_LW}, 1
    v_xor_b32 v5, s{S_T0}, v5
    v_lshlrev_b32 v5, 4, v5
    v_lshl_add_u32 v7, v2, 7, v5
    v_add_u32 v7, {J_P}, v7
    s_lshl_b32 s{S_T0}, s{S_LW}, 10
    v_lshlrev_b32 v8, 4, v0
    v_add_u32 v8, s{S_T0}, v8
    v_mov_b32 v10, 1.0
    v_mov_b32 v11, 1.0
    v_mov_b32 v12, -2.0
    v_mov_b32 v13, -2.0
    s_waitcnt vmcnt(0)
    s_barrier
    """)
    def prd(sidx):
        r = 16 + (sidx & 1) * 8
        return [f"ds_read_b128 v[{r}:{r+3}], v7 offset:{sidx*1024}", f"ds_read_b128 v[{r+4}:{r+7}], v7 offset:{sidx*1024 + 16}"]
    def body(safe):
        for r in prd(0): a(r)
        for sidx in range(16):
            if sidx + 1 < 16:
                for r in prd(sidx+1): a(r)
                a("s_waitcnt lgkmcnt(2)")
            else:
                a("s_waitcnt lgkmcnt(0)")
            p = 16 + (sidx & 1) * 8
            q = 128 + sidx * 8
            t = 32
            if safe:
                for e in range(0, 8, 2): a(f"v_pk_fma_f32 v[{t+e}:{t+e+1}], v[{p+e}:{p+e+1}], v[{q+e}:{q+e+1}], v[10:11]")
            else:
                for e in range(0, 8, 2): a(f"v_pk_add_f32 v[{t+e}:{t+e+1}], v[{p+e}:{p+e+1}], v[{q+e}:{q+e+1}]")
                for e in range(8): a(f"v_exp_f32 v{t+e}, v{t+e}")
                for e in range(0, 8, 2): a(f"v_pk_add_f32 v[{t+e}:{t+e+1}], v[{t+e}:{t+e+1}], v[10:11]")
            for e in range(8): a(f"v_rcp_f32 v{t+e}, v{t+e}")
            for e in range(0, 8, 2): a(f"v_pk_fma_f32 v[{t+e}:{t+e+1}], v[{t+e}:{t+e+1}], v[12:13], v[10:11]")
            for e in range(0, 8, 2): a(f"v_cvt_pk_bf16_f32 v{40+e//2}, v{t+e}, v{t+e+1}")
            a(f"ds_write_b128 v8, v[40:43] offset:{J_ACT + sidx*4096}")
            if sidx >= 1:
                a("s_waitcnt lgkmcnt(0)")
                a("s_barrier")
    l0, l1 = lab("Lu"), lab("Lu")
    a(f"s_cmp_eq_u32 s{S_UNS}, 0\ns_cbranch_scc0 {l0}")
    body(True)
    a(f"s_branch {l1}\n{l0}:")
    body(False)
    a(f"{l1}:")

def joint_c(a):
    ACC = [64, 128]; WR = 192; AF = 16
    a(f"s_lshl_b32 s{S_T0+4}, s{S_LW}, 17\ns_add_u32 s{S_T0+4}, s{S_T0+4}, {WS_WO}")
    a("v_lshlrev_b32 v4, 4, v0")
    def wld(n):
        r = WR + (n % 3) * 16
        out = [f"buffer_load_dwordx4 v[{r+4*b}:{r+4*b+3}], v4, {WSR}, s{S_T0+4} offen offset:{b*1024} sc1" for b in range(4)]
        out.append(f"s_add_u32 s{S_T0+4}, s{S_T0+4}, 4096")
        return out
    for n in range(2):
        for r in wld(n): a(r)
    a("v_and_b32 v2, 15, v0\nv_lshrrev_b32 v3, 4, v0\nv_lshlrev_b32 v5, 10, v3\nv_lshl_add_u32 v5, v2, 4, v5")
    a(f"""
    s_mul_i32 s{S_T0}, s{S_B}, 1000
    s_mul_i32 s{S_T0+1}, s{S_QQ}, 250
    s_add_u32 s{S_T0}, s{S_T0}, s{S_T0+1}
    s_lshl_b32 s{S_T0+1}, s{S_Q}, 3
    s_add_u32 s{S_T0}, s{S_T0}, s{S_T0+1}
    s_lshl_b32 s{S_T0}, s{S_T0}, 13
    s_lshl_b32 s{S_T0+2}, s{S_LW}, 8
    s_add_u32 s{S_T0}, s{S_T0}, s{S_T0+2}
    v_lshlrev_b32 v6, 12, v3
    v_lshl_add_u32 v6, v2, 3, v6
    v_add_u32 v6, s{S_T0}, v6
    s_sub_u32 s{S_T0+3}, 250, s{S_T0+1}
    s_lshl_b32 s{S_T0+3}, s{S_T0+3}, 3
    """)
    for rb in range(4):
        a(f"v_add_u32 v{8+rb}, {rb*16384}, v6")
        a(f"s_cmp_gt_u32 s{S_T0+3}, {rb*16}")
        a(f"s_cselect_b32 s{S_T0+2}, 0, {hex(OOB)}")
        a(f"v_or_b32 v{8+rb}, s{S_T0+2}, v{8+rb}")
    a("s_barrier")
    a("s_barrier")
    stamp(a, 10)
    def ard(sidx):
        r = AF + (sidx & 1) * 16
        return [f"ds_read_b128 v[{r+4*rb}:{r+4*rb+3}], v5 offset:{J_ACT + sidx*4096 + rb*256}" for rb in range(4)]
    def epi(p):
        acc = ACC[p]; out = []
        for rb in range(4):
            for r in range(4):
                tmp = 48 + 2 * ((rb*4 + r) & 3)
                regs = [acc + (rb*4 + b)*4 + r for b in range(4)]
                out.append(f"v_cvt_pk_bf16_f32 v{tmp}, v{regs[0]}, v{regs[1]}")
                out.append(f"v_cvt_pk_bf16_f32 v{tmp+1}, v{regs[2]}, v{regs[3]}")
                out.append(f"buffer_store_dwordx2 v[{tmp}:{tmp+1}], v{8+rb}, s[{SRD_OUT}:{SRD_OUT+3}], 0 offen offset:{r*1024 + p*128} {OPT['scout']}")
        return out
    for r in ard(0): a(r)
    vm = []
    for n in range(2): vm += [("W", n)] * 4
    pend = []
    for n in range(32):
        p, sidx = n >> 4, n & 15
        acc = ACC[p]
        ld = wld(n + 2) if n + 2 < 32 else []
        nxt = ard((sidx + 1) & 15) if n + 1 < 32 else []
        last = max(i for i, t in enumerate(vm) if t == ("W", n))
        a(f"s_waitcnt vmcnt({len(vm) - 1 - last}) lgkmcnt(0)")
        if p == 0 and 2 <= sidx + 1 <= 15:
            a("s_barrier")
        others = nxt + ld
        if p == 1 and pend:
            k = min(len(pend), 6)
            others += pend[:k]; pend = pend[k:]
        mf = []
        w = WR + (n % 3) * 16
        af = AF + (sidx & 1) * 16
        for rb in range(4):
            for b in range(4):
                d = acc + (rb*4 + b) * 4
                c = "0" if sidx == 0 else f"v[{d}:{d+3}]"
                mf.append(f"v_mfma_f32_16x16x32_bf16 v[{d}:{d+3}], v[{af+4*rb}:{af+4*rb+3}], v[{w+4*b}:{w+4*b+3}], {c}")
        interleave(a, mf, others)
        for o in others:
            if o.startswith("buffer_load"): vm.append(("W", n + 2))
            elif o.startswith("buffer_store"): vm.append(("S", 0))
        if n == 15:
            pend = ["s_nop 7"] + epi(0)
    assert not pend
    stamp(a, 11)
    a("s_nop 7\ns_nop 7")
    for o in epi(1): a(o)

def relayout_loads(a):
    U = S_T0 + 8
    a(f"s_mov_b32 s{U}, s{S_WG}")
    a(f"s_lshr_b32 s{U+1}, s{U}, 2\ns_and_b32 s{U+1}, s{U+1}, 15\ns_and_b32 s{U+2}, s{U}, 3")
    a(f"s_cmp_ge_u32 s{U}, 64")
    a(f"s_cselect_b32 s{SRD_T}, s{S_PWF}, s{S_PWO}")
    a(f"s_cselect_b32 s{SRD_T+1}, s{S_PWF+1}, s{S_PWO+1}")
    a(f"s_and_b32 s{SRD_T+1}, s{SRD_T+1}, 0xffff")
    a(f"s_mov_b32 s{SRD_T+2}, 524288\ns_mov_b32 s{SRD_T+3}, 0x20000")
    a(f"""
    v_and_b32 v2, 15, v0
    v_lshrrev_b32 v3, 4, v0
    v_lshlrev_b32 v4, 13, v3
    v_lshl_add_u32 v4, v2, 4, v4
    s_lshl_b32 s{U+3}, s{U+1}, 15
    s_lshl_b32 s{U+4}, s{U+2}, 8
    s_add_u32 s{U+3}, s{U+3}, s{U+4}
    v_add_u32 v4, s{U+3}, v4
    v_add_u32 v5, 4096, v4
    """)
    for e in range(8):
        a(f"buffer_load_dwordx4 v[{32+4*e}:{35+4*e}], v{4 + (e>>2)}, s[{SRD_T}:{SRD_T+3}], 0 offen offset:{(e&3)*1024}")

def relayout_finish(a):
    U = S_T0 + 8
    a(f"s_mov_b32 s{U}, s{S_WG}")
    a(f"s_lshr_b32 s{U+1}, s{U}, 2\ns_and_b32 s{U+1}, s{U+1}, 15\ns_and_b32 s{U+2}, s{U}, 3")
    a("v_and_b32 v2, 15, v0\nv_lshrrev_b32 v3, 4, v0")
    l0, l1 = lab("Lw"), lab("Lw")
    a(f"s_cmp_ge_u32 s{U}, 64\ns_cbranch_scc1 {l0}")
    a(f"""
    v_lshrrev_b32 v5, 3, v2
    v_lshlrev_b32 v5, 16, v5
    v_and_b32 v6, 7, v2
    v_lshlrev_b32 v6, 5, v6
    v_add_u32 v5, v5, v6
    v_lshl_add_u32 v5, v3, 8, v5
    s_lshl_b32 s{U+3}, s{U+2}, 17
    s_lshl_b32 s{U+4}, s{U+1}, 12
    s_add_u32 s{U+3}, s{U+3}, s{U+4}
    s_add_u32 s{U+3}, s{U+3}, {WS_WO}
    v_add_u32 v5, s{U+3}, v5
    """)
    for b in range(8): a(f"v_add_u32 v{24+b}, {(b&3)*1024 + (b>>2)*16}, v5")
    a(f"s_branch {l1}\n{l0}:")
    a(f"""
    v_lshrrev_b32 v5, 1, v2
    v_lshlrev_b32 v5, 14, v5
    v_and_b32 v6, 1, v2
    v_lshlrev_b32 v6, 7, v6
    v_add_u32 v5, v5, v6
    v_lshl_add_u32 v5, v3, 8, v5
    s_lshl_b32 s{U+3}, s{U+2}, 17
    s_lshl_b32 s{U+4}, s{U+1}, 10
    s_add_u32 s{U+3}, s{U+3}, s{U+4}
    s_add_u32 s{U+3}, s{U+3}, {WS_WF}
    v_add_u32 v5, s{U+3}, v5
    """)
    for b in range(8): a(f"v_add_u32 v{24+b}, {b*16}, v5")
    a(f"{l1}:")
    a(f"s_mov_b32 s{U+3}, 0x05040100\ns_mov_b32 s{U+4}, 0x07060302")
    a("s_waitcnt vmcnt(0)")
    for b in range(8):
        d = b >> 1
        sel = U + 3 + (b & 1)
        for m in range(4):
            lo, hi = 32 + 4*(2*m) + d, 32 + 4*(2*m+1) + d
            a(f"v_perm_b32 v{64+4*b+m}, v{hi}, v{lo}, s{sel}")
    for b in range(8):
        a(f"buffer_store_dwordx4 v[{64+4*b}:{67+4*b}], v{24+b}, {WSR}, 0 offen sc1")
    a(f"s_lshl_b32 s{U}, s{S_WG}, 2\ns_add_u32 s{U}, s{U}, {WS_RL}")
    a("s_waitcnt vmcnt(0)")
    flag_store(a, U, fast_variant=False)

GE_LDS = 17408
def ge_loads(a):
    U = S_T0 + 8
    a(f"s_sub_u32 s{U}, s{S_WG}, 224")
    mk_srd(a, SRD_T, S_PWG, 524288)
    a(f"""
    v_lshrrev_b32 v2, 1, v0
    v_and_b32 v3, 1, v0
    v_lshlrev_b32 v3, 4, v3
    v_lshl_add_u32 v2, v2, 10, v3
    s_lshl_b32 s{U+1}, s{U}, 5
    v_add_u32 v2, s{U+1}, v2
    s_mov_b32 s{U+2}, 0
    """)
    for k in range(16):
        a(f"s_mov_b32 m0, {GE_LDS + k*1024}")
        a(f"s_nop 0")
        a(f"buffer_load_dwordx4 v2, s[{SRD_T}:{SRD_T+3}], s{U+2} offen lds")
        a(f"s_add_u32 s{U+2}, s{U+2}, 32768")
    mk_srd(a, SRD_T, S_PG, 16384)
    a(f"""
    v_and_b32 v4, 15, v0
    v_lshrrev_b32 v5, 4, v0
    v_lshlrev_b32 v6, 10, v4
    v_lshl_add_u32 v6, v5, 4, v6
    """)
    for sidx in range(16):
        a(f"buffer_load_dwordx4 v[{64+4*sidx}:{67+4*sidx}], v6, s[{SRD_T}:{SRD_T+3}], 0 offen offset:{sidx*64}")

def ge_finish(a):
    U = S_T0 + 8
    a(f"s_sub_u32 s{U}, s{S_WG}, 224")
    a(f"""
    v_and_b32 v4, 15, v0
    v_lshrrev_b32 v5, 4, v0
    v_lshrrev_b32 v7, 2, v4
    v_lshl_add_u32 v7, v5, 3, v7
    v_lshlrev_b32 v7, 5, v7
    v_and_b32 v6, 3, v4
    v_lshl_add_u32 v7, v6, 3, v7
    v_add_u32 v7, {GE_LDS}, v7
    v_mov_b32 v32, 0
    v_mov_b32 v33, 0
    v_mov_b32 v34, 0
    v_mov_b32 v35, 0
    s_waitcnt vmcnt(0)
    """)
    for sidx in range(16):
        r = 128 + 4*sidx
        a(f"ds_read_b64_tr_b16 v[{r}:{r+1}], v7 offset:{sidx*1024}")
        a(f"ds_read_b64_tr_b16 v[{r+2}:{r+3}], v7 offset:{sidx*1024 + 128}")
        if sidx % 4 == 3: a("s_waitcnt lgkmcnt(0)")
    for sidx in range(16):
        r = 128 + 4*sidx
        a(f"v_mfma_f32_16x16x32_bf16 v[32:35], v[{r}:{r+3}], v[{64+4*sidx}:{67+4*sidx}], v[32:35]")
    a("s_nop 7\ns_nop 7")
    a(f"s_mov_b32 s{U+1}, {f2h(C2LOG2E)}")
    for r in range(4): a(f"v_mul_f32 v{32+r}, s{U+1}, v{32+r}")
    a(f"v_max3_f32 v40, abs(v32), abs(v33), abs(v34)\nv_max_f32 v40, abs(v35), v40")
    a(f"v_mov_b32 v42, {f2h(96.0)}")
    a(f"v_cmp_nle_f32 vcc, v40, v42")
    for r in range(4): a(f"v_exp_f32 v{36+r}, v{32+r}")
    a("s_nop 1")
    a(f"s_cmp_lg_u64 vcc, 0\ns_cselect_b32 s{U+3}, 1, 0")
    a(f"""
    v_lshrrev_b32 v9, 3, v4
    v_lshlrev_b32 v9, 14, v9
    v_and_b32 v10, 7, v4
    v_lshl_add_u32 v9, v10, 4, v9
    v_lshl_add_u32 v9, v5, 7, v9
    s_lshl_b32 s{U+1}, s{U}, 9
    v_add_u32 v9, s{U+1}, v9
    v_add_u32 v10, {WS_QR}, v9
    v_add_u32 v9, {WS_QE}, v9
    buffer_store_dwordx4 v[32:35], v10, {WSR}, 0 offen sc1
    buffer_store_dwordx4 v[36:39], v9, {WSR}, 0 offen sc1
    s_lshl_b32 s{U+1}, s{U}, 3
    s_add_u32 s{U+1}, s{U+1}, {WS_GE}
    v_mov_b32 v12, s{U+1}
    v_mov_b32 v10, s{S_TAG}
    v_mov_b32 v11, s{U+3}
    s_waitcnt vmcnt(0)
    s_mov_b64 s[{S_T0+14}:{S_T0+15}], exec
    s_mov_b64 exec, 1
    buffer_store_dwordx2 v[10:11], v12, {WSR}, 0 offen sc1
    s_mov_b64 exec, s[{S_T0+14}:{S_T0+15}]
    """)

def l_setup_w(a):
    a(f"""
    v_lshrrev_b32 v4, 3, v0
    v_lshrrev_b32 v5, 1, v4
    v_and_b32 v5, 1, v5
    s_and_b32 s{S_T0}, s{S_LW}, 1
    s_lshl_b32 s{S_T0}, s{S_T0}, 1
    v_or_b32 v5, s{S_T0}, v5
    v_lshlrev_b32 v5, 1, v5
    v_and_b32 v6, 7, v0
    v_xor_b32 v6, v6, v5
    v_lshlrev_b32 v6, 4, v6
    s_lshl_b32 s{S_T0}, s{S_LW}, 3
    v_add_u32 v4, s{S_T0}, v4
    v_lshl_add_u32 v{V_LWV}, v4, 10, v6
    """)

def l_setup_a(a, c, row_base_sgpr, lo_valid, hi_valid):
    na = (c.nA + 3) // 4
    a(f"v_lshrrev_b32 v2, 3, v0\nv_and_b32 v3, 7, v0")
    a(f"s_lshl_b32 s{S_T0}, s{S_LW}, 3\ns_mov_b32 s{S_T0+1}, {c.MAGIC}\ns_mov_b32 s{S_T0+2}, {hex(SWZ_TBL)}")
    a(f"v_mov_b32 v7, {hex(OOB)}\nv_add_u32 v4, s{S_T0}, v2")
    for k in range(na):
        a(f"""
        v_mul_u32_u24 v5, s{S_T0+1}, v4
        v_lshrrev_b32 v5, 16, v5
        v_mul_u32_u24 v6, {c.RS}, v5
        v_sub_u32 v6, v4, v6
        v_and_b32 v20, 3, v5
        v_lshl_add_u32 v20, v6, 2, v20
        v_lshrrev_b32 v21, 2, v5
        v_lshl_add_u32 v20, v20, 1, v21
        v_add_u32 v20, s{row_base_sgpr}, v20
        v_lshlrev_b32 v21, 1, v6
        v_and_b32 v21, 28, v21
        v_lshrrev_b32 v21, v21, s{S_T0+2}
        v_and_b32 v21, 7, v21
        v_xor_b32 v21, v21, v3
        v_lshlrev_b32 v21, 4, v21
        v_lshl_add_u32 v21, v20, 10, v21
        v_subrev_u32 v22, {lo_valid}, v20
        v_cmp_gt_u32 vcc, {hi_valid}, v22
        v_cndmask_b32 v21, v7, v21, vcc
        """) if False else None
        a(f"""
        v_mul_u32_u24 v5, s{S_T0+1}, v4
        v_lshrrev_b32 v5, 16, v5
        v_mul_u32_u24 v6, {c.RS}, v5
        v_sub_u32 v6, v4, v6
        v_and_b32 v20, 3, v5
        v_lshl_add_u32 v20, v6, 2, v20
        v_lshrrev_b32 v21, 2, v5
        v_lshl_add_u32 v20, v20, 1, v21
        v_add_u32 v20, s{row_base_sgpr}, v20
        v_subrev_u32 v22, {lo_valid}, v20
        v_cmp_gt_u32 vcc, {hi_valid}, v22
        v_lshlrev_b32 v21, 1, v6
        v_and_b32 v21, 28, v21
        v_lshrrev_b32 v21, v21, s{S_T0+2}
        v_and_b32 v21, 7, v21
        v_xor_b32 v21, v21, v3
        v_lshlrev_b32 v21, 4, v21
        v_lshl_add_u32 v21, v20, 10, v21
        v_cndmask_b32 v{V_LA+k}, v7, v21, vcc
        """)
        if 8 * (4*k + 3) + 7 >= 8 * c.RS:
            a(f"v_cmp_gt_u32 vcc, {8*c.RS}, v4\ns_nop 1\nv_cndmask_b32 v{V_LA+k}, v7, v{V_LA+k}, vcc")
        if k + 1 < na: a("v_add_u32 v4, 32, v4")

def l_issue_A(a, c, srdA, pol):
    na = (c.nA + 3) // 4
    a(f"s_lshl_b32 s{S_T0}, s{S_LW}, 10\ns_add_u32 s{S_T0}, s{S_T0}, s{S_LSA}")
    for k in range(na):
        extra = (4 * k + 3 >= c.nA)
        if extra:
            l0 = lab("Lx")
            a(f"s_cmp_lt_u32 s{S_LW}, {c.nA - 4 * k}\ns_cbranch_scc0 {l0}")
        a(f"s_add_u32 m0, s{S_T0}, {k*4096}")
        a("s_nop 0")
        a(f"buffer_load_dwordx4 v{V_LA+k}, s[{srdA}:{srdA+3}], s{S_OFA} offen {pol} lds")
        if extra: a(f"{l0}:")
    step = c.AB if c.idx == 1 else 2 * c.AB
    a(f"s_add_u32 s{S_LSA}, s{S_LSA}, {step}")
    a(f"s_cmp_ge_u32 s{S_LSA}, {c.RA * c.AB}")
    a(f"s_cselect_b32 s{S_T0}, {c.RA * c.AB}, 0")
    a(f"s_sub_u32 s{S_LSA}, s{S_LSA}, s{S_T0}")
    a(f"s_add_u32 s{S_OFA}, s{S_OFA}, 128")

def l_issue_W(a, c, srdW):
    a(f"s_lshl_b32 s{S_T0}, s{S_LW}, 10\ns_add_u32 s{S_T0}, s{S_T0}, s{S_LSW}\ns_mov_b32 s{S_T0+1}, s{S_OFW}")
    for tap in range(5):
        a(f"s_add_u32 m0, s{S_T0}, {c.WOFF + tap*4096}")
        if tap: a(f"s_add_u32 s{S_T0+1}, s{S_T0+1}, 524288")
        else: a("s_nop 0")
        a(f"buffer_load_dwordx4 v{V_LWV}, s[{srdW}:{srdW+3}], s{S_T0+1} offen lds")
    a(f"s_add_u32 s{S_LSW}, s{S_LSW}, {c.WB}")
    a(f"s_cmp_ge_u32 s{S_LSW}, {c.RW * c.WB}")
    a(f"s_cselect_b32 s{S_LSW}, 0, s{S_LSW}")
    a(f"s_add_u32 s{S_OFW}, s{S_OFW}, 32768")

def only(a, cond_lines, body):
    l0 = lab("Lo")
    a(cond_lines)
    a(f"s_cbranch_scc0 {l0}")
    body()
    a(f"{l0}:")

def emit():
    c1, c2 = Conv(1), Conv(2)
    a = Asm()
    kernel_begin(a, KN)
    a(f"s_cmp_ge_u32 s{S_WG}, 256\ns_cbranch_scc1 L_end")
    stamp(a, 0)
    load_ptrs(a)
    ids(a)
    a(f"s_lshr_b32 s{S_M}, s{S_Q}, 3\ns_and_b32 s{S_N}, s{S_Q}, 7")
    a("s_waitcnt lgkmcnt(0)")
    mk_srd(a, SRD_WS, S_PWS, 0x10000000)
    a(f"s_mul_i32 s{S_T0}, s{S_B}, 4096000")
    mk_srd(a, SRD_X, S_PX, 4096000, add=f"s{S_T0}")
    mk_srd(a, SRD_W, S_PW1, 2621440)
    mk_srd(a, SRD_OUT, S_POUT, 16384000)
    a(f"s_cmp_ge_u32 s{S_WAVE}, 4\ns_cbranch_scc1 L_Lwaves")
    def nonce_load():
        a(f"v_mov_b32 v30, {WS_NONCE}\nbuffer_load_dword v31, v30, {WSR}, 0 offen sc1")
    only(a, f"s_cmp_eq_u32 s{S_LW}, 3", nonce_load)
    def zero_inbox():
        a(f"v_lshlrev_b32 v2, 2, v0\nv_add_u32 v2, {MISC}, v2\nv_mov_b32 v3, 0\nds_write_b32 v2, v3\ns_waitcnt lgkmcnt(0)")
    only(a, f"s_cmp_eq_u32 s{S_LW}, 0", zero_inbox)
    G.conv_c_setup(a, c1)
    a("s_barrier")
    def nonce_pub():
        a("s_waitcnt vmcnt(0)")
        a(f"v_add_u32 v31, 1, v31\ns_nop 0\nv_readfirstlane_b32 s{S_TAG}, v31")
        a(f"s_getreg_b32 s{S_T0}, hwreg(HW_REG_XCC_ID, 0, 4)")
        a(f"s_lshl_b32 s{S_T0+1}, s{S_X}, 8\ns_lshl_b32 s{S_T0+2}, s{S_Q}, 3\ns_add_u32 s{S_T0+1}, s{S_T0+1}, s{S_T0+2}\ns_add_u32 s{S_T0+1}, s{S_T0+1}, {WS_G0}")
        a(f"v_mov_b32 v28, s{S_TAG}\nv_mov_b32 v29, s{S_T0}\nv_mov_b32 v30, s{S_T0+1}")
        a(f"s_mov_b64 s[{S_T0+14}:{S_T0+15}], exec\ns_mov_b64 exec, 1")
        a(f"buffer_store_dwordx2 v[28:29], v30, {WSR}, 0 offen sc1")
        a(f"s_mov_b64 exec, s[{S_T0+14}:{S_T0+15}]")
        write_misc(a, 0, S_TAG)
    only(a, f"s_cmp_eq_u32 s{S_LW}, 3", nonce_pub)
    if OPT["xpf"] is not None: x_prefetch(a)
    conv_c_loop(a, c1, 1)
    read_misc(a, 0, S_TAG)
    read_misc(a, 4, S_FAST)
    conv1_tail_c(a)
    stamp(a, 4)
    a(f"s_lshr_b32 s{S_GRP}, s{S_LW}, 1\ns_mul_i32 s{S_GRP}, s{S_GRP}, {c2.WB}")
    G.conv_c_setup(a, c2)
    a("s_barrier") if False else None
    b = Asm()
    a("s_barrier")
    stamp(a, 5)
    save = OPT["stamp"]; OPT["stamp"] = False
    conv_c_loop(b, c2, 0)
    OPT["stamp"] = save
    lines = b.lines
    i0 = next(i for i, l in enumerate(lines) if l.strip() == "s_barrier")
    a.lines += lines[i0+1:]
    stamp(a, 6)
    read_misc(a, 8, S_UNS)
    conv2_tail_c(a)
    fe_c(a)
    stamp(a, 9)
    joint_c(a)
    a("s_branch L_fin")
    a("L_Lwaves:")
    sch = LSched()
    nA1, nA2 = c1.nA // 4, c2.nA // 4
    iA = [0]; iW = [0]
    def A(c, srd, pol, tag):
        l_issue_A(a, c, srd, pol); sch.add((tag, "A", iA[0]), c.nA // 4); iA[0] += 1
    def W(c, tag):
        l_issue_W(a, c, SRD_W); sch.add((tag, "W", iW[0]), 5); iW[0] += 1
    l_setup_w(a)
    a(f"s_mov_b32 s{S_LSA}, 0\ns_mov_b32 s{S_LSW}, 0\ns_mov_b32 s{S_OFA}, 0\ns_lshl_b32 s{S_OFW}, s{S_N}, 7")
    W(c1, 1)
    a(f"s_mul_i32 s{S_T0+8}, s{S_QQ}, 1000\ns_lshl_b32 s{S_T0+9}, s{S_M}, 8\ns_add_u32 s{S_T0+8}, s{S_T0+8}, s{S_T0+9}\ns_sub_u32 s{S_T0+8}, s{S_T0+8}, 6")
    l_setup_a(a, c1, S_T0+8, 0, 4000)
    A(c1, SRD_X, OPT["xld"], 1)
    stamp(a, 1)
    a("s_barrier")
    W(c1, 1)
    need1 = lambda s: [(1, "A", s // 2), (1, "W", s)]
    a(f"s_waitcnt vmcnt({sch.wait_for(need1(0))})")
    a("s_barrier")
    stamp(a, 2)
    A(c1, SRD_X, OPT["xld"], 1); W(c1, 1); W(c1, 1)
    for s in range(c1.NST):
        if s + 1 < c1.NST:
            a(f"s_waitcnt vmcnt({min(63, sch.wait_for(need1(s+1)))})")
        a("s_barrier")
        if s % 2 == 1 and iA[0] < c1.NA: A(c1, SRD_X, OPT["xld"], 1)
        if iW[0] < c1.NU: W(c1, 1)
        if s == 2:
            mk_srd(a, SRD_T, S_PW2, 2621440)
            a(f"s_mul_i32 s{S_T0+2}, s{S_WG}, 12288\ns_mul_i32 s{S_T0+3}, s{S_LW}, 3072\ns_add_u32 s{S_T0+2}, s{S_T0+2}, s{S_T0+3}")
            a(f"v_lshl_add_u32 v4, v0, 4, s{S_T0+2}")
            for k in range(3): a(f"buffer_load_dwordx4 v[{V_DUMMY}:{V_DUMMY+3}], v4, s[{SRD_T}:{SRD_T+3}], 0 offen offset:{k*1024}")
            sch.add("pf", 3)
        if s == 3:
            read_misc(a, 0, S_TAG)
            a(f"s_lshl_b32 s{S_T0+1}, s{S_X}, 8\ns_add_u32 s{S_T0+1}, s{S_T0+1}, {WS_G0}")
            a(f"v_and_b32 v28, 31, v0\nv_lshlrev_b32 v28, 3, v28\nv_add_u32 v28, s{S_T0+1}, v28")
            def xcc_issue():
                a(f"buffer_load_dwordx2 v[26:27], v28, {WSR}, 0 offen sc1")
            only(a, f"s_cmp_eq_u32 s{S_LW}, 0", xcc_issue)
            mark1 = len(sch.ops)
        if s == 7:
            def xcc_check():
                a(f"s_waitcnt vmcnt({len(sch.ops) - mark1})")
                l0 = lab("Lc")
                a(f"s_mov_b32 s{S_T0+16}, 0\nv_cmp_ne_u32 vcc, s{S_TAG}, v26\ns_cbranch_vccz {l0}")
                poll(a, 28, 26, width=2)
                a(f"{l0}:")
                a(f"s_getreg_b32 s{S_T0}, hwreg(HW_REG_XCC_ID, 0, 4)")
                a(f"v_cmp_ne_u32 vcc, s{S_T0}, v27\ns_nop 4\ns_cmp_eq_u64 vcc, 0\ns_cselect_b32 s{S_FAST}, 1, 0")
                a(f"s_cmp_ge_u32 s{S_T0+16}, {SPIN_MAX}\ns_cselect_b32 s{S_FAST}, 0, s{S_FAST}")
                if OPT["force_slow"]: a(f"s_mov_b32 s{S_FAST}, 0")
                write_misc(a, 4, S_FAST)
            only(a, f"s_cmp_eq_u32 s{S_LW}, 0", xcc_check)
        if s == 8:
            only(a, f"s_cmp_lt_u32 s{S_WG}, 128\ns_cselect_b32 s{S_T0}, s{S_LW}, 0\ns_cmp_eq_u32 s{S_T0}, 1", lambda: relayout_loads(a))
        if s == 12:
            only(a, f"s_cmp_lt_u32 s{S_WG}, 128\ns_cselect_b32 s{S_T0}, s{S_LW}, 0\ns_cmp_eq_u32 s{S_T0}, 1", lambda: relayout_finish(a))
        if s == 13:
            only(a, f"s_cmp_ge_u32 s{S_WG}, 224\ns_cselect_b32 s{S_T0}, s{S_LW}, 0\ns_cmp_eq_u32 s{S_T0}, 2", lambda: ge_loads(a))
    stamp(a, 3)
    read_misc(a, 4, S_FAST)
    only(a, f"s_cmp_ge_u32 s{S_WG}, 224\ns_cselect_b32 s{S_T0}, s{S_LW}, 0\ns_cmp_eq_u32 s{S_T0}, 2", lambda: ge_finish(a))
    mk_srd(a, SRD_W, S_PW2, 2621440)
    a(f"s_lshl_b32 s{S_T0}, s{S_X}, 19\ns_add_u32 s{S_T0}, s{S_T0}, {WS_H}")
    mk_srd(a, SRD_X, S_PWS, 0x100000, add=f"s{S_T0}")
    iA[0] = 0; iW[0] = 0
    a(f"s_mov_b32 s{S_LSA}, 0\ns_mov_b32 s{S_LSW}, 0\ns_mov_b32 s{S_OFA}, 0\ns_lshl_b32 s{S_OFW}, s{S_N}, 7")
    W(c2, 2); W(c2, 2); W(c2, 2); W(c2, 2)
    a(f"s_lshl_b32 s{S_T0+8}, s{S_M}, 7")
    a(f"s_cmp_eq_u32 s{S_QQ}, 0\ns_cselect_b32 s{S_T0+10}, 2, 0")
    a(f"s_cmp_eq_u32 s{S_QQ}, 3\ns_cselect_b32 s{S_T0+11}, 0, 522\ns_add_u32 s{S_T0+11}, s{S_T0+11}, 502")
    a(f"s_sub_u32 s{S_T0+11}, s{S_T0+11}, s{S_T0+10}")
    l_setup_a(a, c2, S_T0+8, f"s{S_T0+10}", f"s{S_T0+11}")
    a(f"s_lshl_b32 s{S_T0}, s{S_M}, 3\nv_lshrrev_b32 v6, 2, v0\nv_add_u32 v6, s{S_T0}, v6\nv_min_u32 v6, 31, v6")
    a(f"v_lshlrev_b32 v6, 4, v6\nv_and_b32 v7, 3, v0\nv_lshl_add_u32 v6, v7, 2, v6")
    a(f"s_lshl_b32 s{S_T0}, s{S_X}, 9\ns_add_u32 s{S_T0}, s{S_T0}, {WS_F1}\nv_add_u32 v6, s{S_T0}, v6")
    poll(a, 6, 7)
    sch.ops = []
    stamp(a, 4)
    A(c2, SRD_X, "sc1", 2); A(c2, SRD_X, "sc1", 2)
    need2 = lambda s: [(2, "A", s)]
    a(f"s_waitcnt vmcnt({sch.wait_for([(2, 'A', 0)])})")
    a("s_barrier")
    stamp(a, 5)
    W(c2, 2); A(c2, SRD_X, "sc1", 2)
    for s in range(c2.NST):
        if s + 1 < c2.NST:
            tags = [(2, "A", s+1), (2, "W", 2*s+2), (2, "W", 2*s+3)]
            tags = [t for t in tags if t in sch.ops]
            a(f"s_waitcnt vmcnt({min(63, sch.wait_for(tags))})")
        a("s_barrier")
        if iW[0] < c2.NU: W(c2, 2)
        if iA[0] < c2.NA: A(c2, SRD_X, "sc1", 2)
        if iW[0] < c2.NU: W(c2, 2)
        if s == 1:
            a(f"v_lshlrev_b32 v28, 2, v0\nv_add_u32 v28, {WS_RL}, v28\nv_add_u32 v29, 256, v28")
            a(f"v_and_b32 v30, 31, v0\nv_lshlrev_b32 v30, 3, v30\nv_add_u32 v30, {WS_GE}, v30")
            def side_issue():
                a(f"buffer_load_dword v24, v28, {WSR}, 0 offen sc1\nbuffer_load_dword v25, v29, {WSR}, 0 offen sc1")
                a(f"buffer_load_dwordx2 v[26:27], v30, {WSR}, 0 offen sc1")
            only(a, f"s_cmp_eq_u32 s{S_LW}, 3", side_issue)
            mark2 = len(sch.ops)
        if s == 4:
            def side_check():
                a(f"s_waitcnt vmcnt({len(sch.ops) - mark2})")
                for (vv, va, w) in [(24, 28, 1), (25, 29, 1), (26, 30, 2)]:
                    l0 = lab("Lc")
                    a(f"v_cmp_ne_u32 vcc, s{S_TAG}, v{vv}\ns_cbranch_vccz {l0}")
                    poll(a, va, vv, width=w)
                    a(f"{l0}:")
                a(f"v_cmp_ne_u32 vcc, 0, v27\ns_nop 4\ns_cmp_lg_u64 vcc, 0\ns_cselect_b32 s{S_UNS}, 1, 0")
                write_misc(a, 8, S_UNS)
            only(a, f"s_cmp_eq_u32 s{S_LW}, 3", side_check)
        if s == 6:
            read_misc(a, 8, S_UNS)
    stamp(a, 6)
    fe_l_wpre(a, sch)
    fe_l(a, sch)
    stamp(a, 8)
    joint_l(a)
    stamp(a, 11)
    def nonce_update():
        for k in range(4):
            a(f"v_lshlrev_b32 v6, 3, v0\nv_add_u32 v6, {WS_G0 + k*512}, v6")
            poll(a, 6, 26, width=2)
        a(f"s_mov_b32 s{S_T0+8}, {WS_NONCE}")
        flag_store(a, S_T0+8, fast_variant=False)
    only(a, f"s_cmp_eq_u32 s{S_WG}, 0\ns_cselect_b32 s{S_T0}, s{S_LW}, 0\ns_cmp_eq_u32 s{S_T0}, 2", nonce_update)
    a("L_fin:")
    a("s_waitcnt vmcnt(0)")
    stamp(a, 12)
    stamp_flush(a, 13, "L_stx")
    a("L_end:")
    a("s_endpgm")
    return file_text([(None, (256,1,1), (512,1,1), 160*1024)], a.text(), [kernel_desc(KN, 256, 102)])

if __name__ == "__main__":
    for arg in sys.argv[2:]:
        if arg == "--stamp": OPT["stamp"] = True
        elif arg == "--cyc": OPT["cyc"] = True
        elif arg.startswith("--o="):
            k, v = arg[4:].split("=", 1)
            OPT[k] = None if v == "None" else (True if v == "True" else (False if v == "False" else v.replace("+", " ")))
    open(sys.argv[1], "w").write(emit())
```

```python
import sys
from asmlib import *
import gen as G
from gen import (f2h, mk_srd, load_ptrs, ids, Conv, swz_of, xfrag_read, wfrag_reads, group_reads, group_mfmas, interleave,
                 gelu_consts, gelu_block, LSched, C2LOG2E, OOB, SWZ_TBL,
                 WS_H, WS_F, WS_P, WS_WO, WS_WF, WS_QE, WS_QR,
                 S_WG, SRD_X, SRD_W, SRD_WS, SRD_OUT, SRD_T, S_PX, S_PW1, S_PW2, S_PG, S_PWF, S_PWG, S_PWO, S_POUT, S_PDBG, S_PWS,
                 S_X, S_Q, S_B, S_QQ, S_M, S_N, S_WAVE, S_LW, S_T0, S_CNT, S_GRP, S_UNS,
                 V_ACC, V_E0, V_E1, V_O, V_W, V_XA0, V_XA1, V_WA0, V_WA1, V_XB, V_WB0, V_WB1, S_SLOTA, S_SLOTW,
                 V_LA, V_LWV, S_OFA, S_OFW, S_LSA, S_LSW)

WS_NONCE = 0x0F30000
WS_G0    = 0x0F31000
WS_F1    = 0x0F32000
WS_F2    = 0x0F33000
WS_F3    = 0x0F34000
WS_RL    = 0x0F35000
WS_GE    = 0x0F36000
WS_STAMP = 0x1000000
S_TAG, S_FAST = 86, 87
MISC = 163584
INBOX = MISC + 64
SPIN_MAX = 40000

OPT = dict(dbg=False, codepf=True, stamp=False, cyc=False, xpf="nt", xld="nt", scout="sc1 nt", scl_fast="", force_slow=False)
S_ST = 88
def stamp(a, i):
    if OPT["stamp"]:
        a(f"{'s_memtime' if OPT['cyc'] else 's_memrealtime'} s[74:75]")
        a("s_waitcnt lgkmcnt(0)")
        a(f"s_mov_b32 s{S_ST+i}, s74")
def stamp_flush(a, n, lab):
    if not OPT["stamp"]: return
    a(f"s_and_b32 s{S_T0}, s{S_WAVE}, 3\ns_cmp_eq_u32 s{S_T0}, 0\ns_cbranch_scc0 {lab}")
    a(f"s_lshr_b32 s{S_T0}, s{S_WAVE}, 2\ns_lshl_b32 s{S_T0}, s{S_T0}, 6")
    a(f"s_lshl_b32 s{S_T0+1}, s{S_WG}, 7\ns_add_u32 s{S_T0}, s{S_T0}, s{S_T0+1}")
    a(f"s_add_u32 s{S_T0}, s{S_T0}, {WS_STAMP}")
    for i in range(n):
        a(f"v_mov_b32 v2, s{S_ST+i}\nv_mov_b32 v3, s{S_T0}")
        a(f"buffer_store_dword v2, v3, s[{SRD_WS}:{SRD_WS+3}], 0 offen offset:{4*i}")
    a("s_waitcnt vmcnt(0)")
    a(f"{lab}:")

LABN = [0]
def lab(p="L"):
    LABN[0] += 1
    return f"{p}_{LABN[0]}"

WSR = f"s[{SRD_WS}:{SRD_WS+3}]"

def poll(a, vaddr, vtmp, width=1):
    l0, l1 = lab("Lp"), lab("Lp")
    a(f"s_mov_b32 s{S_T0+16}, 0")
    a(f"{l0}:")
    if width == 1: a(f"buffer_load_dword v{vtmp}, v{vaddr}, {WSR}, 0 offen sc1")
    else: a(f"buffer_load_dwordx2 v[{vtmp}:{vtmp+1}], v{vaddr}, {WSR}, 0 offen sc1")
    a(f"s_add_u32 s{S_T0+16}, s{S_T0+16}, 1")
    a(f"s_cmp_ge_u32 s{S_T0+16}, {SPIN_MAX}")
    a(f"s_cbranch_scc1 {l1}")
    a("s_waitcnt vmcnt(0)")
    a(f"v_cmp_ne_u32 vcc, s{S_TAG}, v{vtmp}")
    a(f"s_cbranch_vccnz {l0}")
    a(f"{l1}:")
    a("s_waitcnt vmcnt(0)")

def flag_store(a, off_sgpr, fast_variant=True):
    a(f"v_mov_b32 v2, s{S_TAG}\nv_mov_b32 v3, s{off_sgpr}")
    a(f"s_mov_b64 s[{S_T0+14}:{S_T0+15}], exec\ns_mov_b64 exec, 1")
    if fast_variant:
        l0, l1 = lab("Lf"), lab("Lf")
        a(f"s_cmp_eq_u32 s{S_FAST}, 0\ns_cbranch_scc1 {l0}")
        a(f"buffer_store_dword v2, v3, {WSR}, 0 offen")
        a(f"s_branch {l1}\n{l0}:")
        a(f"buffer_store_dword v2, v3, {WSR}, 0 offen sc1")
        a(f"{l1}:")
    else:
        a(f"buffer_store_dword v2, v3, {WSR}, 0 offen sc1")
    a(f"s_mov_b64 exec, s[{S_T0+14}:{S_T0+15}]")

def local_stores(a, instrs):
    l0, l1 = lab("Ls"), lab("Ls")
    a(f"s_cmp_eq_u32 s{S_FAST}, 0\ns_cbranch_scc1 {l0}")
    for i in instrs: a(i.replace("{SC}", OPT["scl_fast"]))
    a(f"s_branch {l1}\n{l0}:")
    for i in instrs: a(i.replace("{SC}", "sc1"))
    a(f"{l1}:")

def pair_sync(a, event, partner_xor):
    l0, l1 = lab("Ly"), lab("Ly")
    a("s_waitcnt lgkmcnt(0)")
    a(f"s_xor_b32 s{S_T0+12}, s{S_LW}, {partner_xor}")
    a(f"s_lshl_b32 s{S_T0+12}, s{S_T0+12}, 2\ns_add_u32 s{S_T0+12}, s{S_T0+12}, {INBOX + event*16}")
    a(f"s_lshl_b32 s{S_T0+13}, s{S_LW}, 2\ns_add_u32 s{S_T0+13}, s{S_T0+13}, {INBOX + event*16}")
    a(f"v_mov_b32 v2, s{S_T0+12}\nv_mov_b32 v3, 1\nds_write_b32 v2, v3")
    a(f"v_mov_b32 v2, s{S_T0+13}\ns_mov_b32 s{S_T0+16}, 0")
    a(f"{l0}:")
    a("ds_read_b32 v3, v2")
    a(f"s_add_u32 s{S_T0+16}, s{S_T0+16}, 1\ns_cmp_ge_u32 s{S_T0+16}, {SPIN_MAX*8}\ns_cbranch_scc1 {l1}")
    a("s_waitcnt lgkmcnt(0)")
    a("v_cmp_eq_u32 vcc, 0, v3")
    a(f"s_cbranch_vccnz {l0}")
    a(f"{l1}:")
    a("s_waitcnt lgkmcnt(0)")

def conv_c_loop(a, c, st0):
    t = c.tag
    stamp(a, st0)
    a("s_barrier")
    stamp(a, st0 + 1)
    for r in group_reads(c, V_E0, 0, 0): a(r)
    for r in group_reads(c, V_E0, 1, 1): a(r)
    a(f"s_mov_b32 s{S_CNT}, 0")
    a(f"L_{t}_cloop:")
    VN = [18, 19, 20, 21]
    for par in range(2):
        es, en = (V_E0, V_E1) if par == 0 else (V_E1, V_E0)
        a("s_waitcnt lgkmcnt(8)")
        interleave(a, group_mfmas(es, 0, 0), group_reads(c, es, 2, 2))
        a("s_waitcnt lgkmcnt(5)")
        sc = []
        if c.idx == 1:
            sc += [f"s_add_u32 s{S_SLOTW}, s{S_SLOTW}, {c.WB}", f"s_cmp_ge_u32 s{S_SLOTW}, {c.RW * c.WB}", f"s_cselect_b32 s{S_SLOTW}, 0, s{S_SLOTW}"]
            if par == 1: sc += [f"s_xor_b32 s{S_SLOTA}, s{S_SLOTA}, {c.AB}"]
            xb = V_XB + (2 if par == 0 else 0)
        else:
            sc += [f"s_add_u32 s{S_SLOTW}, s{S_SLOTW}, {2 * c.WB}", f"s_add_u32 s{S_T0}, s{S_SLOTW}, s{S_GRP}",
                   f"s_cmp_ge_u32 s{S_T0}, {c.RW * c.WB}", f"s_cselect_b32 s{S_T0}, {c.RW * c.WB}, 0", f"s_sub_u32 s{S_SLOTW}, s{S_SLOTW}, s{S_T0}",
                   f"s_add_u32 s{S_SLOTA}, s{S_SLOTA}, {2 * c.AB}", f"s_cmp_ge_u32 s{S_SLOTA}, {c.RA * c.AB}",
                   f"s_cselect_b32 s{S_T0}, {c.RA * c.AB}, 0", f"s_sub_u32 s{S_SLOTA}, s{S_SLOTA}, s{S_T0}"]
            xb = V_XB
        rd = group_reads(c, es, 3, 3)
        mf = group_mfmas(es, 1, 1)
        k = 0
        for i, m in enumerate(mf):
            a(m)
            if i < len(rd): a(rd[i])
            else:
                while k < len(sc) and k < 3 * (i - len(rd) + 1): a(sc[k]); k += 1
        while k < len(sc): a(sc[k]); k += 1
        a("s_waitcnt lgkmcnt(5)")
        rd = group_reads(c, es, 4, 4)
        nx = [f"v_add_u32 v{VN[0]}, s{S_SLOTW}, v{V_WB0}", f"v_add_u32 v{VN[1]}, s{S_SLOTA}, v{xb}",
              f"v_add_u32 v{VN[2]}, s{S_SLOTW}, v{V_WB1}", f"v_add_u32 v{VN[3]}, s{S_SLOTA}, v{xb+1}"]
        interleave(a, group_mfmas(es, 2, 2), rd + nx[:3])
        a(nx[3])
        a("s_waitcnt lgkmcnt(0)")
        a("s_barrier")
        def ren(r):
            return (r.replace(f", v{V_WA0} ", f", v{VN[0]} ").replace(f", v{V_XA0} ", f", v{VN[1]} ")
                     .replace(f", v{V_WA1} ", f", v{VN[2]} ").replace(f", v{V_XA1} ", f", v{VN[3]} "))
        mv = [f"v_mov_b32 v{V_WA0}, v{VN[0]}", f"v_mov_b32 v{V_XA0}, v{VN[1]}", f"v_mov_b32 v{V_WA1}, v{VN[2]}", f"v_mov_b32 v{V_XA1}, v{VN[3]}"]
        interleave(a, group_mfmas(es, 3, 3), [ren(r) for r in group_reads(c, en, 0, 0)])
        interleave(a, group_mfmas(es, 4, 4), [ren(r) for r in group_reads(c, en, 1, 1)])
        for m in mv: a(m)
    a(f"s_add_u32 s{S_CNT}, s{S_CNT}, 2")
    a(f"s_cmp_lt_u32 s{S_CNT}, {c.NST}")
    a(f"s_cbranch_scc1 L_{t}_cloop")
    a("s_waitcnt lgkmcnt(0)")
    stamp(a, st0 + 2)

def tbuf_write_addr(a, base, wm_shift):
    a(f"""
    v_and_b32 v2, 15, v0
    v_lshrrev_b32 v3, 4, v0
    s_and_b32 s{S_T0}, s{S_LW}, 1
    s_lshl_b32 s{S_T0}, s{S_T0}, 3
    v_or_b32 v4, s{S_T0}, v3
    v_and_b32 v5, 14, v2
    v_xor_b32 v4, v4, v5
    v_lshlrev_b32 v4, 3, v4
    v_lshl_add_u32 v16, v2, 9, v4
    """)
    if wm_shift:
        a(f"s_lshr_b32 s{S_T0}, s{S_LW}, 1\ns_lshl_b32 s{S_T0}, s{S_T0}, 13\nv_add_u32 v16, s{S_T0}, v16")
    a("v_xor_b32 v17, 32, v16")
    if base: a(f"v_add_u32 v16, {base}, v16\nv_add_u32 v17, {base}, v17")

def tbuf_store_c(a, base, dlist_sgpr_expr, n, goff_sgpr):
    pass

def conv1_tail_c(a):
    a("s_nop 7")
    tbuf_write_addr(a, 0, True)
    gelu_consts(a, 20)
    for jj in range(4):
        gelu_block(a, V_ACC + jj*8, 8, 64, 20, 72 + jj*4)
    for jj in range(4):
        for nb in range(2):
            r = 72 + jj*4 + nb*2
            a(f"ds_write_b64 v{17 if nb else 16}, v[{r}:{r+1}] offset:{jj*128}")
    pair_sync(a, 0, 1)
    a(f"s_lshl_b32 s{S_T0}, s{S_LW}, 2")
    a(f"s_lshl_b32 s{S_T0+1}, s{S_T0}, 10\nv_lshl_add_u32 v4, v0, 4, s{S_T0+1}")
    for k in range(4): a(f"ds_read_b128 v[{24+4*k}:{27+4*k}], v4 offset:{k*1024}")
    a("v_and_b32 v5, 7, v0\nv_lshrrev_b32 v6, 3, v0\nv_lshlrev_b32 v6, 10, v6")
    for k in range(4):
        a(f"s_and_b32 s{S_T0+2}, s{S_LW}, 1\ns_lshl_b32 s{S_T0+2}, s{S_T0+2}, 2\ns_add_u32 s{S_T0+2}, s{S_T0+2}, {k}")
        a(f"v_xor_b32 v7, s{S_T0+2}, v5\nv_lshl_add_u32 v7, v7, 4, v6\nv_add_u32 v{40+k}, {k*8192}, v7")
    a(f"""
    s_lshl_b32 s{S_T0+8}, s{S_X}, 19
    s_lshl_b32 s{S_T0+9}, s{S_M}, 17
    s_add_u32 s{S_T0+8}, s{S_T0+8}, s{S_T0+9}
    s_lshl_b32 s{S_T0+9}, s{S_N}, 7
    s_add_u32 s{S_T0+8}, s{S_T0+8}, s{S_T0+9}
    s_lshl_b32 s{S_T0+9}, s{S_LW}, 15
    s_add_u32 s{S_T0+8}, s{S_T0+8}, s{S_T0+9}
    s_add_u32 s{S_T0+8}, s{S_T0+8}, {WS_H}
    s_waitcnt lgkmcnt(0)
    """)
    local_stores(a, [f"buffer_store_dwordx4 v[{24+4*k}:{27+4*k}], v{40+k}, {WSR}, s{S_T0+8} offen {{SC}}" for k in range(4)])
    wave_flag(a, WS_F1)

def wave_flag(a, base):
    a(f"s_lshl_b32 s{S_T0+8}, s{S_X}, 9\ns_lshl_b32 s{S_T0+9}, s{S_Q}, 4\ns_add_u32 s{S_T0+8}, s{S_T0+8}, s{S_T0+9}")
    a(f"s_lshl_b32 s{S_T0+9}, s{S_LW}, 2\ns_add_u32 s{S_T0+8}, s{S_T0+8}, s{S_T0+9}\ns_add_u32 s{S_T0+8}, s{S_T0+8}, {base}")
    a("s_waitcnt vmcnt(0)")
    flag_store(a, S_T0+8)

C2_T = 131072
C2_X = C2_T + 8192
def conv2_tail_c(a):
    a("s_nop 7")
    a(f"s_lshl_b32 s{S_T0}, s{S_LW}, 12\ns_add_u32 s{S_T0}, s{S_T0}, {C2_X}\nv_lshl_add_u32 v4, v0, 4, s{S_T0}")
    a(f"s_xor_b32 s{S_T0}, s{S_LW}, 2\ns_lshl_b32 s{S_T0}, s{S_T0}, 12\ns_add_u32 s{S_T0}, s{S_T0}, {C2_X}\nv_lshl_add_u32 v5, v0, 4, s{S_T0}")
    l0, l1 = lab("Lk"), lab("Lk")
    a(f"s_cmp_ge_u32 s{S_LW}, 2\ns_cbranch_scc1 {l0}")
    for q in range(4): a(f"ds_write_b128 v4, v[{V_ACC+16+4*q}:{V_ACC+19+4*q}] offset:{q*1024}")
    a(f"s_branch {l1}\n{l0}:")
    for q in range(4): a(f"ds_write_b128 v4, v[{V_ACC+4*q}:{V_ACC+3+4*q}] offset:{q*1024}")
    a("s_waitcnt lgkmcnt(0)")
    for r in range(16): a(f"v_mov_b32 v{V_ACC+r}, v{V_ACC+16+r}")
    a(f"{l1}:")
    a("v_mov_b32 v6, v5")
    pair_sync(a, 1, 2)
    for q in range(4): a(f"ds_read_b128 v[{64+4*q}:{67+4*q}], v6 offset:{q*1024}")
    tbuf_write_addr(a, C2_T, False)
    gelu_consts(a, 20)
    a(f"s_lshr_b32 s{S_T0}, s{S_LW}, 1\ns_lshl_b32 s{S_T0}, s{S_T0}, 8")
    a(f"v_add_u32 v16, s{S_T0}, v16\nv_add_u32 v17, s{S_T0}, v17")
    a("s_waitcnt lgkmcnt(0)")
    for p in range(0, 16, 2):
        a(f"v_pk_add_f32 v[{V_ACC+p}:{V_ACC+p+1}], v[{V_ACC+p}:{V_ACC+p+1}], v[{64+p}:{64+p+1}]")
    for jj in range(2):
        gelu_block(a, V_ACC + jj*8, 8, 80, 20, 72 + jj*4)
    for jj in range(2):
        for nb in range(2):
            r = 72 + jj*4 + nb*2
            a(f"ds_write_b64 v{17 if nb else 16}, v[{r}:{r+1}] offset:{jj*128}")
    pair_sync(a, 2, 1)
    a(f"""
    v_lshrrev_b32 v2, 4, v0
    s_and_b32 s{S_T0}, s{S_LW}, 1
    s_lshl_b32 s{S_T0}, s{S_T0}, 3
    v_add_u32 v2, s{S_T0}, v2
    v_bfe_u32 v3, v0, 3, 1
    s_lshr_b32 s{S_T0+1}, s{S_LW}, 1
    s_lshl_b32 s{S_T0+1}, s{S_T0+1}, 1
    v_add_u32 v3, s{S_T0+1}, v3
    v_and_b32 v5, 7, v0
    """)
    for k in range(2):
        a(f"v_add_u32 v6, {4*k}, v2\nv_lshl_add_u32 v7, v6, 2, v3")
        a(f"v_lshlrev_b32 v8, 7, v7\nv_lshl_add_u32 v8, v5, 4, v8\nv_add_u32 v8, {C2_T}, v8")
        a(f"ds_read_b128 v[{24+4*k}:{27+4*k}], v8")
        a(f"v_bfe_u32 v9, v6, 1, 3\nv_xor_b32 v9, v9, v5\nv_lshlrev_b32 v9, 4, v9\nv_lshl_add_u32 v{40+k}, v7, 10, v9")
    a(f"""
    s_lshl_b32 s{S_T0+8}, s{S_X}, 18
    s_lshl_b32 s{S_T0+9}, s{S_M}, 16
    s_add_u32 s{S_T0+8}, s{S_T0+8}, s{S_T0+9}
    s_lshl_b32 s{S_T0+9}, s{S_N}, 7
    s_add_u32 s{S_T0+8}, s{S_T0+8}, s{S_T0+9}
    s_add_u32 s{S_T0+8}, s{S_T0+8}, {WS_F}
    s_waitcnt lgkmcnt(0)
    """)
    local_stores(a, [f"buffer_store_dwordx4 v[{24+4*k}:{27+4*k}], v{40+k}, {WSR}, s{S_T0+8} offen {{SC}}" for k in range(2)])
    wave_flag(a, WS_F2)

def read_misc(a, off, sreg):
    a(f"v_mov_b32 v2, {MISC + off}\nds_read_b32 v3, v2\ns_waitcnt lgkmcnt(0)\nv_readfirstlane_b32 s{sreg}, v3")
def write_misc(a, off, sreg):
    a(f"v_mov_b32 v2, {MISC + off}\nv_mov_b32 v3, s{sreg}\nds_write_b32 v2, v3\ns_waitcnt lgkmcnt(0)")

V_DUMMY = 200
def x_prefetch(a):
    d = V_DUMMY
    a(f"""
    v_lshlrev_b32 v4, 4, v0
    s_mul_i32 s{S_T0}, s{S_QQ}, 1000
    s_mul_i32 s{S_T0+1}, s{S_Q}, 33
    s_add_u32 s{S_T0}, s{S_T0}, s{S_T0+1}
    s_lshl_b32 s{S_T0+1}, s{S_LW}, 3
    s_add_u32 s{S_T0}, s{S_T0}, s{S_T0+1}
    s_sub_u32 s{S_T0}, s{S_T0}, 6
    s_lshl_b32 s{S_T0}, s{S_T0}, 10
    v_add_u32 v5, s{S_T0}, v4
    """)
    for k in range(9):
        a(f"buffer_load_dwordx4 v[{d}:{d+3}], v5, s[{SRD_X}:{SRD_X+3}], 0 offen {OPT['xpf']}")
        a(f"v_add_u32 v5, 1024, v5")

FE_W = 0
FE_A = 131072
def fe_c(a):
    a("v_and_b32 v2, 15, v0\nv_lshrrev_b32 v3, 4, v0")
    swz_of(a, 2, 4, S_T0+2)
    a(f"v_xor_b32 v4, v4, v3\nv_lshlrev_b32 v4, 4, v4\nv_lshl_add_u32 v8, v2, 7, v4\nv_add_u32 v8, {FE_A}, v8\nv_xor_b32 v9, 64, v8")
    a(f"s_lshl_b32 s{S_T0}, s{S_LW}, 15\nv_lshl_add_u32 v10, v0, 4, s{S_T0}")
    for r in range(16): a(f"v_mov_b32 v{32+r}, 0")
    def rd(sidx):
        du, h = sidx >> 1, sidx & 1
        reg = 64 + (sidx & 3) * 16
        out = [f"ds_read_b128 v[{reg+8+4*nbl}:{reg+11+4*nbl}], v10 offset:{nbl*16384 + sidx*1024}" for nbl in range(2)]
        out += [f"ds_read_b128 v[{reg+4*tb}:{reg+4*tb+3}], v{8+h} offset:{du*4096 + tb*2048}" for tb in range(2)]
        return out
    for ph in range(4):
        a("s_barrier")
        if ph == 0: stamp(a, 7)
        for sidx in range(4*ph, 4*ph+3):
            for r in rd(sidx): a(r)
        for j, sidx in enumerate(range(4*ph, 4*ph+4)):
            a(f"s_waitcnt lgkmcnt({[8, 8, 4, 0][j]})")
            reg = 64 + (sidx & 3) * 16
            mf = []
            for tb in range(2):
                for nbl in range(2):
                    acc = 32 + (tb*2 + nbl) * 4
                    mf.append(f"v_mfma_f32_16x16x32_bf16 v[{acc}:{acc+3}], v[{reg+8+4*nbl}:{reg+11+4*nbl}], v[{reg+4*tb}:{reg+4*tb+3}], v[{acc}:{acc+3}]")
            interleave(a, mf, rd(4*ph+3) if j == 0 else [])
    a("s_barrier")
    stamp(a, 8)
    a("s_nop 7")
    a(f"s_mov_b32 s{S_T0}, {f2h(C2LOG2E)}")
    for r in range(16): a(f"v_mul_f32 v{32+r}, s{S_T0}, v{32+r}")
    l0 = lab("Lr")
    a(f"s_cmp_eq_u32 s{S_UNS}, 0\ns_cbranch_scc0 {l0}")
    a(f"v_mov_b32 v6, {f2h(126.0)}\nv_mov_b32 v7, {f2h(-126.0)}")
    for r in range(16): a(f"v_med3_f32 v{32+r}, v{32+r}, v7, v6")
    for r in range(16): a(f"v_exp_f32 v{32+r}, v{32+r}")
    a(f"{l0}:")
    a(f"""
    v_lshlrev_b32 v4, 11, v2
    v_lshl_add_u32 v4, v3, 4, v4
    s_lshr_b32 s{S_T0}, s{S_Q}, 2
    s_lshl_b32 s{S_T0}, s{S_T0}, 16
    s_and_b32 s{S_T0+1}, s{S_Q}, 3
    s_lshl_b32 s{S_T0+1}, s{S_T0+1}, 9
    s_add_u32 s{S_T0}, s{S_T0}, s{S_T0+1}
    s_lshl_b32 s{S_T0+1}, s{S_LW}, 7
    s_add_u32 s{S_T0}, s{S_T0}, s{S_T0+1}
    s_lshl_b32 s{S_T0+1}, s{S_X}, 19
    s_add_u32 s{S_T0}, s{S_T0}, s{S_T0+1}
    s_add_u32 s{S_T0+8}, s{S_T0}, {WS_P}
    v_add_u32 v5, 0x8000, v4
    """)
    st = []
    for tb in range(2):
        for nbl in range(2):
            acc = 32 + (tb*2 + nbl) * 4
            st.append(f"buffer_store_dwordx4 v[{acc}:{acc+3}], v{4+tb}, {WSR}, s{S_T0+8} offen offset:{nbl*64} {{SC}}")
    local_stores(a, st)
    wave_flag(a, WS_F3)

def fe_l_wpre(a, sch):
    a(f"s_and_b32 s{S_T0}, s{S_Q}, 3\ns_lshl_b32 s{S_T0}, s{S_T0}, 17\ns_add_u32 s{S_T0}, s{S_T0}, {WS_WF}")
    a(f"s_lshl_b32 s{S_T0+1}, s{S_LW}, 15\ns_add_u32 s{S_T0}, s{S_T0}, s{S_T0+1}")
    a("v_lshlrev_b32 v4, 4, v0")
    for k in range(32):
        a(f"s_add_u32 m0, s{S_T0+1}, {FE_W + k*1024}")
        a("s_nop 0")
        a(f"buffer_load_dwordx4 v4, {WSR}, s{S_T0} offen sc1 lds")
        a(f"s_add_u32 s{S_T0}, s{S_T0}, 1024")
    sch.add("WF", 32)

def fe_l(a, sch):
    a(f"s_lshr_b32 s{S_T0}, s{S_Q}, 3\ns_lshl_b32 s{S_T0}, s{S_T0}, 7\ns_lshl_b32 s{S_T0+1}, s{S_X}, 9\ns_add_u32 s{S_T0}, s{S_T0}, s{S_T0+1}\ns_add_u32 s{S_T0}, s{S_T0}, {WS_F2}")
    a(f"v_and_b32 v6, 31, v0\nv_lshlrev_b32 v6, 2, v6\nv_add_u32 v6, s{S_T0}, v6")
    a(f"v_lshrrev_b32 v2, 3, v0\ns_lshl_b32 s{S_T0}, s{S_LW}, 3\nv_add_u32 v2, s{S_T0}, v2\nv_and_b32 v3, 7, v0")
    swz_of(a, 2, 4, S_T0+2)
    a(f"v_xor_b32 v4, v4, v3\nv_lshlrev_b32 v4, 4, v4\nv_lshl_add_u32 v4, v2, 10, v4")
    poll(a, 6, 7)
    stamp(a, 7)
    a(f"s_lshr_b32 s{S_T0}, s{S_Q}, 2\ns_lshl_b32 s{S_T0}, s{S_T0}, 15\ns_lshl_b32 s{S_T0+1}, s{S_X}, 18\ns_add_u32 s{S_T0}, s{S_T0}, s{S_T0+1}\ns_add_u32 s{S_T0}, s{S_T0}, {WS_F}")
    a(f"s_lshl_b32 s{S_T0+1}, s{S_LW}, 10")
    for du in range(8):
        a(f"s_add_u32 m0, s{S_T0+1}, {FE_A + du*4096}")
        a("s_nop 0")
        a(f"buffer_load_dwordx4 v4, {WSR}, s{S_T0} offen sc1 lds")
        a(f"s_add_u32 s{S_T0}, s{S_T0}, 128")
    for ph in range(4):
        a(f"s_waitcnt vmcnt({6 - 2*ph})")
        a("s_barrier")
    a("s_barrier")

J_ACT = 0
J_P   = 65536
J_Q   = 65536 + 16384
def joint_l(a):
    a(f"s_mov_b32 s{S_T0}, {WS_QE}\ns_cmp_eq_u32 s{S_UNS}, 0\ns_cselect_b32 s{S_T0}, s{S_T0}, {WS_QR}")
    a(f"s_lshl_b32 s{S_T0+1}, s{S_B}, 14\ns_add_u32 s{S_T0}, s{S_T0}, s{S_T0+1}")
    a(f"s_lshl_b32 s{S_T0+1}, s{S_LW}, 8\ns_add_u32 s{S_T0}, s{S_T0}, s{S_T0+1}")
    a(f"s_lshl_b32 s{S_T0+1}, s{S_LW}, 12")
    a("v_lshrrev_b32 v2, 4, v0\nv_and_b32 v3, 15, v0\nv_lshlrev_b32 v3, 4, v3\nv_lshl_add_u32 v4, v2, 10, v3")
    for j in range(4):
        a(f"s_add_u32 m0, s{S_T0+1}, {J_Q + j*1024}")
        a("s_nop 0")
        a(f"buffer_load_dwordx4 v4, {WSR}, s{S_T0} offen sc1 lds")
        a(f"s_add_u32 s{S_T0}, s{S_T0}, 4096")
    a(f"""
    v_lshrrev_b32 v2, 3, v0
    v_and_b32 v3, 7, v0
    v_and_b32 v5, 6, v2
    v_xor_b32 v3, v3, v5
    v_lshlrev_b32 v3, 4, v3
    v_lshl_add_u32 v5, v2, 11, v3
    s_lshr_b32 s{S_T0}, s{S_Q}, 2
    s_lshl_b32 s{S_T0}, s{S_T0}, 6
    s_lshl_b32 s{S_T0+2}, s{S_X}, 9
    s_add_u32 s{S_T0}, s{S_T0}, s{S_T0+2}
    s_add_u32 s{S_T0}, s{S_T0}, {WS_F3}
    v_and_b32 v6, 15, v0
    v_lshlrev_b32 v6, 2, v6
    v_add_u32 v9, s{S_T0}, v6
    s_waitcnt vmcnt(0)
    """)
    a(f"v_and_b32 v6, 7, v0\nv_lshlrev_b32 v6, 4, v6\ns_lshl_b32 s{S_T0}, s{S_LW}, 12\ns_add_u32 s{S_T0}, s{S_T0}, {J_Q}\nv_add_u32 v6, s{S_T0}, v6")
    for sidx in range(16):
        for hh in range(2):
            r = 128 + sidx*8 + hh*4
            a(f"ds_read_b128 v[{r}:{r+3}], v6 offset:{sidx*256 + hh*128}")
        if sidx % 4 == 3: a("s_waitcnt lgkmcnt(0)")
    poll(a, 9, 14)
    stamp(a, 9)
    a(f"""
    s_lshl_b32 s{S_T0}, s{S_X}, 19
    s_lshl_b32 s{S_T0+1}, s{S_Q}, 14
    s_add_u32 s{S_T0}, s{S_T0}, s{S_T0+1}
    s_add_u32 s{S_T0}, s{S_T0}, {WS_P}
    s_lshl_b32 s{S_T0+1}, s{S_LW}, 7
    s_add_u32 s{S_T0}, s{S_T0}, s{S_T0+1}
    s_lshl_b32 s{S_T0+1}, s{S_LW}, 10
    """)
    for k in range(4):
        a(f"s_add_u32 m0, s{S_T0+1}, {J_P + k*4096}")
        a("s_nop 0")
        a(f"buffer_load_dwordx4 v5, {WSR}, s{S_T0} offen sc1 lds")
        a(f"s_add_u32 s{S_T0}, s{S_T0}, 512")
    a(f"""
    v_lshrrev_b32 v2, 3, v0
    v_and_b32 v5, 6, v2
    s_lshl_b32 s{S_T0}, s{S_LW}, 1
    v_xor_b32 v5, s{S_T0}, v5
    v_lshlrev_b32 v5, 4, v5
    v_lshl_add_u32 v7, v2, 7, v5
    v_add_u32 v7, {J_P}, v7
    s_lshl_b32 s{S_T0}, s{S_LW}, 10
    v_lshlrev_b32 v8, 4, v0
    v_add_u32 v8, s{S_T0}, v8
    v_mov_b32 v10, 1.0
    v_mov_b32 v11, 1.0
    v_mov_b32 v12, -2.0
    v_mov_b32 v13, -2.0
    s_waitcnt vmcnt(0)
    s_barrier
    """)
    def prd(sidx):
        r = 16 + (sidx & 1) * 8
        return [f"ds_read_b128 v[{r}:{r+3}], v7 offset:{sidx*1024}", f"ds_read_b128 v[{r+4}:{r+7}], v7 offset:{sidx*1024 + 16}"]
    def body(safe):
        for r in prd(0): a(r)
        for sidx in range(16):
            if sidx + 1 < 16:
                for r in prd(sidx+1): a(r)
                a("s_waitcnt lgkmcnt(2)")
            else:
                a("s_waitcnt lgkmcnt(0)")
            p = 16 + (sidx & 1) * 8
            q = 128 + sidx * 8
            t = 32
            if safe:
                for e in range(0, 8, 2): a(f"v_pk_fma_f32 v[{t+e}:{t+e+1}], v[{p+e}:{p+e+1}], v[{q+e}:{q+e+1}], v[10:11]")
            else:
                for e in range(0, 8, 2): a(f"v_pk_add_f32 v[{t+e}:{t+e+1}], v[{p+e}:{p+e+1}], v[{q+e}:{q+e+1}]")
                for e in range(8): a(f"v_exp_f32 v{t+e}, v{t+e}")
                for e in range(0, 8, 2): a(f"v_pk_add_f32 v[{t+e}:{t+e+1}], v[{t+e}:{t+e+1}], v[10:11]")
            for e in range(8): a(f"v_rcp_f32 v{t+e}, v{t+e}")
            for e in range(0, 8, 2): a(f"v_pk_fma_f32 v[{t+e}:{t+e+1}], v[{t+e}:{t+e+1}], v[12:13], v[10:11]")
            for e in range(0, 8, 2): a(f"v_cvt_pk_bf16_f32 v{40+e//2}, v{t+e}, v{t+e+1}")
            a(f"ds_write_b128 v8, v[40:43] offset:{J_ACT + sidx*4096}")
            if sidx >= 1:
                a("s_waitcnt lgkmcnt(0)")
                a("s_barrier")
    l0, l1 = lab("Lu"), lab("Lu")
    a(f"s_cmp_eq_u32 s{S_UNS}, 0\ns_cbranch_scc0 {l0}")
    body(True)
    a(f"s_branch {l1}\n{l0}:")
    body(False)
    a(f"{l1}:")

def joint_c(a):
    ACC = [64, 128]; WR = 192; AF = 16
    a(f"s_lshl_b32 s{S_T0+4}, s{S_LW}, 17\ns_add_u32 s{S_T0+4}, s{S_T0+4}, {WS_WO}")
    a("v_lshlrev_b32 v4, 4, v0")
    def wld(n):
        r = WR + (n % 3) * 16
        out = [f"buffer_load_dwordx4 v[{r+4*b}:{r+4*b+3}], v4, {WSR}, s{S_T0+4} offen offset:{b*1024} sc1" for b in range(4)]
        out.append(f"s_add_u32 s{S_T0+4}, s{S_T0+4}, 4096")
        return out
    for n in range(2):
        for r in wld(n): a(r)
    a("v_and_b32 v2, 15, v0\nv_lshrrev_b32 v3, 4, v0\nv_lshlrev_b32 v5, 10, v3\nv_lshl_add_u32 v5, v2, 4, v5")
    a(f"""
    s_mul_i32 s{S_T0}, s{S_B}, 1000
    s_mul_i32 s{S_T0+1}, s{S_QQ}, 250
    s_add_u32 s{S_T0}, s{S_T0}, s{S_T0+1}
    s_lshl_b32 s{S_T0+1}, s{S_Q}, 3
    s_add_u32 s{S_T0}, s{S_T0}, s{S_T0+1}
    s_lshl_b32 s{S_T0}, s{S_T0}, 13
    s_lshl_b32 s{S_T0+2}, s{S_LW}, 8
    s_add_u32 s{S_T0}, s{S_T0}, s{S_T0+2}
    v_lshlrev_b32 v6, 12, v3
    v_lshl_add_u32 v6, v2, 3, v6
    v_add_u32 v6, s{S_T0}, v6
    s_sub_u32 s{S_T0+3}, 250, s{S_T0+1}
    s_lshl_b32 s{S_T0+3}, s{S_T0+3}, 3
    """)
    for rb in range(4):
        a(f"v_add_u32 v{8+rb}, {rb*16384}, v6")
        a(f"s_cmp_gt_u32 s{S_T0+3}, {rb*16}")
        a(f"s_cselect_b32 s{S_T0+2}, 0, {hex(OOB)}")
        a(f"v_or_b32 v{8+rb}, s{S_T0+2}, v{8+rb}")
    a("s_barrier")
    a("s_barrier")
    stamp(a, 10)
    def ard(sidx):
        r = AF + (sidx & 1) * 16
        return [f"ds_read_b128 v[{r+4*rb}:{r+4*rb+3}], v5 offset:{J_ACT + sidx*4096 + rb*256}" for rb in range(4)]
    def epi(p):
        acc = ACC[p]; out = []
        for rb in range(4):
            for r in range(4):
                tmp = 48 + 2 * ((rb*4 + r) & 3)
                regs = [acc + (rb*4 + b)*4 + r for b in range(4)]
                out.append(f"v_cvt_pk_bf16_f32 v{tmp}, v{regs[0]}, v{regs[1]}")
                out.append(f"v_cvt_pk_bf16_f32 v{tmp+1}, v{regs[2]}, v{regs[3]}")
                out.append(f"buffer_store_dwordx2 v[{tmp}:{tmp+1}], v{8+rb}, s[{SRD_OUT}:{SRD_OUT+3}], 0 offen offset:{r*1024 + p*128} {OPT['scout']}")
        return out
    for r in ard(0): a(r)
    vm = []
    for n in range(2): vm += [("W", n)] * 4
    pend = []
    for n in range(32):
        p, sidx = n >> 4, n & 15
        acc = ACC[p]
        ld = wld(n + 2) if n + 2 < 32 else []
        nxt = ard((sidx + 1) & 15) if n + 1 < 32 else []
        last = max(i for i, t in enumerate(vm) if t == ("W", n))
        a(f"s_waitcnt vmcnt({len(vm) - 1 - last}) lgkmcnt(0)")
        if p == 0 and 2 <= sidx + 1 <= 15:
            a("s_barrier")
        others = nxt + ld
        if p == 1 and pend:
            k = min(len(pend), 6)
            others += pend[:k]; pend = pend[k:]
        mf = []
        w = WR + (n % 3) * 16
        af = AF + (sidx & 1) * 16
        for rb in range(4):
            for b in range(4):
                d = acc + (rb*4 + b) * 4
                c = "0" if sidx == 0 else f"v[{d}:{d+3}]"
                mf.append(f"v_mfma_f32_16x16x32_bf16 v[{d}:{d+3}], v[{af+4*rb}:{af+4*rb+3}], v[{w+4*b}:{w+4*b+3}], {c}")
        interleave(a, mf, others)
        for o in others:
            if o.startswith("buffer_load"): vm.append(("W", n + 2))
            elif o.startswith("buffer_store"): vm.append(("S", 0))
        if n == 15:
            pend = ["s_nop 7"] + epi(0)
    assert not pend
    stamp(a, 11)
    a("s_nop 7\ns_nop 7")
    for o in epi(1): a(o)

def relayout_loads(a):
    U = S_T0 + 8
    a(f"s_mov_b32 s{U}, s{S_WG}")
    a(f"s_lshr_b32 s{U+1}, s{U}, 2\ns_and_b32 s{U+1}, s{U+1}, 15\ns_and_b32 s{U+2}, s{U}, 3")
    a(f"s_cmp_ge_u32 s{U}, 64")
    a(f"s_cselect_b32 s{SRD_T}, s{S_PWF}, s{S_PWO}")
    a(f"s_cselect_b32 s{SRD_T+1}, s{S_PWF+1}, s{S_PWO+1}")
    a(f"s_and_b32 s{SRD_T+1}, s{SRD_T+1}, 0xffff")
    a(f"s_mov_b32 s{SRD_T+2}, 524288\ns_mov_b32 s{SRD_T+3}, 0x20000")
    a(f"""
    v_and_b32 v2, 15, v0
    v_lshrrev_b32 v3, 4, v0
    v_lshlrev_b32 v4, 13, v3
    v_lshl_add_u32 v4, v2, 4, v4
    s_lshl_b32 s{U+3}, s{U+1}, 15
    s_lshl_b32 s{U+4}, s{U+2}, 8
    s_add_u32 s{U+3}, s{U+3}, s{U+4}
    v_add_u32 v4, s{U+3}, v4
    v_add_u32 v5, 4096, v4
    """)
    for e in range(8):
        a(f"buffer_load_dwordx4 v[{32+4*e}:{35+4*e}], v{4 + (e>>2)}, s[{SRD_T}:{SRD_T+3}], 0 offen offset:{(e&3)*1024}")

def relayout_finish(a):
    U = S_T0 + 8
    a(f"s_mov_b32 s{U}, s{S_WG}")
    a(f"s_lshr_b32 s{U+1}, s{U}, 2\ns_and_b32 s{U+1}, s{U+1}, 15\ns_and_b32 s{U+2}, s{U}, 3")
    a("v_and_b32 v2, 15, v0\nv_lshrrev_b32 v3, 4, v0")
    l0, l1 = lab("Lw"), lab("Lw")
    a(f"s_cmp_ge_u32 s{U}, 64\ns_cbranch_scc1 {l0}")
    a(f"""
    v_lshrrev_b32 v5, 3, v2
    v_lshlrev_b32 v5, 16, v5
    v_and_b32 v6, 7, v2
    v_lshlrev_b32 v6, 5, v6
    v_add_u32 v5, v5, v6
    v_lshl_add_u32 v5, v3, 8, v5
    s_lshl_b32 s{U+3}, s{U+2}, 17
    s_lshl_b32 s{U+4}, s{U+1}, 12
    s_add_u32 s{U+3}, s{U+3}, s{U+4}
    s_add_u32 s{U+3}, s{U+3}, {WS_WO}
    v_add_u32 v5, s{U+3}, v5
    """)
    for b in range(8): a(f"v_add_u32 v{24+b}, {(b&3)*1024 + (b>>2)*16}, v5")
    a(f"s_branch {l1}\n{l0}:")
    a(f"""
    v_lshrrev_b32 v5, 1, v2
    v_lshlrev_b32 v5, 14, v5
    v_and_b32 v6, 1, v2
    v_lshlrev_b32 v6, 7, v6
    v_add_u32 v5, v5, v6
    v_lshl_add_u32 v5, v3, 8, v5
    s_lshl_b32 s{U+3}, s{U+2}, 17
    s_lshl_b32 s{U+4}, s{U+1}, 10
    s_add_u32 s{U+3}, s{U+3}, s{U+4}
    s_add_u32 s{U+3}, s{U+3}, {WS_WF}
    v_add_u32 v5, s{U+3}, v5
    """)
    for b in range(8): a(f"v_add_u32 v{24+b}, {b*16}, v5")
    a(f"{l1}:")
    a(f"s_mov_b32 s{U+3}, 0x05040100\ns_mov_b32 s{U+4}, 0x07060302")
    a("s_waitcnt vmcnt(0)")
    for b in range(8):
        d = b >> 1
        sel = U + 3 + (b & 1)
        for m in range(4):
            lo, hi = 32 + 4*(2*m) + d, 32 + 4*(2*m+1) + d
            a(f"v_perm_b32 v{64+4*b+m}, v{hi}, v{lo}, s{sel}")
    for b in range(8):
        a(f"buffer_store_dwordx4 v[{64+4*b}:{67+4*b}], v{24+b}, {WSR}, 0 offen sc1")
    a(f"s_lshl_b32 s{U}, s{S_WG}, 2\ns_add_u32 s{U}, s{U}, {WS_RL}")
    a("s_waitcnt vmcnt(0)")
    flag_store(a, U, fast_variant=False)

GE_LDS = 17408
def ge_loads(a):
    U = S_T0 + 8
    a(f"s_sub_u32 s{U}, s{S_WG}, 224")
    mk_srd(a, SRD_T, S_PWG, 524288)
    a(f"""
    v_lshrrev_b32 v2, 1, v0
    v_and_b32 v3, 1, v0
    v_lshlrev_b32 v3, 4, v3
    v_lshl_add_u32 v2, v2, 10, v3
    s_lshl_b32 s{U+1}, s{U}, 5
    v_add_u32 v2, s{U+1}, v2
    s_mov_b32 s{U+2}, 0
    """)
    for k in range(16):
        a(f"s_mov_b32 m0, {GE_LDS + k*1024}")
        a(f"s_nop 0")
        a(f"buffer_load_dwordx4 v2, s[{SRD_T}:{SRD_T+3}], s{U+2} offen lds")
        a(f"s_add_u32 s{U+2}, s{U+2}, 32768")
    mk_srd(a, SRD_T, S_PG, 16384)
    a(f"""
    v_and_b32 v4, 15, v0
    v_lshrrev_b32 v5, 4, v0
    v_lshlrev_b32 v6, 10, v4
    v_lshl_add_u32 v6, v5, 4, v6
    """)
    for sidx in range(16):
        a(f"buffer_load_dwordx4 v[{64+4*sidx}:{67+4*sidx}], v6, s[{SRD_T}:{SRD_T+3}], 0 offen offset:{sidx*64}")

def ge_finish(a):
    U = S_T0 + 8
    a(f"s_sub_u32 s{U}, s{S_WG}, 224")
    a(f"""
    v_and_b32 v4, 15, v0
    v_lshrrev_b32 v5, 4, v0
    v_lshrrev_b32 v7, 2, v4
    v_lshl_add_u32 v7, v5, 3, v7
    v_lshlrev_b32 v7, 5, v7
    v_and_b32 v6, 3, v4
    v_lshl_add_u32 v7, v6, 3, v7
    v_add_u32 v7, {GE_LDS}, v7
    v_mov_b32 v32, 0
    v_mov_b32 v33, 0
    v_mov_b32 v34, 0
    v_mov_b32 v35, 0
    s_waitcnt vmcnt(0)
    """)
    for sidx in range(16):
        r = 128 + 4*sidx
        a(f"ds_read_b64_tr_b16 v[{r}:{r+1}], v7 offset:{sidx*1024}")
        a(f"ds_read_b64_tr_b16 v[{r+2}:{r+3}], v7 offset:{sidx*1024 + 128}")
        if sidx % 4 == 3: a("s_waitcnt lgkmcnt(0)")
    for sidx in range(16):
        r = 128 + 4*sidx
        a(f"v_mfma_f32_16x16x32_bf16 v[32:35], v[{r}:{r+3}], v[{64+4*sidx}:{67+4*sidx}], v[32:35]")
    a("s_nop 7\ns_nop 7")
    a(f"s_mov_b32 s{U+1}, {f2h(C2LOG2E)}")
    for r in range(4): a(f"v_mul_f32 v{32+r}, s{U+1}, v{32+r}")
    a(f"v_max3_f32 v40, abs(v32), abs(v33), abs(v34)\nv_max_f32 v40, abs(v35), v40")
    a(f"v_mov_b32 v42, {f2h(96.0)}")
    a(f"v_cmp_nle_f32 vcc, v40, v42")
    for r in range(4): a(f"v_exp_f32 v{36+r}, v{32+r}")
    a("s_nop 1")
    a(f"s_cmp_lg_u64 vcc, 0\ns_cselect_b32 s{U+3}, 1, 0")
    a(f"""
    v_lshrrev_b32 v9, 3, v4
    v_lshlrev_b32 v9, 14, v9
    v_and_b32 v10, 7, v4
    v_lshl_add_u32 v9, v10, 4, v9
    v_lshl_add_u32 v9, v5, 7, v9
    s_lshl_b32 s{U+1}, s{U}, 9
    v_add_u32 v9, s{U+1}, v9
    v_add_u32 v10, {WS_QR}, v9
    v_add_u32 v9, {WS_QE}, v9
    buffer_store_dwordx4 v[32:35], v10, {WSR}, 0 offen sc1
    buffer_store_dwordx4 v[36:39], v9, {WSR}, 0 offen sc1
    s_lshl_b32 s{U+1}, s{U}, 3
    s_add_u32 s{U+1}, s{U+1}, {WS_GE}
    v_mov_b32 v12, s{U+1}
    v_mov_b32 v10, s{S_TAG}
    v_mov_b32 v11, s{U+3}
    s_waitcnt vmcnt(0)
    s_mov_b64 s[{S_T0+14}:{S_T0+15}], exec
    s_mov_b64 exec, 1
    buffer_store_dwordx2 v[10:11], v12, {WSR}, 0 offen sc1
    s_mov_b64 exec, s[{S_T0+14}:{S_T0+15}]
    """)

def l_setup_w(a):
    a(f"""
    v_lshrrev_b32 v4, 3, v0
    v_lshrrev_b32 v5, 1, v4
    v_and_b32 v5, 1, v5
    s_and_b32 s{S_T0}, s{S_LW}, 1
    s_lshl_b32 s{S_T0}, s{S_T0}, 1
    v_or_b32 v5, s{S_T0}, v5
    v_lshlrev_b32 v5, 1, v5
    v_and_b32 v6, 7, v0
    v_xor_b32 v6, v6, v5
    v_lshlrev_b32 v6, 4, v6
    s_lshl_b32 s{S_T0}, s{S_LW}, 3
    v_add_u32 v4, s{S_T0}, v4
    v_lshl_add_u32 v{V_LWV}, v4, 10, v6
    """)

def l_setup_a(a, c, row_base_sgpr, lo_valid, hi_valid):
    na = (c.nA + 3) // 4
    a(f"v_lshrrev_b32 v2, 3, v0\nv_and_b32 v3, 7, v0")
    a(f"s_lshl_b32 s{S_T0}, s{S_LW}, 3\ns_mov_b32 s{S_T0+1}, {c.MAGIC}\ns_mov_b32 s{S_T0+2}, {hex(SWZ_TBL)}")
    a(f"v_mov_b32 v7, {hex(OOB)}\nv_add_u32 v4, s{S_T0}, v2")
    for k in range(na):
        a(f"""
        v_mul_u32_u24 v5, s{S_T0+1}, v4
        v_lshrrev_b32 v5, 16, v5
        v_mul_u32_u24 v6, {c.RS}, v5
        v_sub_u32 v6, v4, v6
        v_and_b32 v20, 3, v5
        v_lshl_add_u32 v20, v6, 2, v20
        v_lshrrev_b32 v21, 2, v5
        v_lshl_add_u32 v20, v20, 1, v21
        v_add_u32 v20, s{row_base_sgpr}, v20
        v_lshlrev_b32 v21, 1, v6
        v_and_b32 v21, 28, v21
        v_lshrrev_b32 v21, v21, s{S_T0+2}
        v_and_b32 v21, 7, v21
        v_xor_b32 v21, v21, v3
        v_lshlrev_b32 v21, 4, v21
        v_lshl_add_u32 v21, v20, 10, v21
        v_subrev_u32 v22, {lo_valid}, v20
        v_cmp_gt_u32 vcc, {hi_valid}, v22
        v_cndmask_b32 v21, v7, v21, vcc
        """) if False else None
        a(f"""
        v_mul_u32_u24 v5, s{S_T0+1}, v4
        v_lshrrev_b32 v5, 16, v5
        v_mul_u32_u24 v6, {c.RS}, v5
        v_sub_u32 v6, v4, v6
        v_and_b32 v20, 3, v5
        v_lshl_add_u32 v20, v6, 2, v20
        v_lshrrev_b32 v21, 2, v5
        v_lshl_add_u32 v20, v20, 1, v21
        v_add_u32 v20, s{row_base_sgpr}, v20
        v_subrev_u32 v22, {lo_valid}, v20
        v_cmp_gt_u32 vcc, {hi_valid}, v22
        v_lshlrev_b32 v21, 1, v6
        v_and_b32 v21, 28, v21
        v_lshrrev_b32 v21, v21, s{S_T0+2}
        v_and_b32 v21, 7, v21
        v_xor_b32 v21, v21, v3
        v_lshlrev_b32 v21, 4, v21
        v_lshl_add_u32 v21, v20, 10, v21
        v_cndmask_b32 v{V_LA+k}, v7, v21, vcc
        """)
        if 8 * (4*k + 3) + 7 >= 8 * c.RS:
            a(f"v_cmp_gt_u32 vcc, {8*c.RS}, v4\ns_nop 1\nv_cndmask_b32 v{V_LA+k}, v7, v{V_LA+k}, vcc")
        if k + 1 < na: a("v_add_u32 v4, 32, v4")

def l_issue_A(a, c, srdA, pol):
    na = (c.nA + 3) // 4
    a(f"s_lshl_b32 s{S_T0}, s{S_LW}, 10\ns_add_u32 s{S_T0}, s{S_T0}, s{S_LSA}")
    for k in range(na):
        extra = (4 * k + 3 >= c.nA)
        if extra:
            l0 = lab("Lx")
            a(f"s_cmp_lt_u32 s{S_LW}, {c.nA - 4 * k}\ns_cbranch_scc0 {l0}")
        a(f"s_add_u32 m0, s{S_T0}, {k*4096}")
        a("s_nop 0")
        a(f"buffer_load_dwordx4 v{V_LA+k}, s[{srdA}:{srdA+3}], s{S_OFA} offen {pol} lds")
        if extra: a(f"{l0}:")
    step = c.AB if c.idx == 1 else 2 * c.AB
    a(f"s_add_u32 s{S_LSA}, s{S_LSA}, {step}")
    a(f"s_cmp_ge_u32 s{S_LSA}, {c.RA * c.AB}")
    a(f"s_cselect_b32 s{S_T0}, {c.RA * c.AB}, 0")
    a(f"s_sub_u32 s{S_LSA}, s{S_LSA}, s{S_T0}")
    a(f"s_add_u32 s{S_OFA}, s{S_OFA}, 128")

def l_issue_W(a, c, srdW):
    a(f"s_lshl_b32 s{S_T0}, s{S_LW}, 10\ns_add_u32 s{S_T0}, s{S_T0}, s{S_LSW}\ns_mov_b32 s{S_T0+1}, s{S_OFW}")
    for tap in range(5):
        a(f"s_add_u32 m0, s{S_T0}, {c.WOFF + tap*4096}")
        if tap: a(f"s_add_u32 s{S_T0+1}, s{S_T0+1}, 524288")
        else: a("s_nop 0")
        a(f"buffer_load_dwordx4 v{V_LWV}, s[{srdW}:{srdW+3}], s{S_T0+1} offen lds")
    a(f"s_add_u32 s{S_LSW}, s{S_LSW}, {c.WB}")
    a(f"s_cmp_ge_u32 s{S_LSW}, {c.RW * c.WB}")
    a(f"s_cselect_b32 s{S_LSW}, 0, s{S_LSW}")
    a(f"s_add_u32 s{S_OFW}, s{S_OFW}, 32768")

def only(a, cond_lines, body):
    l0 = lab("Lo")
    a(cond_lines)
    a(f"s_cbranch_scc0 {l0}")
    body()
    a(f"{l0}:")

def emit():
    c1, c2 = Conv(1), Conv(2)
    a = Asm()
    kernel_begin(a, KN)
    a(f"s_cmp_ge_u32 s{S_WG}, 256\ns_cbranch_scc1 L_end")
    load_ptrs(a)
    if OPT["codepf"]:
        a("s_getpc_b64 s[4:5]")
        a("L_pc_here:")
        a(f"s_lshr_b32 s6, s{S_WG}, 3")
        a("s_lshl_b32 s6, s6, 3")
        a("v_lshrrev_b32 v1, 6, v0")
        a("v_add_u32 v1, s6, v1")
        a("v_and_b32 v1, 63, v1")
        a("v_lshlrev_b32 v1, 10, v1")
        a("v_and_b32 v2, 63, v0")
        a("v_lshl_add_u32 v1, v2, 4, v1")
        a(f"v_min_u32 v1, CODE_LAST, v1")
        a(f"global_load_dwordx4 v[{V_DUMMY+4}:{V_DUMMY+7}], v1, s[4:5]")
    stamp(a, 0)
    if OPT["dbg"]:
        a("s_memrealtime s[74:75]\ns_waitcnt lgkmcnt(0)\ns_mov_b32 s76, s74")
    ids(a)
    a(f"s_lshr_b32 s{S_M}, s{S_Q}, 3\ns_and_b32 s{S_N}, s{S_Q}, 7")
    a("s_waitcnt lgkmcnt(0)")
    mk_srd(a, SRD_WS, S_PWS, 0x10000000)
    a(f"s_mul_i32 s{S_T0}, s{S_B}, 4096000")
    mk_srd(a, SRD_X, S_PX, 4096000, add=f"s{S_T0}")
    mk_srd(a, SRD_W, S_PW1, 2621440)
    mk_srd(a, SRD_OUT, S_POUT, 16384000)
    a(f"s_cmp_ge_u32 s{S_WAVE}, 4\ns_cbranch_scc1 L_Lwaves")
    def nonce_load():
        a(f"v_mov_b32 v30, {WS_NONCE}\nbuffer_load_dword v31, v30, {WSR}, 0 offen sc1")
    only(a, f"s_cmp_eq_u32 s{S_LW}, 3", nonce_load)
    def zero_inbox():
        a(f"v_lshlrev_b32 v2, 2, v0\nv_add_u32 v2, {MISC}, v2\nv_mov_b32 v3, 0\nds_write_b32 v2, v3\ns_waitcnt lgkmcnt(0)")
    only(a, f"s_cmp_eq_u32 s{S_LW}, 0", zero_inbox)
    G.conv_c_setup(a, c1)
    a("s_barrier")
    def nonce_pub():
        a("s_waitcnt vmcnt(0)")
        a(f"v_add_u32 v31, 1, v31\ns_nop 0\nv_readfirstlane_b32 s{S_TAG}, v31")
        a(f"s_getreg_b32 s{S_T0}, hwreg(HW_REG_XCC_ID, 0, 4)")
        a(f"s_lshl_b32 s{S_T0+1}, s{S_X}, 8\ns_lshl_b32 s{S_T0+2}, s{S_Q}, 3\ns_add_u32 s{S_T0+1}, s{S_T0+1}, s{S_T0+2}\ns_add_u32 s{S_T0+1}, s{S_T0+1}, {WS_G0}")
        a(f"v_mov_b32 v28, s{S_TAG}\nv_mov_b32 v29, s{S_T0}\nv_mov_b32 v30, s{S_T0+1}")
        a(f"s_mov_b64 s[{S_T0+14}:{S_T0+15}], exec\ns_mov_b64 exec, 1")
        a(f"buffer_store_dwordx2 v[28:29], v30, {WSR}, 0 offen sc1")
        a(f"s_mov_b64 exec, s[{S_T0+14}:{S_T0+15}]")
        write_misc(a, 0, S_TAG)
    only(a, f"s_cmp_eq_u32 s{S_LW}, 3", nonce_pub)
    if OPT["xpf"] is not None: x_prefetch(a)
    conv_c_loop(a, c1, 1)
    read_misc(a, 0, S_TAG)
    read_misc(a, 4, S_FAST)
    conv1_tail_c(a)
    stamp(a, 4)
    a(f"s_lshr_b32 s{S_GRP}, s{S_LW}, 1\ns_mul_i32 s{S_GRP}, s{S_GRP}, {c2.WB}")
    G.conv_c_setup(a, c2)
    a("s_barrier") if False else None
    b = Asm()
    a("s_barrier")
    stamp(a, 5)
    save = OPT["stamp"]; OPT["stamp"] = False
    conv_c_loop(b, c2, 0)
    OPT["stamp"] = save
    lines = b.lines
    i0 = next(i for i, l in enumerate(lines) if l.strip() == "s_barrier")
    a.lines += lines[i0+1:]
    stamp(a, 6)
    read_misc(a, 8, S_UNS)
    conv2_tail_c(a)
    fe_c(a)
    stamp(a, 9)
    joint_c(a)
    a("s_branch L_fin")
    a("L_Lwaves:")
    sch = LSched()
    nA1, nA2 = c1.nA // 4, c2.nA // 4
    iA = [0]; iW = [0]
    def A(c, srd, pol, tag):
        l_issue_A(a, c, srd, pol); sch.add((tag, "A", iA[0]), c.nA // 4); iA[0] += 1
    def W(c, tag):
        l_issue_W(a, c, SRD_W); sch.add((tag, "W", iW[0]), 5); iW[0] += 1
    l_setup_w(a)
    a(f"s_mov_b32 s{S_LSA}, 0\ns_mov_b32 s{S_LSW}, 0\ns_mov_b32 s{S_OFA}, 0\ns_lshl_b32 s{S_OFW}, s{S_N}, 7")
    W(c1, 1)
    a(f"s_mul_i32 s{S_T0+8}, s{S_QQ}, 1000\ns_lshl_b32 s{S_T0+9}, s{S_M}, 8\ns_add_u32 s{S_T0+8}, s{S_T0+8}, s{S_T0+9}\ns_sub_u32 s{S_T0+8}, s{S_T0+8}, 6")
    l_setup_a(a, c1, S_T0+8, 0, 4000)
    A(c1, SRD_X, OPT["xld"], 1)
    stamp(a, 1)
    a("s_barrier")
    W(c1, 1)
    need1 = lambda s: [(1, "A", s // 2), (1, "W", s)]
    a(f"s_waitcnt vmcnt({sch.wait_for(need1(0))})")
    a("s_barrier")
    stamp(a, 2)
    A(c1, SRD_X, OPT["xld"], 1); W(c1, 1); W(c1, 1)
    for s in range(c1.NST):
        if s + 1 < c1.NST:
            a(f"s_waitcnt vmcnt({min(63, sch.wait_for(need1(s+1)))})")
        a("s_barrier")
        if s % 2 == 1 and iA[0] < c1.NA: A(c1, SRD_X, OPT["xld"], 1)
        if iW[0] < c1.NU: W(c1, 1)
        if s == 2:
            mk_srd(a, SRD_T, S_PW2, 2621440)
            a(f"s_mul_i32 s{S_T0+2}, s{S_WG}, 12288\ns_mul_i32 s{S_T0+3}, s{S_LW}, 3072\ns_add_u32 s{S_T0+2}, s{S_T0+2}, s{S_T0+3}")
            a(f"v_lshl_add_u32 v4, v0, 4, s{S_T0+2}")
            for k in range(3): a(f"buffer_load_dwordx4 v[{V_DUMMY}:{V_DUMMY+3}], v4, s[{SRD_T}:{SRD_T+3}], 0 offen offset:{k*1024}")
            sch.add("pf", 3)
        if s == 3:
            read_misc(a, 0, S_TAG)
            a(f"s_lshl_b32 s{S_T0+1}, s{S_X}, 8\ns_add_u32 s{S_T0+1}, s{S_T0+1}, {WS_G0}")
            a(f"v_and_b32 v28, 31, v0\nv_lshlrev_b32 v28, 3, v28\nv_add_u32 v28, s{S_T0+1}, v28")
            def xcc_issue():
                a(f"buffer_load_dwordx2 v[26:27], v28, {WSR}, 0 offen sc1")
            only(a, f"s_cmp_eq_u32 s{S_LW}, 0", xcc_issue)
            mark1 = len(sch.ops)
        if s == 7:
            def xcc_check():
                a(f"s_waitcnt vmcnt({len(sch.ops) - mark1})")
                l0 = lab("Lc")
                a(f"s_mov_b32 s{S_T0+16}, 0\nv_cmp_ne_u32 vcc, s{S_TAG}, v26\ns_cbranch_vccz {l0}")
                poll(a, 28, 26, width=2)
                a(f"{l0}:")
                a(f"s_getreg_b32 s{S_T0}, hwreg(HW_REG_XCC_ID, 0, 4)")
                a(f"v_cmp_ne_u32 vcc, s{S_T0}, v27\ns_nop 4\ns_cmp_eq_u64 vcc, 0\ns_cselect_b32 s{S_FAST}, 1, 0")
                a(f"s_cmp_ge_u32 s{S_T0+16}, {SPIN_MAX}\ns_cselect_b32 s{S_FAST}, 0, s{S_FAST}")
                if OPT["force_slow"]: a(f"s_mov_b32 s{S_FAST}, 0")
                write_misc(a, 4, S_FAST)
            only(a, f"s_cmp_eq_u32 s{S_LW}, 0", xcc_check)
        if s == 8:
            only(a, f"s_cmp_lt_u32 s{S_WG}, 128\ns_cselect_b32 s{S_T0}, s{S_LW}, 0\ns_cmp_eq_u32 s{S_T0}, 1", lambda: relayout_loads(a))
        if s == 12:
            only(a, f"s_cmp_lt_u32 s{S_WG}, 128\ns_cselect_b32 s{S_T0}, s{S_LW}, 0\ns_cmp_eq_u32 s{S_T0}, 1", lambda: relayout_finish(a))
        if s == 13:
            only(a, f"s_cmp_ge_u32 s{S_WG}, 224\ns_cselect_b32 s{S_T0}, s{S_LW}, 0\ns_cmp_eq_u32 s{S_T0}, 2", lambda: ge_loads(a))
    stamp(a, 3)
    read_misc(a, 4, S_FAST)
    only(a, f"s_cmp_ge_u32 s{S_WG}, 224\ns_cselect_b32 s{S_T0}, s{S_LW}, 0\ns_cmp_eq_u32 s{S_T0}, 2", lambda: ge_finish(a))
    mk_srd(a, SRD_W, S_PW2, 2621440)
    a(f"s_lshl_b32 s{S_T0}, s{S_X}, 19\ns_add_u32 s{S_T0}, s{S_T0}, {WS_H}")
    mk_srd(a, SRD_X, S_PWS, 0x100000, add=f"s{S_T0}")
    iA[0] = 0; iW[0] = 0
    a(f"s_mov_b32 s{S_LSA}, 0\ns_mov_b32 s{S_LSW}, 0\ns_mov_b32 s{S_OFA}, 0\ns_lshl_b32 s{S_OFW}, s{S_N}, 7")
    W(c2, 2); W(c2, 2); W(c2, 2); W(c2, 2)
    a(f"s_lshl_b32 s{S_T0+8}, s{S_M}, 7")
    a(f"s_cmp_eq_u32 s{S_QQ}, 0\ns_cselect_b32 s{S_T0+10}, 2, 0")
    a(f"s_cmp_eq_u32 s{S_QQ}, 3\ns_cselect_b32 s{S_T0+11}, 0, 522\ns_add_u32 s{S_T0+11}, s{S_T0+11}, 502")
    a(f"s_sub_u32 s{S_T0+11}, s{S_T0+11}, s{S_T0+10}")
    l_setup_a(a, c2, S_T0+8, f"s{S_T0+10}", f"s{S_T0+11}")
    a(f"s_lshl_b32 s{S_T0}, s{S_M}, 3\nv_lshrrev_b32 v6, 2, v0\nv_add_u32 v6, s{S_T0}, v6\nv_min_u32 v6, 31, v6")
    a(f"v_lshlrev_b32 v6, 4, v6\nv_and_b32 v7, 3, v0\nv_lshl_add_u32 v6, v7, 2, v6")
    a(f"s_lshl_b32 s{S_T0}, s{S_X}, 9\ns_add_u32 s{S_T0}, s{S_T0}, {WS_F1}\nv_add_u32 v6, s{S_T0}, v6")
    poll(a, 6, 7)
    sch.ops = []
    stamp(a, 4)
    A(c2, SRD_X, "sc1", 2); A(c2, SRD_X, "sc1", 2)
    need2 = lambda s: [(2, "A", s)]
    a(f"s_waitcnt vmcnt({sch.wait_for([(2, 'A', 0)])})")
    a("s_barrier")
    stamp(a, 5)
    W(c2, 2); A(c2, SRD_X, "sc1", 2)
    for s in range(c2.NST):
        if s + 1 < c2.NST:
            tags = [(2, "A", s+1), (2, "W", 2*s+2), (2, "W", 2*s+3)]
            tags = [t for t in tags if t in sch.ops]
            a(f"s_waitcnt vmcnt({min(63, sch.wait_for(tags))})")
        a("s_barrier")
        if iW[0] < c2.NU: W(c2, 2)
        if iA[0] < c2.NA: A(c2, SRD_X, "sc1", 2)
        if iW[0] < c2.NU: W(c2, 2)
        if s == 1:
            a(f"v_lshlrev_b32 v28, 2, v0\nv_add_u32 v28, {WS_RL}, v28\nv_add_u32 v29, 256, v28")
            a(f"v_and_b32 v30, 31, v0\nv_lshlrev_b32 v30, 3, v30\nv_add_u32 v30, {WS_GE}, v30")
            def side_issue():
                a(f"buffer_load_dword v24, v28, {WSR}, 0 offen sc1\nbuffer_load_dword v25, v29, {WSR}, 0 offen sc1")
                a(f"buffer_load_dwordx2 v[26:27], v30, {WSR}, 0 offen sc1")
            only(a, f"s_cmp_eq_u32 s{S_LW}, 3", side_issue)
            mark2 = len(sch.ops)
        if s == 4:
            def side_check():
                a(f"s_waitcnt vmcnt({len(sch.ops) - mark2})")
                for (vv, va, w) in [(24, 28, 1), (25, 29, 1), (26, 30, 2)]:
                    l0 = lab("Lc")
                    a(f"v_cmp_ne_u32 vcc, s{S_TAG}, v{vv}\ns_cbranch_vccz {l0}")
                    poll(a, va, vv, width=w)
                    a(f"{l0}:")
                a(f"v_cmp_ne_u32 vcc, 0, v27\ns_nop 4\ns_cmp_lg_u64 vcc, 0\ns_cselect_b32 s{S_UNS}, 1, 0")
                write_misc(a, 8, S_UNS)
            only(a, f"s_cmp_eq_u32 s{S_LW}, 3", side_check)
        if s == 6:
            read_misc(a, 8, S_UNS)
    stamp(a, 6)
    fe_l_wpre(a, sch)
    fe_l(a, sch)
    stamp(a, 8)
    joint_l(a)
    stamp(a, 11)
    def nonce_update():
        for k in range(4):
            a(f"v_lshlrev_b32 v6, 3, v0\nv_add_u32 v6, {WS_G0 + k*512}, v6")
            poll(a, 6, 26, width=2)
        a(f"s_mov_b32 s{S_T0+8}, {WS_NONCE}")
        flag_store(a, S_T0+8, fast_variant=False)
    only(a, f"s_cmp_eq_u32 s{S_WG}, 0\ns_cselect_b32 s{S_T0}, s{S_LW}, 0\ns_cmp_eq_u32 s{S_T0}, 2", nonce_update)
    a("L_fin:")
    a("s_waitcnt vmcnt(0)")
    if OPT["dbg"]:
        def dbgw():
            a("s_memrealtime s[74:75]\ns_waitcnt lgkmcnt(0)")
            mk_srd(a, SRD_T, S_PDBG, 256)
            a(f"s_lshl_b32 s{S_T0}, s{S_WG}, 2\nv_mov_b32 v2, s{S_T0}\nv_mov_b32 v3, s76\nv_mov_b32 v4, s74")
            a(f"buffer_store_dword v3, v2, s[{SRD_T}:{SRD_T+3}], 0 offen\nbuffer_store_dword v4, v2, s[{SRD_T}:{SRD_T+3}], 0 offen offset:32")
            a("s_waitcnt vmcnt(0)")
        only(a, f"s_cmp_lt_u32 s{S_WG}, 8\ns_cselect_b32 s{S_T0}, s{S_WAVE}, 1\ns_cmp_eq_u32 s{S_T0}, 0", dbgw)
    stamp(a, 12)
    stamp_flush(a, 13, "L_stx")
    a("L_end:")
    a("s_endpgm")
    a("L_code_end:")
    if OPT["codepf"]:
        a.lines.insert(0, ".set CODE_LAST, L_code_end - L_pc_here - 16")
    return file_text([(None, (256,1,1), (512,1,1), 160*1024)], a.text(), [kernel_desc(KN, 256, 102)])

if __name__ == "__main__":
    for arg in sys.argv[2:]:
        if arg == "--stamp": OPT["stamp"] = True
        elif arg == "--cyc": OPT["cyc"] = True
        elif arg.startswith("--o="):
            k, v = arg[4:].split("=", 1)
            OPT[k] = None if v == "None" else (True if v == "True" else (False if v == "False" else v.replace("+", " ")))
    open(sys.argv[1], "w").write(emit())
```

```python
import sys
from asmlib import *
import gen as G
from gen import (f2h, mk_srd, load_ptrs, ids, Conv, swz_of, xfrag_read, wfrag_reads, group_reads, group_mfmas, interleave,
                 gelu_consts, gelu_block, LSched, C2LOG2E, OOB, SWZ_TBL,
                 WS_H, WS_F, WS_P, WS_WO, WS_WF, WS_QE, WS_QR,
                 S_WG, SRD_X, SRD_W, SRD_WS, SRD_OUT, SRD_T, S_PX, S_PW1, S_PW2, S_PG, S_PWF, S_PWG, S_PWO, S_POUT, S_PDBG, S_PWS,
                 S_X, S_Q, S_B, S_QQ, S_M, S_N, S_WAVE, S_LW, S_T0, S_CNT, S_GRP, S_UNS,
                 V_ACC, V_E0, V_E1, V_O, V_W, V_XA0, V_XA1, V_WA0, V_WA1, V_XB, V_WB0, V_WB1, S_SLOTA, S_SLOTW,
                 V_LA, V_LWV, S_OFA, S_OFW, S_LSA, S_LSW)

WS_NONCE = 0x0F30000
WS_G0    = 0x0F31000
WS_F1    = 0x0F32000
WS_F2    = 0x0F33000
WS_F3    = 0x0F34000
WS_RL    = 0x0F35000
WS_GE    = 0x0F36000
WS_STAMP = 0x1000000
S_TAG, S_FAST = 86, 87
MISC = 163584
INBOX = MISC + 64
SPIN_MAX = 40000

OPT = dict(seqpre=False, sidec=True, stg=False, tailst=False, cloopcnt=True, hot=False, vtouch=True, sidelate=True, npre=2, t2=False, tx=False, gelupk=True, lprio=0, pace=3, nepi=6, steps=False, wstep=4096, jst=False, wold='', nomfma=False, nowl=False, pk=False, ostage=True, twist=True, wowarm=True, wtouch=None, qperm=0, dbg=False, codepf=True, stamp=False, cyc=False, xpf=None, xld="", scout="sc1 nt", scl_fast="", force_slow=False)
S_ST = 88
def tstamp(a, i, which=1):
    if OPT["tailst"] and int(OPT["tailst"]) == which: stamp(a, i, True)
def stamp(a, i, force=False):
    if OPT["tailst"] and i in (7, 8, 9, 13) and not force: return
    if OPT["stamp"]:
        a(f"{'s_memtime' if OPT['cyc'] else 's_memrealtime'} s[74:75]")
        a("s_waitcnt lgkmcnt(0)")
        a(f"s_mov_b32 s{S_ST+i}, s74")
def stamp_flush(a, n, lab):
    if not OPT["stamp"]: return
    a(f"s_and_b32 s{S_T0}, s{S_WAVE}, 3\ns_cmp_eq_u32 s{S_T0}, 0\ns_cbranch_scc0 {lab}")
    a(f"s_lshr_b32 s{S_T0}, s{S_WAVE}, 2\ns_lshl_b32 s{S_T0}, s{S_T0}, 6")
    a(f"s_lshl_b32 s{S_T0+1}, s{S_WG}, 7\ns_add_u32 s{S_T0}, s{S_T0}, s{S_T0+1}")
    a(f"s_add_u32 s{S_T0}, s{S_T0}, {WS_STAMP}")
    for i in range(n):
        a(f"v_mov_b32 v2, s{S_ST+i}\nv_mov_b32 v3, s{S_T0}")
        a(f"buffer_store_dword v2, v3, s[{SRD_WS}:{SRD_WS+3}], 0 offen offset:{4*i}")
    a("s_waitcnt vmcnt(0)")
    a(f"{lab}:")

LABN = [0]
def lab(p="L"):
    LABN[0] += 1
    return f"{p}_{LABN[0]}"

WSR = f"s[{SRD_WS}:{SRD_WS+3}]"

def poll(a, vaddr, vtmp, width=1):
    l0, l1 = lab("Lp"), lab("Lp")
    a(f"s_mov_b32 s{S_T0+16}, 0")
    a(f"{l0}:")
    if width == 1: a(f"buffer_load_dword v{vtmp}, v{vaddr}, {WSR}, 0 offen sc1")
    else: a(f"buffer_load_dwordx2 v[{vtmp}:{vtmp+1}], v{vaddr}, {WSR}, 0 offen sc1")
    a(f"s_add_u32 s{S_T0+16}, s{S_T0+16}, 1")
    a(f"s_cmp_ge_u32 s{S_T0+16}, {SPIN_MAX}")
    a(f"s_cbranch_scc1 {l1}")
    a("s_waitcnt vmcnt(0)")
    a(f"v_cmp_ne_u32 vcc, s{S_TAG}, v{vtmp}")
    a(f"s_cbranch_vccnz {l0}")
    a(f"{l1}:")
    a("s_waitcnt vmcnt(0)")

def flag_store(a, off_sgpr, fast_variant=True):
    a(f"v_mov_b32 v2, s{S_TAG}\nv_mov_b32 v3, s{off_sgpr}")
    a(f"s_mov_b64 s[{S_T0+14}:{S_T0+15}], exec\ns_mov_b64 exec, 1")
    if fast_variant:
        l0, l1 = lab("Lf"), lab("Lf")
        a(f"s_cmp_eq_u32 s{S_FAST}, 0\ns_cbranch_scc1 {l0}")
        a(f"buffer_store_dword v2, v3, {WSR}, 0 offen")
        a(f"s_branch {l1}\n{l0}:")
        a(f"buffer_store_dword v2, v3, {WSR}, 0 offen sc1")
        a(f"{l1}:")
    else:
        a(f"buffer_store_dword v2, v3, {WSR}, 0 offen sc1")
    a(f"s_mov_b64 exec, s[{S_T0+14}:{S_T0+15}]")

def local_stores(a, instrs):
    l0, l1 = lab("Ls"), lab("Ls")
    a(f"s_cmp_eq_u32 s{S_FAST}, 0\ns_cbranch_scc1 {l0}")
    for i in instrs: a(i.replace("{SC}", OPT["scl_fast"]))
    a(f"s_branch {l1}\n{l0}:")
    for i in instrs: a(i.replace("{SC}", "sc1"))
    a(f"{l1}:")

def pair_sync(a, event, partner_xor):
    l0, l1 = lab("Ly"), lab("Ly")
    a("s_waitcnt lgkmcnt(0)")
    a(f"s_xor_b32 s{S_T0+12}, s{S_LW}, {partner_xor}")
    a(f"s_lshl_b32 s{S_T0+12}, s{S_T0+12}, 2\ns_add_u32 s{S_T0+12}, s{S_T0+12}, {INBOX + event*16}")
    a(f"s_lshl_b32 s{S_T0+13}, s{S_LW}, 2\ns_add_u32 s{S_T0+13}, s{S_T0+13}, {INBOX + event*16}")
    a(f"v_mov_b32 v2, s{S_T0+12}\nv_mov_b32 v3, 1\nds_write_b32 v2, v3")
    a(f"v_mov_b32 v2, s{S_T0+13}\ns_mov_b32 s{S_T0+16}, 0")
    a(f"{l0}:")
    a("ds_read_b32 v3, v2")
    a(f"s_add_u32 s{S_T0+16}, s{S_T0+16}, 1\ns_cmp_ge_u32 s{S_T0+16}, {SPIN_MAX*8}\ns_cbranch_scc1 {l1}")
    a("s_waitcnt lgkmcnt(0)")
    a("v_cmp_eq_u32 vcc, 0, v3")
    a(f"s_cbranch_vccnz {l0}")
    a(f"{l1}:")
    a("s_waitcnt lgkmcnt(0)")

def conv_c_loop(a, c, st0):
    t = c.tag
    stamp(a, st0)
    a("s_barrier")
    stamp(a, st0 + 1)
    for r in group_reads(c, V_E0, 0, 0): a(r)
    for r in group_reads(c, V_E0, 1, 1): a(r)
    a(f"s_mov_b32 s{S_CNT}, 0")
    a(f"L_{t}_cloop:")
    SETS = [[V_WA0, V_XA0, V_WA1, V_XA1], [18, 19, 20, 21]]
    def use(r, st):
        return (r.replace(f", v{V_WA0} ", f", v{st[0]} ").replace(f", v{V_XA0} ", f", v{st[1]} ")
                 .replace(f", v{V_WA1} ", f", v{st[2]} ").replace(f", v{V_XA1} ", f", v{st[3]} "))
    for par in range(2):
        es, en = (V_E0, V_E1) if par == 0 else (V_E1, V_E0)
        cur, nxt = SETS[par], SETS[1 - par]
        a("s_waitcnt lgkmcnt(8)")
        interleave(a, group_mfmas(es, 0, 0), [use(r, cur) for r in group_reads(c, es, 2, 2)])
        a("s_waitcnt lgkmcnt(5)")
        sc = []
        if c.idx == 1:
            sc += [f"s_add_u32 s{S_SLOTW}, s{S_SLOTW}, {c.WB}", f"s_cmp_ge_u32 s{S_SLOTW}, {c.RW * c.WB}", f"s_cselect_b32 s{S_SLOTW}, 0, s{S_SLOTW}"]
            if par == 1:
                if c.RA == 2: sc += [f"s_xor_b32 s{S_SLOTA}, s{S_SLOTA}, {c.AB}"]
                else: sc += [f"s_add_u32 s{S_SLOTA}, s{S_SLOTA}, {c.AB}", f"s_cmp_ge_u32 s{S_SLOTA}, {c.RA * c.AB}", f"s_cselect_b32 s{S_SLOTA}, 0, s{S_SLOTA}"]
            xb = V_XB + (2 if par == 0 else 0)
        else:
            sc += [f"s_add_u32 s{S_SLOTW}, s{S_SLOTW}, {2 * c.WB}", f"s_add_u32 s{S_T0}, s{S_SLOTW}, s{S_GRP}",
                   f"s_cmp_ge_u32 s{S_T0}, {c.RW * c.WB}", f"s_cselect_b32 s{S_T0}, {c.RW * c.WB}, 0", f"s_sub_u32 s{S_SLOTW}, s{S_SLOTW}, s{S_T0}",
                   f"s_add_u32 s{S_SLOTA}, s{S_SLOTA}, {2 * c.AB}", f"s_cmp_ge_u32 s{S_SLOTA}, {c.RA * c.AB}",
                   f"s_cselect_b32 s{S_T0}, {c.RA * c.AB}, 0", f"s_sub_u32 s{S_SLOTA}, s{S_SLOTA}, s{S_T0}"]
            xb = V_XB
        rd = [use(r, cur) for r in group_reads(c, es, 3, 3)]
        mf = group_mfmas(es, 1, 1)
        k = 0
        for i, m in enumerate(mf):
            a(m)
            if i < len(rd): a(rd[i])
            else:
                while k < len(sc) and k < 3 * (i - len(rd) + 1): a(sc[k]); k += 1
        while k < len(sc): a(sc[k]); k += 1
        a("s_waitcnt lgkmcnt(5)")
        rd = [use(r, cur) for r in group_reads(c, es, 4, 4)]
        nx = [f"v_add_u32 v{nxt[0]}, s{S_SLOTW}, v{V_WB0}", f"v_add_u32 v{nxt[1]}, s{S_SLOTA}, v{xb}",
              f"v_add_u32 v{nxt[2]}, s{S_SLOTW}, v{V_WB1}", f"v_add_u32 v{nxt[3]}, s{S_SLOTA}, v{xb+1}"]
        mf = group_mfmas(es, 2, 2)
        oth = rd + nx[:3]
        for i, m in enumerate(mf):
            a(m)
            if i < len(oth): a(oth[i])
            if i == len(mf) - 2: a(nx[3])
        if OPT["cloopcnt"] and par == 1:
            pass
        a("s_waitcnt lgkmcnt(0)")
        a("s_barrier")
        interleave(a, group_mfmas(es, 3, 3), [use(r, nxt) for r in group_reads(c, en, 0, 0)])
        r1 = [use(r, nxt) for r in group_reads(c, en, 1, 1)]
        if par == 1:
            mf = group_mfmas(es, 4, 4)
            interleave(a, mf[:-1], r1[:-1])
            a(r1[-1]) if len(r1) >= len(mf) else None
            a(f"s_add_u32 s{S_CNT}, s{S_CNT}, 2")
            a(f"s_cmp_lt_u32 s{S_CNT}, {c.NST}")
            a(mf[-1])
        else:
            interleave(a, group_mfmas(es, 4, 4), r1)
            if c.idx == 2 and OPT["sidec"]:
                l2 = lab("Le")
                a(f"s_cmp_eq_u32 s{S_CNT}, 0\ns_cbranch_scc0 {l2}")
                side_flag_deferred(a)
                a(f"{l2}:")
    a(f"s_cbranch_scc1 L_{t}_cloop")
    a("s_waitcnt lgkmcnt(0)")
    stamp(a, st0 + 2)

V_TW0, V_TW1, V_TR = 236, 237, 238
V_SO = 240
V_GC = 244
V_XW, V_XR = 250, 251
S_GB, S_FA = 73, 72
S_FA = 76

def tbuf_write_addr(a, base, wm_shift):
    a(f"""
    v_and_b32 v2, 15, v0
    v_lshrrev_b32 v3, 4, v0
    s_and_b32 s{S_T0}, s{S_LW}, 1
    s_lshl_b32 s{S_T0}, s{S_T0}, 3
    v_or_b32 v4, s{S_T0}, v3
    v_and_b32 v5, 14, v2
    v_xor_b32 v4, v4, v5
    v_lshlrev_b32 v4, 3, v4
    v_lshl_add_u32 v{V_TW0}, v2, 9, v4
    """)
    if wm_shift:
        a(f"s_lshr_b32 s{S_T0}, s{S_LW}, 1\ns_lshl_b32 s{S_T0}, s{S_T0}, 13\nv_add_u32 v{V_TW0}, s{S_T0}, v{V_TW0}")
    a(f"v_xor_b32 v{V_TW1}, 32, v{V_TW0}")
    if base: a(f"v_add_u32 v{V_TW0}, {base}, v{V_TW0}\nv_add_u32 v{V_TW1}, {base}, v{V_TW1}")

def flag_addr(a, base):
    a(f"s_lshl_b32 s{S_FA}, s{S_X}, 9\ns_lshl_b32 s{S_T0+9}, s{S_Q}, 4\ns_add_u32 s{S_FA}, s{S_FA}, s{S_T0+9}")
    a(f"s_lshl_b32 s{S_T0+9}, s{S_LW}, 2\ns_add_u32 s{S_FA}, s{S_FA}, s{S_T0+9}\ns_add_u32 s{S_FA}, s{S_FA}, {base}")

def wave_flag(a):
    a("s_waitcnt vmcnt(0)")
    flag_store(a, S_FA)

def gelu_block2(a, src, n, tmp, vc, dst):
    if OPT["gelupk"]: return gelu_block(a, src, n, tmp, vc, dst)
    for p in range(n): a(f"v_mul_f32 v{tmp+p}, v{src+p}, v{src+p}")
    for p in range(n): a(f"v_fma_f32 v{tmp+p}, v{tmp+p}, v{vc}, v{vc+2}")
    for p in range(n): a(f"v_mul_f32 v{tmp+p}, v{tmp+p}, v{src+p}")
    for p in range(n): a(f"v_exp_f32 v{tmp+p}, v{tmp+p}")
    for p in range(n): a(f"v_add_f32 v{tmp+p}, 1.0, v{tmp+p}")
    for p in range(n): a(f"v_rcp_f32 v{tmp+p}, v{tmp+p}")
    for p in range(n): a(f"v_mul_f32 v{tmp+p}, v{tmp+p}, v{src+p}")
    for p in range(0, n, 2): a(f"v_cvt_pk_bf16_f32 v{dst+p//2}, v{tmp+p}, v{tmp+p+1}")

def conv1_tail_pre(a):
    tbuf_write_addr(a, 0, True)
    gelu_consts(a, V_GC)
    a(f"s_lshl_b32 s{S_T0}, s{S_LW}, 12\nv_lshl_add_u32 v{V_TR}, v0, 4, s{S_T0}")
    a("v_and_b32 v5, 7, v0\nv_lshrrev_b32 v6, 3, v0\nv_lshlrev_b32 v6, 10, v6")
    for k in range(4):
        a(f"s_and_b32 s{S_T0+2}, s{S_LW}, 1\ns_lshl_b32 s{S_T0+2}, s{S_T0+2}, 2\ns_add_u32 s{S_T0+2}, s{S_T0+2}, {k}")
        a(f"v_xor_b32 v7, s{S_T0+2}, v5\nv_lshl_add_u32 v7, v7, 4, v6\nv_add_u32 v{V_SO+k}, {k*8192}, v7")
    a(f"""
    s_lshl_b32 s{S_GB}, s{S_X}, 19
    s_lshl_b32 s{S_T0+9}, s{S_M}, 17
    s_add_u32 s{S_GB}, s{S_GB}, s{S_T0+9}
    s_lshl_b32 s{S_T0+9}, s{S_N}, 7
    s_add_u32 s{S_GB}, s{S_GB}, s{S_T0+9}
    s_lshl_b32 s{S_T0+9}, s{S_LW}, 15
    s_add_u32 s{S_GB}, s{S_GB}, s{S_T0+9}
    s_add_u32 s{S_GB}, s{S_GB}, {WS_H}
    """)
    flag_addr(a, WS_F1)

def read_tag_fast(a):
    a(f"v_mov_b32 v2, {MISC}\nds_read_b64 v[4:5], v2\ns_waitcnt lgkmcnt(0)\nv_readfirstlane_b32 s{S_TAG}, v4\nv_readfirstlane_b32 s{S_FAST}, v5")

def conv1_tail_c(a):
    a(f"v_mov_b32 v2, {MISC}\nds_read_b64 v[4:5], v2")
    a("s_nop 4")
    for jj in range(4):
        gelu_block2(a, V_ACC + jj*8, 8, 64, V_GC, 72 + jj*4)
        if jj == 0: a(f"v_readfirstlane_b32 s{S_TAG}, v4\nv_readfirstlane_b32 s{S_FAST}, v5") if False else None
        for nb in range(2):
            r = 72 + jj*4 + nb*2
            a(f"ds_write_b64 v{V_TW1 if nb else V_TW0}, v[{r}:{r+1}] offset:{jj*128}")
    tstamp(a, 7)
    pair_sync(a, 0, 1)
    a(f"v_readfirstlane_b32 s{S_TAG}, v4\nv_readfirstlane_b32 s{S_FAST}, v5")
    tstamp(a, 8)
    for k in range(4): a(f"ds_read_b128 v[{24+4*k}:{27+4*k}], v{V_TR} offset:{k*1024}")
    a("s_waitcnt lgkmcnt(0)")
    tstamp(a, 9)
    local_stores(a, [f"buffer_store_dwordx4 v[{24+4*k}:{27+4*k}], v{V_SO+k}, {WSR}, s{S_GB} offen {{SC}}" for k in range(4)])
    c_stores_issued(a)
    if OPT["tailst"] and int(OPT["tailst"]) == 1:
        a("s_waitcnt vmcnt(0)"); tstamp(a, 13)
    wave_flag(a)

def c_stores_issued(a):
    if not OPT["seqpre"]: return
    a(f"s_lshl_b32 s{S_T0}, s{S_LW}, 2\ns_add_u32 s{S_T0}, s{S_T0}, {INBOX + 64}\nv_mov_b32 v2, s{S_T0}\nv_mov_b32 v3, 1\nds_write_b32 v2, v3")

C2_T = 131072
C2_X = C2_T + 8192
def conv2_tail_pre(a):
    a(f"s_lshl_b32 s{S_T0}, s{S_LW}, 12\ns_add_u32 s{S_T0}, s{S_T0}, {C2_X}\nv_lshl_add_u32 v{V_XW}, v0, 4, s{S_T0}")
    a(f"s_xor_b32 s{S_T0}, s{S_LW}, 2\ns_lshl_b32 s{S_T0}, s{S_T0}, 12\ns_add_u32 s{S_T0}, s{S_T0}, {C2_X}\nv_lshl_add_u32 v{V_XR}, v0, 4, s{S_T0}")
    tbuf_write_addr(a, C2_T, False)
    gelu_consts(a, V_GC)
    a(f"s_lshr_b32 s{S_T0}, s{S_LW}, 1\ns_lshl_b32 s{S_T0}, s{S_T0}, 8")
    a(f"v_add_u32 v{V_TW0}, s{S_T0}, v{V_TW0}\nv_add_u32 v{V_TW1}, s{S_T0}, v{V_TW1}")
    a(f"""
    v_lshrrev_b32 v2, 4, v0
    s_and_b32 s{S_T0}, s{S_LW}, 1
    s_lshl_b32 s{S_T0}, s{S_T0}, 3
    v_add_u32 v2, s{S_T0}, v2
    v_bfe_u32 v3, v0, 3, 1
    s_lshr_b32 s{S_T0+1}, s{S_LW}, 1
    s_lshl_b32 s{S_T0+1}, s{S_T0+1}, 1
    v_add_u32 v3, s{S_T0+1}, v3
    v_and_b32 v5, 7, v0
    """)
    for k in range(2):
        a(f"v_add_u32 v6, {4*k}, v2\nv_lshl_add_u32 v7, v6, 2, v3")
        a(f"v_lshlrev_b32 v22, 7, v7\nv_lshl_add_u32 v22, v5, 4, v22\nv_add_u32 v{V_TR+k}, {C2_T}, v22")
        a(f"v_bfe_u32 v22, v6, 1, 3\nv_xor_b32 v22, v22, v5\nv_lshlrev_b32 v22, 4, v22\nv_lshl_add_u32 v{V_SO+k}, v7, 10, v22")
    a(f"""
    s_lshl_b32 s{S_GB}, s{S_X}, 18
    s_lshl_b32 s{S_T0+9}, s{S_M}, 16
    s_add_u32 s{S_GB}, s{S_GB}, s{S_T0+9}
    s_lshl_b32 s{S_T0+9}, s{S_N}, 7
    s_add_u32 s{S_GB}, s{S_GB}, s{S_T0+9}
    s_add_u32 s{S_GB}, s{S_GB}, {WS_F}
    """)
    flag_addr(a, WS_F2)

def conv2_tail_c(a):
    a(f"v_mov_b32 v2, {MISC + 8}\nds_read_b32 v4, v2")
    a("s_nop 4")
    l0, l1 = lab("Lk"), lab("Lk")
    a(f"s_cmp_ge_u32 s{S_LW}, 2\ns_cbranch_scc1 {l0}")
    for q in range(4): a(f"ds_write_b128 v{V_XW}, v[{V_ACC+16+4*q}:{V_ACC+19+4*q}] offset:{q*1024}")
    a(f"s_branch {l1}\n{l0}:")
    for q in range(4): a(f"ds_write_b128 v{V_XW}, v[{V_ACC+4*q}:{V_ACC+3+4*q}] offset:{q*1024}")
    a("s_waitcnt lgkmcnt(0)")
    for r in range(16): a(f"v_mov_b32 v{V_ACC+r}, v{V_ACC+16+r}")
    a(f"{l1}:")
    pair_sync(a, 1, 2)
    a(f"v_readfirstlane_b32 s{S_UNS}, v4")
    tstamp(a, 7, 2)
    for q in range(4): a(f"ds_read_b128 v[{64+4*q}:{67+4*q}], v{V_XR} offset:{q*1024}")
    for q in range(4):
        a(f"s_waitcnt lgkmcnt({3-q})")
        for p in (4*q, 4*q+2):
            a(f"v_pk_add_f32 v[{V_ACC+p}:{V_ACC+p+1}], v[{V_ACC+p}:{V_ACC+p+1}], v[{64+p}:{64+p+1}]")
    for jj in range(2):
        gelu_block2(a, V_ACC + jj*8, 8, 80, V_GC, 72 + jj*4)
        for nb in range(2):
            r = 72 + jj*4 + nb*2
            a(f"ds_write_b64 v{V_TW1 if nb else V_TW0}, v[{r}:{r+1}] offset:{jj*128}")
    tstamp(a, 8, 2)
    pair_sync(a, 2, 1)
    for k in range(2): a(f"ds_read_b128 v[{24+4*k}:{27+4*k}], v{V_TR+k}")
    a("s_waitcnt lgkmcnt(0)")
    tstamp(a, 9, 2)
    local_stores(a, [f"buffer_store_dwordx4 v[{24+4*k}:{27+4*k}], v{V_SO+k}, {WSR}, s{S_GB} offen {{SC}}" for k in range(2)])
    if OPT["tailst"] and int(OPT["tailst"]) == 2:
        a("s_waitcnt vmcnt(0)"); tstamp(a, 13, 2)
    wave_flag(a)

def read_misc(a, off, sreg):
    a(f"v_mov_b32 v2, {MISC + off}\nds_read_b32 v3, v2\ns_waitcnt lgkmcnt(0)\nv_readfirstlane_b32 s{sreg}, v3")
def write_misc(a, off, sreg):
    a(f"v_mov_b32 v2, {MISC + off}\nv_mov_b32 v3, s{sreg}\nds_write_b32 v2, v3\ns_waitcnt lgkmcnt(0)")

V_DUMMY = 200
def x_prefetch(a):
    d = V_DUMMY
    a(f"""
    v_lshlrev_b32 v4, 4, v0
    s_mul_i32 s{S_T0}, s{S_QQ}, 1000
    s_mul_i32 s{S_T0+1}, s{S_Q}, 33
    s_add_u32 s{S_T0}, s{S_T0}, s{S_T0+1}
    s_lshl_b32 s{S_T0+1}, s{S_LW}, 3
    s_add_u32 s{S_T0}, s{S_T0}, s{S_T0+1}
    s_sub_u32 s{S_T0}, s{S_T0}, 6
    s_lshl_b32 s{S_T0}, s{S_T0}, 10
    v_add_u32 v5, s{S_T0}, v4
    """)
    for k in range(9):
        a(f"buffer_load_dwordx4 v[{d}:{d+3}], v5, s[{SRD_X}:{SRD_X+3}], 0 offen {OPT['xpf']}")
        a(f"v_add_u32 v5, 1024, v5")

FE_W = 0
FE_A = 131072
def fe_c(a):
    a("v_and_b32 v2, 15, v0\nv_lshrrev_b32 v3, 4, v0")
    swz_of(a, 2, 4, S_T0+2)
    a(f"v_xor_b32 v4, v4, v3\nv_lshlrev_b32 v4, 4, v4\nv_lshl_add_u32 v8, v2, 7, v4\nv_add_u32 v8, {FE_A}, v8\nv_xor_b32 v9, 64, v8")
    a(f"s_lshl_b32 s{S_T0}, s{S_LW}, 15\nv_lshl_add_u32 v10, v0, 4, s{S_T0}")
    for r in range(16): a(f"v_mov_b32 v{32+r}, 0")
    a(f"""
    v_lshlrev_b32 v4, 11, v2
    v_lshl_add_u32 v{V_SO}, v3, 4, v4
    v_add_u32 v{V_SO+1}, 0x8000, v{V_SO}
    s_lshr_b32 s{S_T0}, s{S_Q}, 2
    s_lshl_b32 s{S_T0}, s{S_T0}, 16
    s_and_b32 s{S_T0+1}, s{S_Q}, 3
    s_lshl_b32 s{S_T0+1}, s{S_T0+1}, 9
    s_add_u32 s{S_T0}, s{S_T0}, s{S_T0+1}
    s_lshl_b32 s{S_T0+1}, s{S_LW}, 7
    s_add_u32 s{S_T0}, s{S_T0}, s{S_T0+1}
    s_lshl_b32 s{S_T0+1}, s{S_X}, 19
    s_add_u32 s{S_T0}, s{S_T0}, s{S_T0+1}
    s_add_u32 s{S_GB}, s{S_T0}, {WS_P}
    v_mov_b32 v6, {f2h(126.0)}
    v_mov_b32 v7, {f2h(-126.0)}
    """)
    flag_addr(a, WS_F3)
    def rd(sidx):
        du, h = sidx >> 1, sidx & 1
        reg = 64 + (sidx & 3) * 16
        out = [f"ds_read_b128 v[{reg+8+4*nbl}:{reg+11+4*nbl}], v10 offset:{nbl*16384 + sidx*1024}" for nbl in range(2)]
        out += [f"ds_read_b128 v[{reg+4*tb}:{reg+4*tb+3}], v{8+h} offset:{du*4096 + tb*2048}" for tb in range(2)]
        return out
    for ph in range(4):
        a("s_barrier")
        if ph == 0: stamp(a, 7)
        for sidx in range(4*ph, 4*ph+3):
            for r in rd(sidx): a(r)
        for j, sidx in enumerate(range(4*ph, 4*ph+4)):
            a(f"s_waitcnt lgkmcnt({[8, 8, 4, 0][j]})")
            reg = 64 + (sidx & 3) * 16
            mf = []
            for tb in range(2):
                for nbl in range(2):
                    acc = 32 + (tb*2 + nbl) * 4
                    mf.append(f"v_mfma_f32_16x16x32_bf16 v[{acc}:{acc+3}], v[{reg+8+4*nbl}:{reg+11+4*nbl}], v[{reg+4*tb}:{reg+4*tb+3}], v[{acc}:{acc+3}]")
            interleave(a, mf, rd(4*ph+3) if j == 0 else [])
    a("s_barrier")
    stamp(a, 8)
    a("s_nop 7")
    a(f"s_mov_b32 s{S_T0}, {f2h(C2LOG2E)}")
    for r in range(16): a(f"v_mul_f32 v{32+r}, s{S_T0}, v{32+r}")
    l0 = lab("Lr")
    a(f"s_cmp_eq_u32 s{S_UNS}, 0\ns_cbranch_scc0 {l0}")
    for r in range(16): a(f"v_med3_f32 v{32+r}, v{32+r}, v7, v6")
    for r in range(16): a(f"v_exp_f32 v{32+r}, v{32+r}")
    a(f"{l0}:")
    st = []
    for tb in range(2):
        for nbl in range(2):
            acc = 32 + (tb*2 + nbl) * 4
            st.append(f"buffer_store_dwordx4 v[{acc}:{acc+3}], v{V_SO+tb}, {WSR}, s{S_GB} offen offset:{nbl*64} {{SC}}")
    local_stores(a, st)
    wave_flag(a)

FE_SPLIT = 12
def fe_l_wpre(a, half):
    s0, s1 = (0, FE_SPLIT) if half == 0 else (FE_SPLIT, 16)
    a(f"s_and_b32 s{S_T0}, s{S_Q}, 3\ns_lshl_b32 s{S_T0}, s{S_T0}, 17\ns_add_u32 s{S_T0}, s{S_T0}, {WS_WF}")
    a(f"s_lshl_b32 s{S_T0+1}, s{S_LW}, 15\ns_add_u32 s{S_T0}, s{S_T0}, s{S_T0+1}")
    a("v_lshlrev_b32 v5, 4, v0")
    n = 0
    for st in range(s0, s1):
        for nb in range(2):
            off = nb * 16384 + st * 1024
            a(f"s_add_u32 m0, s{S_T0+1}, {FE_W + off}")
            a(f"s_add_u32 s{S_T0+2}, s{S_T0}, {off}")
            a(f"buffer_load_dwordx4 v5, {WSR}, s{S_T0+2} offen {OPT['wold']} lds")
            n += 1
    return n

def fe_l(a, sch):
    a(f"s_lshr_b32 s{S_T0}, s{S_Q}, 3\ns_lshl_b32 s{S_T0}, s{S_T0}, 7\ns_lshl_b32 s{S_T0+1}, s{S_X}, 9\ns_add_u32 s{S_T0}, s{S_T0}, s{S_T0+1}\ns_add_u32 s{S_T0}, s{S_T0}, {WS_F2}")
    a(f"v_and_b32 v6, 31, v0\nv_lshlrev_b32 v6, 2, v6\nv_add_u32 v6, s{S_T0}, v6")
    a(f"v_lshrrev_b32 v2, 3, v0\ns_lshl_b32 s{S_T0}, s{S_LW}, 3\nv_add_u32 v2, s{S_T0}, v2\nv_and_b32 v3, 7, v0")
    swz_of(a, 2, 4, S_T0+2)
    a(f"v_xor_b32 v4, v4, v3\nv_lshlrev_b32 v4, 4, v4\nv_lshl_add_u32 v4, v2, 10, v4")
    poll(a, 6, 7)
    stamp(a, 7)
    a(f"s_lshr_b32 s{S_T0}, s{S_Q}, 2\ns_lshl_b32 s{S_T0}, s{S_T0}, 15\ns_lshl_b32 s{S_T0+1}, s{S_X}, 18\ns_add_u32 s{S_T0}, s{S_T0}, s{S_T0+1}\ns_add_u32 s{S_T0}, s{S_T0}, {WS_F}")
    a(f"s_lshl_b32 s{S_T0+1}, s{S_LW}, 10")
    a(f"s_mov_b32 s{S_T0+8}, s{S_T0}\ns_mov_b32 s{S_T0+9}, s{S_T0+1}")
    def fdma(d0, d1):
        for du in range(d0, d1):
            a(f"s_add_u32 m0, s{S_T0+9}, {FE_A + du*4096}")
            a(f"s_add_u32 s{S_T0+2}, s{S_T0+8}, {du*128}")
            a(f"buffer_load_dwordx4 v4, {WSR}, s{S_T0+2} offen sc1 lds")
    fdma(0, 4)
    a("s_waitcnt vmcnt(2) lgkmcnt(0)")
    a("s_barrier")
    fdma(4, 8)
    nw = fe_l_wpre(a, 1) if not OPT["stg"] else 0
    a(f"s_waitcnt vmcnt({4 + nw})")
    a("s_barrier")
    nwarm = 0
    if OPT["wowarm"]:
        a(f"s_lshl_b32 s{S_T0}, s{S_Q}, 14\ns_lshl_b32 s{S_T0+1}, s{S_LW}, 12\ns_add_u32 s{S_T0}, s{S_T0}, s{S_T0+1}\ns_add_u32 s{S_T0}, s{S_T0}, {WS_WO}")
        a("v_lshlrev_b32 v5, 4, v0")
        for k in range(4): a(f"buffer_load_dwordx4 v[{V_DUMMY}:{V_DUMMY+3}], v5, {WSR}, s{S_T0} offen offset:{k*1024} {OPT['wold']}")
        nwarm = 4
    a(f"s_waitcnt vmcnt({2 + nw + nwarm})")
    a("s_barrier")
    a(f"s_waitcnt vmcnt({nwarm})")
    a("s_barrier")
    a("s_barrier")

J_ACT = 0
J_P   = 65536
J_Q   = 65536 + 16384
def joint_l(a):
    a(f"s_mov_b32 s{S_T0}, {WS_QE}\ns_cmp_eq_u32 s{S_UNS}, 0\ns_cselect_b32 s{S_T0}, s{S_T0}, {WS_QR}")
    a(f"s_lshl_b32 s{S_T0+1}, s{S_B}, 14\ns_add_u32 s{S_T0}, s{S_T0}, s{S_T0+1}")
    a(f"s_lshl_b32 s{S_T0+1}, s{S_LW}, 8\ns_add_u32 s{S_T0}, s{S_T0}, s{S_T0+1}")
    a(f"s_lshl_b32 s{S_T0+1}, s{S_LW}, 12")
    a("v_lshrrev_b32 v2, 4, v0\nv_and_b32 v3, 15, v0\nv_lshlrev_b32 v3, 4, v3\nv_lshl_add_u32 v4, v2, 10, v3")
    for j in range(4):
        a(f"s_add_u32 m0, s{S_T0+1}, {J_Q + j*1024}")
        a("s_nop 0")
        a(f"buffer_load_dwordx4 v4, {WSR}, s{S_T0} offen sc1 lds")
        a(f"s_add_u32 s{S_T0}, s{S_T0}, 4096")
    a(f"""
    v_lshrrev_b32 v2, 3, v0
    v_and_b32 v3, 7, v0
    v_and_b32 v5, 6, v2
    v_xor_b32 v3, v3, v5
    v_lshlrev_b32 v3, 4, v3
    v_lshl_add_u32 v5, v2, 11, v3
    s_lshr_b32 s{S_T0}, s{S_Q}, 2
    s_lshl_b32 s{S_T0}, s{S_T0}, 6
    s_lshl_b32 s{S_T0+2}, s{S_X}, 9
    s_add_u32 s{S_T0}, s{S_T0}, s{S_T0+2}
    s_add_u32 s{S_T0}, s{S_T0}, {WS_F3}
    v_and_b32 v6, 15, v0
    v_lshlrev_b32 v6, 2, v6
    v_add_u32 v9, s{S_T0}, v6
    s_waitcnt vmcnt(0)
    """)
    a(f"v_and_b32 v6, 7, v0\nv_lshlrev_b32 v6, 4, v6\ns_lshl_b32 s{S_T0}, s{S_LW}, 12\ns_add_u32 s{S_T0}, s{S_T0}, {J_Q}\nv_add_u32 v6, s{S_T0}, v6")
    for sidx in range(16):
        for hh in range(2):
            r = 128 + sidx*8 + hh*4
            a(f"ds_read_b128 v[{r}:{r+3}], v6 offset:{sidx*256 + hh*128}")
        if sidx % 4 == 3: a("s_waitcnt lgkmcnt(0)")
    poll(a, 9, 14)
    stamp(a, 9)
    a(f"""
    s_lshl_b32 s{S_T0}, s{S_X}, 19
    s_lshl_b32 s{S_T0+1}, s{S_Q}, 14
    s_add_u32 s{S_T0}, s{S_T0}, s{S_T0+1}
    s_add_u32 s{S_T0}, s{S_T0}, {WS_P}
    s_lshl_b32 s{S_T0+1}, s{S_LW}, 7
    s_add_u32 s{S_T0}, s{S_T0}, s{S_T0+1}
    s_lshl_b32 s{S_T0+1}, s{S_LW}, 10
    """)
    for k in range(4):
        a(f"s_add_u32 m0, s{S_T0+1}, {J_P + k*4096}")
        a("s_nop 0")
        a(f"buffer_load_dwordx4 v5, {WSR}, s{S_T0} offen sc1 lds")
        a(f"s_add_u32 s{S_T0}, s{S_T0}, 512")
    a(f"""
    v_lshrrev_b32 v2, 3, v0
    v_and_b32 v5, 6, v2
    s_lshl_b32 s{S_T0}, s{S_LW}, 1
    v_xor_b32 v5, s{S_T0}, v5
    v_lshlrev_b32 v5, 4, v5
    v_lshl_add_u32 v7, v2, 7, v5
    v_add_u32 v7, {J_P}, v7
    s_lshl_b32 s{S_T0}, s{S_LW}, 10
    v_lshlrev_b32 v8, 4, v0
    v_add_u32 v8, s{S_T0}, v8
    v_mov_b32 v10, 1.0
    v_mov_b32 v11, 1.0
    v_mov_b32 v12, -2.0
    v_mov_b32 v13, -2.0
    s_waitcnt vmcnt(0)
    s_barrier
    """)
    def prd(sidx):
        r = 16 + (sidx & 1) * 8
        return [f"ds_read_b128 v[{r}:{r+3}], v7 offset:{sidx*1024}", f"ds_read_b128 v[{r+4}:{r+7}], v7 offset:{sidx*1024 + 16}"]
    def body(safe):
        for r in prd(0): a(r)
        for sidx in range(16):
            if sidx + 1 < 16:
                for r in prd(sidx+1): a(r)
            if sidx in (0, 2): a("s_waitcnt lgkmcnt(2)")
            elif sidx + 1 < 16: a("s_waitcnt lgkmcnt(3)")
            else: a("s_waitcnt lgkmcnt(1)")
            if sidx >= 4:
                a("s_barrier")
            p = 16 + (sidx & 1) * 8
            q = 128 + sidx * 8
            t = 32
            pk = OPT["pk"]
            if safe:
                if pk:
                    for e in range(0, 8, 2): a(f"v_pk_fma_f32 v[{t+e}:{t+e+1}], v[{p+e}:{p+e+1}], v[{q+e}:{q+e+1}], v[10:11]")
                else:
                    for e in range(8): a(f"v_fma_f32 v{t+e}, v{p+e}, v{q+e}, 1.0")
            else:
                for e in range(8): a(f"v_add_f32 v{t+e}, v{p+e}, v{q+e}")
                for e in range(8): a(f"v_exp_f32 v{t+e}, v{t+e}")
                for e in range(8): a(f"v_add_f32 v{t+e}, 1.0, v{t+e}")
            for e in range(8): a(f"v_rcp_f32 v{t+e}, v{t+e}")
            if pk:
                for e in range(0, 8, 2): a(f"v_pk_fma_f32 v[{t+e}:{t+e+1}], v[{t+e}:{t+e+1}], v[12:13], v[10:11]")
            else:
                for e in range(8): a(f"v_fma_f32 v{t+e}, v{t+e}, -2.0, 1.0")
            w = 40 + (sidx & 1) * 4
            for e in range(0, 8, 2): a(f"v_cvt_pk_bf16_f32 v{w+e//2}, v{t+e}, v{t+e+1}")
            a(f"ds_write_b128 v8, v[{w}:{w+3}] offset:{J_ACT + sidx*4096}")
            if sidx == 1:
                a("s_waitcnt lgkmcnt(0)")
                a("s_barrier")
        a("s_waitcnt lgkmcnt(1)")
        a("s_barrier")
        a("s_waitcnt lgkmcnt(0)")
        a("s_barrier")
    l0, l1 = lab("Lu"), lab("Lu")
    if OPT["lprio"]: a(f"s_setprio {OPT['lprio']}")
    a(f"s_cmp_eq_u32 s{S_UNS}, 0\ns_cbranch_scc0 {l0}")
    body(True)
    a(f"s_branch {l1}\n{l0}:")
    body(False)
    a(f"{l1}:")

J_O = 98304
NEPI = 4
def interleave2(a, mf, others):
    n = len(others); k = 0
    for i, m in enumerate(mf):
        a(m)
        take = -(-(n - k) // (len(mf) - i))
        for _ in range(take):
            a(others[k]); k += 1

def joint_store(a, p, allwaves):
    nrow = 8 if allwaves else 16
    wv = S_WAVE if allwaves else S_LW
    sh = 3 if allwaves else 4
    a(f"""
    v_lshrrev_b32 v2, 5, v0
    v_and_b32 v3, 31, v0
    s_lshl_b32 s{S_T0}, s{wv}, {sh + 9}
    s_add_u32 s{S_T0}, s{S_T0}, {J_O + p*32768}
    v_lshl_add_u32 v4, v0, 4, s{S_T0}
    v_lshrrev_b32 v5, 3, v3
    v_lshlrev_b32 v5, 8, v5
    v_and_b32 v6, 7, v3
    v_lshl_add_u32 v5, v6, 4, v5
    v_lshl_add_u32 v5, v2, 10, v5
    s_mul_i32 s{S_T0}, s{S_B}, 1000
    s_mul_i32 s{S_T0+1}, s{S_QQ}, 250
    s_add_u32 s{S_T0}, s{S_T0}, s{S_T0+1}
    s_lshl_b32 s{S_T0+1}, s{S_Q}, 3
    s_add_u32 s{S_T0}, s{S_T0}, s{S_T0+1}
    s_lshl_b32 s{S_T0}, s{S_T0}, 13
    s_lshl_b32 s{S_T0+2}, s{wv}, {sh + 10}
    s_add_u32 s{S_T0}, s{S_T0}, s{S_T0+2}
    s_add_u32 s{S_T0}, s{S_T0}, {p*128}
    s_sub_u32 s{S_T0+3}, 250, s{S_T0+1}
    s_lshl_b32 s{S_T0+3}, s{S_T0+3}, 3
    s_lshl_b32 s{S_T0+2}, s{wv}, {sh}
    s_cmp_gt_u32 s{S_T0+3}, s{S_T0+2}
    s_cselect_b32 s{S_T0+2}, 0, {hex(OOB)}
    v_add_u32 v5, s{S_T0}, v5
    v_or_b32 v5, s{S_T0+2}, v5
    """)
    return nrow // 2

def joint_store_issue(a, ninstr, pace=None):
    for k in range(ninstr): a(f"ds_read_b128 v[{16+4*k}:{19+4*k}], v4 offset:{k*1024}")
    for k in range(ninstr):
        a(f"s_waitcnt lgkmcnt({ninstr-1-k})")
        if pace is not None and k > pace: a(f"s_waitcnt vmcnt({pace})")
        a(f"s_mov_b32 s{S_T0}, {k*2048}")
        a(f"buffer_store_dwordx4 v[{16+4*k}:{19+4*k}], v5, s[{SRD_OUT}:{SRD_OUT+3}], s{S_T0} offen {OPT['scout']}")

def joint_c(a):
    ACC = 128; WR = 48; AF = 12; NF = 20; TMP = 44
    def acc(rb, cb): return ACC + (cb*2 + rb) * 16
    a(f"s_lshl_b32 s{S_T0+4}, s{S_LW}, 17\ns_add_u32 s{S_T0+4}, s{S_T0+4}, {WS_WO}")
    a("v_lshlrev_b32 v4, 4, v0")
    def wreg(f): return WR + (f % NF) * 4
    def wld(f):
        out = [f"buffer_load_dwordx4 v[{wreg(f)}:{wreg(f)+3}], v4, {WSR}, s{S_T0+4} offen offset:{(f%4)*1024} {OPT['wold']}"]
        if f % 4 == 3: out.append(f"s_add_u32 s{S_T0+4}, s{S_T0+4}, 4096")
        return out
    vm = []
    issued = 0
    while issued < NF:
        for r in wld(issued): a(r)
        vm.append(issued); issued += 1
    a("v_and_b32 v2, 31, v0\nv_lshrrev_b32 v3, 5, v0\nv_lshlrev_b32 v5, 10, v3\nv_lshl_add_u32 v5, v2, 4, v5")
    a(f"s_lshl_b32 s{S_T0}, s{S_LW}, 7\ns_add_u32 s{S_T0}, s{S_T0}, {J_O}\nv_lshlrev_b32 v7, 11, v3\nv_lshl_add_u32 v7, v2, 2, v7\nv_add_u32 v7, s{S_T0}, v7")
    a("s_barrier")
    a("s_barrier")
    stamp(a, 10)
    def ard(n):
        sidx = n & 15
        r = AF + (n & 1) * 16
        return [f"ds_read_b128 v[{r+4*(2*h+rb)}:{r+4*(2*h+rb)+3}], v5 offset:{J_ACT + sidx*4096 + h*2048 + rb*512}" for h in range(2) for rb in range(2)]
    def epi(half):
        out = []
        for rb in range(2):
            for r in range(16):
                tmp = TMP + ((rb*16 + r) & 3)
                out.append(f"v_cvt_pk_bf16_f32 v{tmp}, v{acc(rb, 2*half) + r}, v{acc(rb, 2*half+1) + r}")
                out.append(f"ds_write_b32 v7, v{tmp} offset:{half*32768 + (32*rb + (r&3) + 8*(r>>2))*512}")
        return out
    for r in ard(0): a(r)
    pend = []
    consumed = 0
    for n in range(32):
        p, sidx = n >> 4, n & 15
        cbs = [0, 1, 2] if p == 0 else [3]
        nfr = 2 * len(cbs)
        first = consumed
        if OPT["steps"]: a("s_memtime s[74:75]")
        need = first + nfr - 1
        last = vm.index(need)
        if OPT["steps"]:
            a("s_waitcnt lgkmcnt(0)\nv_writelane_b32 v1, s74, %d\ns_memtime s[74:75]" % (2*n))
        a(f"s_waitcnt vmcnt({len(vm) - 1 - last}) lgkmcnt(0)")
        if OPT["steps"]: a("v_writelane_b32 v1, s74, %d" % (2*n+1))
        if p == 0 and 2 <= sidx + 1 <= 15:
            a("s_barrier")
        if n == 16 + NEPI:
            a("s_barrier")
        others = ard(n + 1) if n + 1 < 32 else []
        lim = min(128, first + NF)
        ld = []
        while issued < lim:
            ld += wld(issued); vm.append(issued); issued += 1
        others = others + ld
        if p == 1 and pend:
            k = min(len(pend), -(-64 // NEPI))
            others += pend[:k]; pend = pend[k:]
        mf = []
        af = AF + (n & 1) * 16
        for h in range(2):
            for rb in range(2):
                for ci, cb in enumerate(cbs):
                    d = acc(rb, cb)
                    w = wreg(first + h * len(cbs) + ci)
                    c = "0" if (sidx == 0 and h == 0) else f"v[{d}:{d+15}]"
                    mf.append(f"v_mfma_f32_32x32x16_bf16 v[{d}:{d+15}], v[{af+4*(2*h+rb)}:{af+4*(2*h+rb)+3}], v[{w}:{w+3}], {c}")
        interleave2(a, mf, others)
        consumed += nfr
        if n == 15:
            pend = epi(0)
    assert not pend and consumed == 128
    stamp(a, 11)
    a("s_nop 7\ns_nop 7")
    for o in epi(1): a(o)
    a("s_waitcnt lgkmcnt(0)")
    if OPT["steps"]:
        a(f"s_lshl_b32 s{S_T0}, s{S_WG}, 10\ns_lshl_b32 s{S_T0+1}, s{S_LW}, 8\ns_add_u32 s{S_T0}, s{S_T0}, s{S_T0+1}\ns_add_u32 s{S_T0}, s{S_T0}, {WS_STAMP + 0x10000}")
        a(f"v_lshlrev_b32 v2, 2, v0\nbuffer_store_dword v1, v2, {WSR}, s{S_T0} offen")
    n = joint_store(a, 1, True)
    a("s_barrier")
    joint_store_issue(a, n)

def relayout_loads(a, R=32):
    U = S_T0 + 8
    a(f"s_mov_b32 s{U}, s{S_WG}")
    a(f"s_lshr_b32 s{U+1}, s{U}, 2\ns_and_b32 s{U+1}, s{U+1}, 15\ns_and_b32 s{U+2}, s{U}, 3")
    a(f"s_cmp_ge_u32 s{U}, 64")
    a(f"s_cselect_b32 s{SRD_T}, s{S_PWF}, s{S_PWO}")
    a(f"s_cselect_b32 s{SRD_T+1}, s{S_PWF+1}, s{S_PWO+1}")
    a(f"s_and_b32 s{SRD_T+1}, s{SRD_T+1}, 0xffff")
    a(f"s_mov_b32 s{SRD_T+2}, 524288\ns_mov_b32 s{SRD_T+3}, 0x20000")
    a(f"""
    v_and_b32 v2, 15, v0
    v_lshrrev_b32 v3, 4, v0
    v_lshlrev_b32 v4, 13, v3
    v_lshl_add_u32 v4, v2, 4, v4
    s_lshl_b32 s{U+3}, s{U+1}, 15
    s_lshl_b32 s{U+4}, s{U+2}, 8
    s_add_u32 s{U+3}, s{U+3}, s{U+4}
    v_add_u32 v4, s{U+3}, v4
    v_add_u32 v5, 4096, v4
    """)
    for e in range(8):
        a(f"buffer_load_dwordx4 v[{R+4*e}:{R+3+4*e}], v{4 + (e>>2)}, s[{SRD_T}:{SRD_T+3}], 0 offen offset:{(e&3)*1024}")

RL_LDS = 154624
def relayout_finish(a, nyounger, R=32):
    U = S_T0 + 8
    a(f"s_mov_b32 s{U}, s{S_WG}")
    a(f"s_lshr_b32 s{U+1}, s{U}, 2\ns_and_b32 s{U+1}, s{U+1}, 15\ns_and_b32 s{U+2}, s{U}, 3")
    a("v_and_b32 v2, 15, v0\nv_lshrrev_b32 v3, 4, v0")
    l0, l1 = lab("Lw"), lab("Lw")
    a(f"s_cmp_ge_u32 s{U}, 64\ns_cbranch_scc1 {l0}")
    a(f"""
    v_and_b32 v6, 7, v2
    v_lshlrev_b32 v5, 6, v6
    v_and_b32 v6, 1, v3
    v_lshl_add_u32 v5, v6, 9, v5
    v_lshrrev_b32 v6, 1, v3
    v_lshl_add_u32 v5, v6, 12, v5
    v_lshrrev_b32 v6, 3, v2
    v_lshl_add_u32 v5, v6, 11, v5
    v_add_u32 v5, {RL_LDS}, v5
    """)
    for b in range(8): a(f"v_add_u32 v{24+b}, {(b&1)*1024 + (b>>1)*16}, v5")
    a(f"s_lshl_b32 s{U+3}, s{U+2}, 17\ns_add_u32 s{U+3}, s{U+3}, {WS_WO}")
    a(f"s_mul_i32 s{U+4}, s{U+1}, 6144\ns_add_u32 s{U+4}, s{U+4}, s{U+3}")
    a(f"s_lshl_b32 s{U+5}, s{U+1}, 11\ns_add_u32 s{U+5}, s{U+5}, s{U+3}\ns_add_u32 s{U+5}, s{U+5}, 98304")
    a(f"s_mov_b32 s{U+6}, 0")
    a(f"s_branch {l1}\n{l0}:")
    a(f"""
    v_lshrrev_b32 v5, 1, v2
    v_lshlrev_b32 v5, 10, v5
    v_and_b32 v6, 1, v2
    v_lshl_add_u32 v5, v6, 7, v5
    v_lshl_add_u32 v5, v3, 8, v5
    v_add_u32 v5, {RL_LDS}, v5
    """)
    for b in range(8): a(f"v_add_u32 v{24+b}, {b*16}, v5")
    a(f"s_lshl_b32 s{U+4}, s{U+2}, 17\ns_lshl_b32 s{U+5}, s{U+1}, 10\ns_add_u32 s{U+4}, s{U+4}, s{U+5}\ns_add_u32 s{U+4}, s{U+4}, {WS_WF}")
    a(f"s_mov_b32 s{U+6}, 1")
    a(f"{l1}:")
    a(f"s_mov_b32 s{U+1}, 0x05040100\ns_mov_b32 s{U+2}, 0x07060302")
    a(f"s_waitcnt vmcnt({nyounger})")
    for b in range(8):
        d = b >> 1
        sel = U + 1 + (b & 1)
        for m in range(4):
            lo, hi = R + 4*(2*m) + d, R + 4*(2*m+1) + d
            a(f"v_perm_b32 v{64+4*b+m}, v{hi}, v{lo}, s{sel}")
        a(f"ds_write_b128 v{24+b}, v[{64+4*b}:{67+4*b}]")
    a(f"v_lshlrev_b32 v2, 4, v0\nv_add_u32 v3, {RL_LDS}, v2\ns_waitcnt lgkmcnt(0)")
    for f in range(8): a(f"ds_read_b128 v[{64+4*f}:{67+4*f}], v3 offset:{f*1024}")
    l2, l3 = lab("Lw"), lab("Lw")
    a(f"s_cmp_eq_u32 s{U+6}, 0\ns_cbranch_scc0 {l2}")
    for f in range(8):
        h, cb = f >> 2, f & 3
        if cb < 3: a(f"s_add_u32 s{U+1}, s{U+4}, {(3*h + cb)*1024}")
        else: a(f"s_add_u32 s{U+1}, s{U+5}, {h*1024}")
        a(f"s_waitcnt lgkmcnt({7-f})")
        a(f"buffer_store_dwordx4 v[{64+4*f}:{67+4*f}], v2, {WSR}, s{U+1} offen sc1")
    a(f"s_branch {l3}\n{l2}:")
    for f in range(8):
        a(f"s_add_u32 s{U+1}, s{U+4}, {f*16384}")
        a(f"s_waitcnt lgkmcnt({7-f})")
        a(f"buffer_store_dwordx4 v[{64+4*f}:{67+4*f}], v2, {WSR}, s{U+1} offen sc1")
    a(f"{l3}:")

def relayout_flag(a):
    U = S_T0 + 8
    a(f"s_lshl_b32 s{U}, s{S_WG}, 2\ns_add_u32 s{U}, s{U}, {WS_RL}")
    a("s_waitcnt vmcnt(0)")
    flag_store(a, U, fast_variant=False)

GE_LDS = 17408
def ge_loads(a):
    U = S_T0 + 8
    a(f"s_sub_u32 s{U}, s{S_WG}, 224")
    mk_srd(a, SRD_T, S_PWG, 524288)
    a(f"""
    v_lshrrev_b32 v2, 1, v0
    v_and_b32 v3, 1, v0
    v_lshlrev_b32 v3, 4, v3
    v_lshl_add_u32 v2, v2, 10, v3
    s_lshl_b32 s{U+1}, s{U}, 5
    v_add_u32 v2, s{U+1}, v2
    s_mov_b32 s{U+2}, 0
    """)
    for k in range(16):
        a(f"s_mov_b32 m0, {GE_LDS + k*1024}")
        a(f"s_nop 0")
        a(f"buffer_load_dwordx4 v2, s[{SRD_T}:{SRD_T+3}], s{U+2} offen lds")
        a(f"s_add_u32 s{U+2}, s{U+2}, 32768")
    mk_srd(a, SRD_T, S_PG, 16384)
    a(f"""
    v_and_b32 v4, 15, v0
    v_lshrrev_b32 v5, 4, v0
    v_lshlrev_b32 v6, 10, v4
    v_lshl_add_u32 v6, v5, 4, v6
    """)
    for sidx in range(16):
        a(f"buffer_load_dwordx4 v[{64+4*sidx}:{67+4*sidx}], v6, s[{SRD_T}:{SRD_T+3}], 0 offen offset:{sidx*64}")

GE_R = 100
def ge_loads_c(a):
    U = S_T0 + 8
    a(f"s_sub_u32 s{U}, s{S_WG}, 224")
    mk_srd(a, SRD_T, S_PWG, 524288)
    a(f"""
    v_lshrrev_b32 v2, 1, v0
    v_and_b32 v3, 1, v0
    v_lshlrev_b32 v3, 4, v3
    v_lshl_add_u32 v2, v2, 10, v3
    s_lshl_b32 s{U+1}, s{U}, 5
    v_add_u32 v2, s{U+1}, v2
    s_mov_b32 s{U+2}, 0
    """)
    for k in range(16):
        a(f"buffer_load_dwordx4 v[{GE_R+4*k}:{GE_R+3+4*k}], v2, s[{SRD_T}:{SRD_T+3}], s{U+2} offen")
        a(f"s_add_u32 s{U+2}, s{U+2}, 32768")

def ge_stage_l(a, nyounger):
    a(f"v_lshlrev_b32 v2, 4, v0\nv_add_u32 v2, {GE_LDS}, v2")
    a(f"s_waitcnt vmcnt({nyounger})")
    for k in range(16):
        a(f"ds_write_b128 v2, v[{GE_R+4*k}:{GE_R+3+4*k}] offset:{k*1024}")
    a("s_waitcnt lgkmcnt(0)")
    a(f"v_mov_b32 v2, {INBOX + 48}\nv_mov_b32 v3, 1\nds_write_b32 v2, v3\ns_waitcnt lgkmcnt(0)")

G_R = 172
def ge_gloads_c(a):
    mk_srd(a, SRD_T, S_PG, 16384)
    a("v_lshrrev_b32 v4, 2, v0\nv_and_b32 v5, 3, v0\nv_lshlrev_b32 v6, 10, v4\nv_lshl_add_u32 v6, v5, 4, v6")
    for sidx in range(16):
        a(f"buffer_load_dwordx4 v[{G_R+4*sidx}:{G_R+3+4*sidx}], v6, s[{SRD_T}:{SRD_T+3}], 0 offen offset:{sidx*64}")

def ge_finish_c(a):
    a("v_and_b32 v4, 15, v0\nv_lshrrev_b32 v5, 4, v0\nv_lshl_add_u32 v4, v4, 2, v5\nv_lshlrev_b32 v4, 2, v4")
    for r in range(64):
        a(f"ds_bpermute_b32 v{G_R+r}, v4, v{G_R+r}")
        if r % 8 == 7: a("s_waitcnt lgkmcnt(0)")
    l0, l1 = lab("Lg"), lab("Lg")
    a(f"v_mov_b32 v2, {INBOX + 48}\ns_mov_b32 s{S_T0+16}, 0\n{l0}:\nds_read_b32 v3, v2")
    a(f"s_add_u32 s{S_T0+16}, s{S_T0+16}, 1\ns_cmp_ge_u32 s{S_T0+16}, {SPIN_MAX*8}\ns_cbranch_scc1 {l1}")
    a(f"s_waitcnt lgkmcnt(0)\nv_cmp_eq_u32 vcc, 0, v3\ns_cbranch_vccnz {l0}\n{l1}:\ns_waitcnt lgkmcnt(0)")
    ge_finish(a, G_R, True)

def ge_finish(a, GR=64, defer=False):
    U = S_T0 + 8
    TR = 128 if GR == 64 else 64
    a(f"s_sub_u32 s{U}, s{S_WG}, 224")
    a(f"""
    v_and_b32 v4, 15, v0
    v_lshrrev_b32 v5, 4, v0
    v_lshrrev_b32 v7, 2, v4
    v_lshl_add_u32 v7, v5, 3, v7
    v_lshlrev_b32 v7, 5, v7
    v_and_b32 v6, 3, v4
    v_lshl_add_u32 v7, v6, 3, v7
    v_add_u32 v7, {GE_LDS}, v7
    v_mov_b32 v32, 0
    v_mov_b32 v33, 0
    v_mov_b32 v34, 0
    v_mov_b32 v35, 0
    s_waitcnt vmcnt(0)
    """)
    for sidx in range(16):
        r = TR + 4*sidx
        a(f"ds_read_b64_tr_b16 v[{r}:{r+1}], v7 offset:{sidx*1024}")
        a(f"ds_read_b64_tr_b16 v[{r+2}:{r+3}], v7 offset:{sidx*1024 + 128}")
        if sidx % 4 == 3: a("s_waitcnt lgkmcnt(0)")
    for sidx in range(16):
        r = TR + 4*sidx
        a(f"v_mfma_f32_16x16x32_bf16 v[32:35], v[{r}:{r+3}], v[{GR+4*sidx}:{GR+3+4*sidx}], v[32:35]")
    a("s_nop 7\ns_nop 7")
    a(f"s_mov_b32 s{U+1}, {f2h(C2LOG2E)}")
    for r in range(4): a(f"v_mul_f32 v{32+r}, s{U+1}, v{32+r}")
    a(f"v_max3_f32 v40, abs(v32), abs(v33), abs(v34)\nv_max_f32 v40, abs(v35), v40")
    a(f"v_mov_b32 v42, {f2h(96.0)}")
    a(f"v_cmp_nle_f32 vcc, v40, v42")
    for r in range(4): a(f"v_exp_f32 v{36+r}, v{32+r}")
    a("s_nop 1")
    a(f"s_cmp_lg_u64 vcc, 0\ns_cselect_b32 s{U+3}, 1, 0")
    a(f"""
    v_lshrrev_b32 v9, 3, v4
    v_lshlrev_b32 v9, 14, v9
    v_and_b32 v10, 7, v4
    v_lshl_add_u32 v9, v10, 4, v9
    v_lshl_add_u32 v9, v5, 7, v9
    s_lshl_b32 s{U+1}, s{U}, 9
    v_add_u32 v9, s{U+1}, v9
    v_add_u32 v10, {WS_QR}, v9
    v_add_u32 v9, {WS_QE}, v9
    buffer_store_dwordx4 v[32:35], v10, {WSR}, 0 offen sc1
    buffer_store_dwordx4 v[36:39], v9, {WSR}, 0 offen sc1
    """)
    if defer:
        a(f"s_lshl_b32 s{S_SIDEA}, s{U}, 3\ns_add_u32 s{S_SIDEA}, s{S_SIDEA}, {WS_GE}\ns_mov_b32 s{S_SIDEV}, s{U+3}\ns_mov_b32 s{S_SIDEK}, 2")
        return
    a(f"""
    s_lshl_b32 s{U+1}, s{U}, 3
    s_add_u32 s{U+1}, s{U+1}, {WS_GE}
    v_mov_b32 v12, s{U+1}
    v_mov_b32 v10, s{S_TAG}
    v_mov_b32 v11, s{U+3}
    s_waitcnt vmcnt(0)
    s_mov_b64 s[{S_T0+14}:{S_T0+15}], exec
    s_mov_b64 exec, 1
    buffer_store_dwordx2 v[10:11], v12, {WSR}, 0 offen sc1
    s_mov_b64 exec, s[{S_T0+14}:{S_T0+15}]
    """)

S_SIDEA, S_SIDEV, S_SIDEK = 5, 6, 7
def side_flag_deferred(a):
    l0, l1 = lab("Ld"), lab("Ld")
    a(f"s_cmp_eq_u32 s{S_SIDEK}, 0\ns_cbranch_scc1 {l0}")
    a(f"v_mov_b32 v22, s{S_TAG}\nv_mov_b32 v23, s{S_SIDEV}\nv_mov_b32 v24, s{S_SIDEA}")
    a("s_waitcnt vmcnt(0)")
    a(f"s_mov_b64 s[{S_T0+14}:{S_T0+15}], exec\ns_mov_b64 exec, 1")
    a(f"s_cmp_eq_u32 s{S_SIDEK}, 1\ns_cbranch_scc1 {l1}")
    a(f"buffer_store_dwordx2 v[22:23], v24, {WSR}, 0 offen sc1")
    a(f"s_branch {l1}_e\n{l1}:")
    a(f"buffer_store_dword v22, v24, {WSR}, 0 offen sc1")
    a(f"{l1}_e:")
    a(f"s_mov_b64 exec, s[{S_T0+14}:{S_T0+15}]\ns_mov_b32 s{S_SIDEK}, 0")
    a(f"{l0}:")

def l_setup_w(a):
    a(f"""
    v_lshrrev_b32 v4, 3, v0
    v_lshrrev_b32 v5, 1, v4
    v_and_b32 v5, 1, v5
    s_and_b32 s{S_T0}, s{S_LW}, 1
    s_lshl_b32 s{S_T0}, s{S_T0}, 1
    v_or_b32 v5, s{S_T0}, v5
    v_lshlrev_b32 v5, 1, v5
    v_and_b32 v6, 7, v0
    v_xor_b32 v6, v6, v5
    v_lshlrev_b32 v6, 4, v6
    s_lshl_b32 s{S_T0}, s{S_LW}, 3
    v_add_u32 v4, s{S_T0}, v4
    v_lshl_add_u32 v{V_LWV}, v4, 10, v6
    """)

def l_setup_a(a, c, row_base_sgpr, lo_valid, hi_valid):
    na = (c.nA + 3) // 4
    a(f"v_lshrrev_b32 v2, 3, v0\nv_and_b32 v3, 7, v0")
    a(f"s_lshl_b32 s{S_T0}, s{S_LW}, 3\ns_mov_b32 s{S_T0+1}, {c.MAGIC}\ns_mov_b32 s{S_T0+2}, {hex(SWZ_TBL)}")
    a(f"v_mov_b32 v7, {hex(OOB)}\nv_add_u32 v4, s{S_T0}, v2")
    for k in range(na):
        a(f"""
        v_mul_u32_u24 v5, s{S_T0+1}, v4
        v_lshrrev_b32 v5, 16, v5
        v_mul_u32_u24 v6, {c.RS}, v5
        v_sub_u32 v6, v4, v6
        v_and_b32 v20, 3, v5
        v_lshl_add_u32 v20, v6, 2, v20
        v_lshrrev_b32 v21, 2, v5
        v_lshl_add_u32 v20, v20, 1, v21
        v_add_u32 v20, s{row_base_sgpr}, v20
        v_lshlrev_b32 v21, 1, v6
        v_and_b32 v21, 28, v21
        v_lshrrev_b32 v21, v21, s{S_T0+2}
        v_and_b32 v21, 7, v21
        v_xor_b32 v21, v21, v3
        v_lshlrev_b32 v21, 4, v21
        v_lshl_add_u32 v21, v20, 10, v21
        v_subrev_u32 v22, {lo_valid}, v20
        v_cmp_gt_u32 vcc, {hi_valid}, v22
        v_cndmask_b32 v21, v7, v21, vcc
        """) if False else None
        a(f"""
        v_mul_u32_u24 v5, s{S_T0+1}, v4
        v_lshrrev_b32 v5, 16, v5
        v_mul_u32_u24 v6, {c.RS}, v5
        v_sub_u32 v6, v4, v6
        v_and_b32 v20, 3, v5
        v_lshl_add_u32 v20, v6, 2, v20
        v_lshrrev_b32 v21, 2, v5
        v_lshl_add_u32 v20, v20, 1, v21
        v_add_u32 v20, s{row_base_sgpr}, v20
        v_subrev_u32 v22, {lo_valid}, v20
        v_cmp_gt_u32 vcc, {hi_valid}, v22
        v_lshlrev_b32 v21, 1, v6
        v_and_b32 v21, 28, v21
        v_lshrrev_b32 v21, v21, s{S_T0+2}
        v_and_b32 v21, 7, v21
        v_xor_b32 v21, v21, v3
        v_lshlrev_b32 v21, 4, v21
        v_lshl_add_u32 v21, v20, 10, v21
        v_cndmask_b32 v{V_LA+k}, v7, v21, vcc
        """)
        if 8 * (4*k + 3) + 7 >= 8 * c.RS:
            a(f"v_cmp_gt_u32 vcc, {8*c.RS}, v4\ns_nop 1\nv_cndmask_b32 v{V_LA+k}, v7, v{V_LA+k}, vcc")
        if k + 1 < na: a("v_add_u32 v4, 32, v4")

S_PA, S_PWX = 3, 4
def l_issue_A(a, c, srdA, pol, idx, part=None):
    na = (c.nA + 3) // 4
    ks = range(na) if part is None else (range(0, 5) if part == 0 else range(5, na))
    a(f"s_xor_b32 s{S_OFA}, s{S_PA}, {(idx if not OPT['hot'] else 0)*128}")
    a(f"s_lshl_b32 s{S_T0}, s{S_LW}, 10\ns_add_u32 s{S_T0}, s{S_T0}, s{S_LSA}")
    for k in ks:
        extra = (4 * k + 3 >= c.nA)
        if extra:
            l0 = lab("Lx")
            a(f"s_cmp_lt_u32 s{S_LW}, {c.nA - 4 * k}\ns_cbranch_scc0 {l0}")
        a(f"s_add_u32 m0, s{S_T0}, {k*4096}")
        a("s_nop 0")
        a(f"buffer_load_dwordx4 v{V_LA+k}, s[{srdA}:{srdA+3}], s{S_OFA} offen {pol} lds")
        if extra: a(f"{l0}:")
    if part == 0: return
    step = c.AB if c.idx == 1 else 2 * c.AB
    a(f"s_add_u32 s{S_LSA}, s{S_LSA}, {step}")
    a(f"s_cmp_ge_u32 s{S_LSA}, {c.RA * c.AB}")
    a(f"s_cselect_b32 s{S_T0}, {c.RA * c.AB}, 0")
    a(f"s_sub_u32 s{S_LSA}, s{S_LSA}, s{S_T0}")

def l_issue_W(a, c, srdW, idx):
    a(f"s_lshl_b32 s{S_T0}, s{S_LW}, 10\ns_add_u32 s{S_T0}, s{S_T0}, s{S_LSW}\ns_xor_b32 s{S_T0+1}, s{S_PWX}, {(idx if not OPT['hot'] else idx & 1)*32768}")
    for tap in range(5):
        a(f"s_add_u32 m0, s{S_T0}, {c.WOFF + tap*4096}")
        if tap: a(f"s_add_u32 s{S_T0+1}, s{S_T0+1}, 524288")
        else: a("s_nop 0")
        a(f"buffer_load_dwordx4 v{V_LWV}, s[{srdW}:{srdW+3}], s{S_T0+1} offen lds")
    a(f"s_add_u32 s{S_LSW}, s{S_LSW}, {c.WB}")
    a(f"s_cmp_ge_u32 s{S_LSW}, {c.RW * c.WB}")
    a(f"s_cselect_b32 s{S_LSW}, 0, s{S_LSW}")

S_TCH = 73
SRD_H2 = SRD_T
def w_touch(a, ptr, unit, ncls):
    if not OPT["wtouch"] or unit >= 16: return
    mode = OPT["wtouch"]
    a(f"s_lshl_b32 s{S_TCH}, s{S_Q}, 10\ns_add_u32 s{S_TCH}, s{S_TCH}, {unit*32768}")
    if mode == "c3":
        a(f"s_lshl_b32 s{S_T0+2}, s{S_LW}, 19\ns_add_u32 s{S_TCH}, s{S_TCH}, s{S_T0+2}\ns_add_u32 s{S_TCH}, s{S_TCH}, 384")
        a(f"s_load_dword s76, s[{ptr}:{ptr+1}], s{S_TCH}")
        l0 = lab("Lt")
        a(f"s_cmp_eq_u32 s{S_LW}, 0\ns_cbranch_scc0 {l0}")
        a(f"s_add_u32 s{S_TCH}, s{S_TCH}, {4*524288}")
        a(f"s_load_dword s76, s[{ptr}:{ptr+1}], s{S_TCH}")
        a(f"{l0}:")
    else:
        ntap = int(mode)
        a(f"s_lshl_b32 s{S_T0+2}, s{S_LW}, 8\ns_add_u32 s{S_TCH}, s{S_TCH}, s{S_T0+2}")
        for tap in range(ntap):
            a(f"s_load_dword s76, s[{ptr}:{ptr+1}], s{S_TCH}")
            a(f"s_add_u32 s{S_T0+2}, s{S_TCH}, 128")
            a(f"s_load_dword s76, s[{ptr}:{ptr+1}], s{S_T0+2}")
            if tap + 1 < ntap: a(f"s_add_u32 s{S_TCH}, s{S_TCH}, 524288")

V_STG = 100
def stage_W2_loads(a, c, srd, nunit):
    for u in range(nunit):
        a(f"s_xor_b32 s{S_T0+1}, s{S_PWX}, {u*32768}")
        for tap in range(5):
            r = V_STG + (u*5 + tap) * 4
            if tap: a(f"s_add_u32 s{S_T0+1}, s{S_T0+1}, 524288")
            a(f"buffer_load_dwordx4 v[{r}:{r+3}], v{V_LWV}, s[{srd}:{srd+3}], s{S_T0+1} offen")
def stage_W2_write(a, c, nunit):
    a(f"s_lshl_b32 s{S_T0}, s{S_LW}, 10\nv_lshl_add_u32 v2, v0, 4, s{S_T0}")
    for u in range(nunit):
        a(f"v_add_u32 v3, {c.WOFF + u*c.WB}, v2")
        for tap in range(5):
            r = V_STG + (u*5 + tap) * 4
            a(f"ds_write_b128 v3, v[{r}:{r+3}] offset:{tap*4096}")
def stage_WF_loads(a, k0, k1):
    a(f"s_and_b32 s{S_T0}, s{S_Q}, 3\ns_lshl_b32 s{S_T0}, s{S_T0}, 17\ns_add_u32 s{S_T0}, s{S_T0}, {WS_WF}")
    a(f"s_lshl_b32 s{S_T0+1}, s{S_LW}, 15\ns_add_u32 s{S_T0}, s{S_T0}, s{S_T0+1}\nv_lshlrev_b32 v5, 4, v0")
    for k in range(k0, k1):
        r = V_STG + 4*k
        if k % 4 == 0 or k == k0: a(f"s_add_u32 s{S_T0+2}, s{S_T0}, {(k//4)*4096}")
        a(f"buffer_load_dwordx4 v[{r}:{r+3}], v5, {WSR}, s{S_T0+2} offen offset:{(k%4)*1024} {OPT['wold']}")
def stage_WF_write(a):
    a(f"s_lshl_b32 s{S_T0}, s{S_LW}, 15\nv_lshl_add_u32 v2, v0, 4, s{S_T0}")
    for k in range(32):
        r = V_STG + 4*k
        a(f"ds_write_b128 v2, v[{r}:{r+3}] offset:{FE_W + k*1024}")

V_TCH = 19
def vtouch8(a, srd, u0, vtmp=2):
    if not OPT["vtouch"]: return
    a(f"v_lshrrev_b32 v{vtmp}, 3, v0\nv_lshlrev_b32 v{vtmp}, 19, v{vtmp}\nv_and_b32 v{vtmp+1}, 7, v0\nv_lshl_add_u32 v{vtmp}, v{vtmp+1}, 15, v{vtmp}")
    a(f"s_lshl_b32 s{S_T0}, s{S_Q}, 10\ns_add_u32 s{S_T0}, s{S_T0}, {384 + u0*32768}\nv_add_u32 v{vtmp}, s{S_T0}, v{vtmp}")
    a(f"v_cmp_gt_u32 vcc, 40, v0\nv_mov_b32 v{vtmp+1}, {hex(OOB)}\ns_nop 0\nv_cndmask_b32 v{vtmp}, v{vtmp+1}, v{vtmp}, vcc")
    a(f"buffer_load_dword v{V_DUMMY+8}, v{vtmp}, s[{srd}:{srd+3}], 0 offen")

def only(a, cond_lines, body):
    l0 = lab("Lo")
    a(cond_lines)
    a(f"s_cbranch_scc0 {l0}")
    body()
    a(f"{l0}:")

def emit():
    global NEPI
    NEPI = int(OPT["nepi"])
    c1, c2 = Conv(1), Conv(2)
    a = Asm()
    kernel_begin(a, KN)
    a(f"s_cmp_ge_u32 s{S_WG}, 256\ns_cbranch_scc1 L_end")
    load_ptrs(a)
    if OPT["codepf"]:
        a("s_getpc_b64 s[4:5]")
        a("L_pc_here:")
        a(f"s_lshr_b32 s6, s{S_WG}, 3")
        a("s_lshl_b32 s6, s6, 3")
        a("v_lshrrev_b32 v1, 6, v0")
        a("v_add_u32 v1, s6, v1")
        a("v_and_b32 v1, 63, v1")
        a("v_lshlrev_b32 v1, 10, v1")
        a("v_and_b32 v2, 63, v0")
        a("v_lshl_add_u32 v1, v2, 4, v1")
        a(f"v_min_u32 v1, CODE_LAST, v1")
        a(f"global_load_dwordx4 v[{V_DUMMY+4}:{V_DUMMY+7}], v1, s[4:5]")
    stamp(a, 0)
    if OPT["dbg"]:
        a("s_memrealtime s[74:75]\ns_waitcnt lgkmcnt(0)\ns_mov_b32 s76, s74")
    ids(a)
    if OPT["qperm"]:
        a(f"s_xor_b32 s{S_Q}, s{S_Q}, {OPT['qperm']}")
    a(f"s_lshr_b32 s{S_M}, s{S_Q}, 3\ns_and_b32 s{S_N}, s{S_Q}, 7")
    a("s_waitcnt lgkmcnt(0)")
    mk_srd(a, SRD_WS, S_PWS, 0x10000000)
    a(f"s_mul_i32 s{S_T0}, s{S_B}, 4096000")
    mk_srd(a, SRD_X, S_PX, 4096000, add=f"s{S_T0}")
    mk_srd(a, SRD_W, S_PW1, 2621440)
    mk_srd(a, SRD_OUT, S_POUT, 16384000)
    a(f"s_cmp_ge_u32 s{S_WAVE}, 4\ns_cbranch_scc1 L_Lwaves")
    def nonce_load():
        a(f"v_mov_b32 v30, {WS_NONCE}\nbuffer_load_dword v31, v30, {WSR}, 0 offen sc1")
    only(a, f"s_cmp_eq_u32 s{S_LW}, 3", nonce_load)
    only(a, f"s_cmp_eq_u32 s{S_LW}, 1", lambda: vtouch8(a, SRD_W, 0))
    def zero_inbox():
        a(f"v_lshlrev_b32 v2, 2, v0\nv_add_u32 v2, {MISC}, v2\nv_mov_b32 v3, 0\nds_write_b32 v2, v3\ns_waitcnt lgkmcnt(0)")
    only(a, f"s_cmp_eq_u32 s{S_LW}, 0", zero_inbox)
    G.conv_c_setup(a, c1)
    conv1_tail_pre(a)
    a("s_barrier")
    def nonce_pub():
        a("s_waitcnt vmcnt(0)")
        a(f"v_add_u32 v31, 1, v31\ns_nop 0\nv_readfirstlane_b32 s{S_TAG}, v31")
        a(f"s_getreg_b32 s{S_T0}, hwreg(HW_REG_XCC_ID, 0, 4)")
        a(f"s_lshl_b32 s{S_T0+1}, s{S_X}, 8\ns_lshl_b32 s{S_T0+2}, s{S_Q}, 3\ns_add_u32 s{S_T0+1}, s{S_T0+1}, s{S_T0+2}\ns_add_u32 s{S_T0+1}, s{S_T0+1}, {WS_G0}")
        a(f"v_mov_b32 v28, s{S_TAG}\nv_mov_b32 v29, s{S_T0}\nv_mov_b32 v30, s{S_T0+1}")
        a(f"s_mov_b64 s[{S_T0+14}:{S_T0+15}], exec\ns_mov_b64 exec, 1")
        a(f"buffer_store_dwordx2 v[28:29], v30, {WSR}, 0 offen sc1")
        a(f"s_mov_b64 exec, s[{S_T0+14}:{S_T0+15}]")
        write_misc(a, 0, S_TAG)
    only(a, f"s_cmp_eq_u32 s{S_LW}, 3", nonce_pub)
    RLC = f"s_cmp_lt_u32 s{S_WG}, 128\ns_cselect_b32 s{S_T0}, s{S_LW}, 0\ns_cmp_eq_u32 s{S_T0}, 1"
    GEC = f"s_cmp_ge_u32 s{S_WG}, 224\ns_cselect_b32 s{S_T0}, s{S_LW}, 0\ns_cmp_eq_u32 s{S_T0}, 2"
    if OPT["sidec"]:
        only(a, RLC, lambda: relayout_loads(a, 172))
        only(a, GEC, lambda: ge_gloads_c(a))
    if OPT["xpf"] is not None: x_prefetch(a)
    conv_c_loop(a, c1, 1)
    conv1_tail_c(a)
    stamp(a, 4)
    if OPT["sidec"]:
        a(f"s_mov_b32 s{S_SIDEK}, 0\ns_mov_b32 s{S_SIDEA}, 0\ns_mov_b32 s{S_SIDEV}, 0")
        def rlj():
            relayout_finish(a, 1, 172)
            a(f"s_lshl_b32 s{S_SIDEA}, s{S_WG}, 2\ns_add_u32 s{S_SIDEA}, s{S_SIDEA}, {WS_RL}\ns_mov_b32 s{S_SIDEK}, 1")
        only(a, RLC, rlj)
        only(a, GEC, lambda: ge_finish_c(a))
    a(f"s_lshr_b32 s{S_GRP}, s{S_LW}, 1\ns_mul_i32 s{S_GRP}, s{S_GRP}, {c2.WB}")
    G.conv_c_setup(a, c2)
    conv2_tail_pre(a)
    b = Asm()
    a("s_barrier")
    stamp(a, 5)
    save = OPT["stamp"]; OPT["stamp"] = False
    conv_c_loop(b, c2, 0)
    OPT["stamp"] = save
    lines = b.lines
    i0 = next(i for i, l in enumerate(lines) if l.strip() == "s_barrier")
    a.lines += lines[i0+1:]
    stamp(a, 6)
    conv2_tail_c(a)
    stamp(a, 13)
    fe_c(a)
    stamp(a, 9)
    joint_c(a)
    a("s_branch L_fin")
    a("L_Lwaves:")
    sch = LSched()
    nA1, nA2 = c1.nA // 4, c2.nA // 4
    iA = [0]; iW = [0]
    def A(c, srd, pol, tag):
        l_issue_A(a, c, srd, pol, iA[0]); sch.add((tag, "A", iA[0]), c.nA // 4); iA[0] += 1
    def W(c, tag):
        l_issue_W(a, c, SRD_W, iW[0]); sch.add((tag, "W", iW[0]), 5); iW[0] += 1
    l_setup_w(a)
    a(f"s_mov_b32 s{S_LSA}, 0\ns_mov_b32 s{S_LSW}, 0")
    if OPT["twist"]:
        a(f"s_add_u32 s{S_PA}, s{S_M}, s{S_N}\ns_and_b32 s{S_PA}, s{S_PA}, 1")
    else:
        a(f"s_mov_b32 s{S_PA}, 0")
    a(f"s_lshl_b32 s{S_PWX}, s{S_PA}, 16\ns_lshl_b32 s{S_PA}, s{S_PA}, 7\ns_lshl_b32 s{S_T0}, s{S_N}, 7\ns_add_u32 s{S_PWX}, s{S_PWX}, s{S_T0}")
    W(c1, 1)
    a(f"s_mul_i32 s{S_T0+8}, s{S_QQ}, 1000\ns_lshl_b32 s{S_T0+9}, s{S_M}, 8\ns_add_u32 s{S_T0+8}, s{S_T0+8}, s{S_T0+9}\ns_sub_u32 s{S_T0+8}, s{S_T0+8}, 6")
    l_setup_a(a, c1, S_T0+8, 0, 4000)
    A(c1, SRD_X, OPT["xld"], 1)
    stamp(a, 1)
    a("s_barrier")
    W(c1, 1)
    if OPT["wtouch"] and OPT["tx"]:
        a(f"s_mul_i32 s{S_T0+2}, s{S_QQ}, 1000\ns_mul_i32 s{S_T0+3}, s{S_Q}, 33\ns_add_u32 s{S_T0+2}, s{S_T0+2}, s{S_T0+3}")
        a(f"s_lshl_b32 s{S_T0+3}, s{S_LW}, 3\ns_add_u32 s{S_T0+2}, s{S_T0+2}, s{S_T0+3}\ns_sub_u32 s{S_T0+2}, s{S_T0+2}, 6")
        for j in range(9):
            a(f"s_add_i32 s{S_T0+3}, s{S_T0+2}, {j}\ns_max_i32 s{S_T0+3}, s{S_T0+3}, 0\ns_min_i32 s{S_T0+3}, s{S_T0+3}, 3999")
            a(f"s_lshl_b32 s{S_T0+3}, s{S_T0+3}, 10\ns_add_u32 s{S_T0+3}, s{S_T0+3}, 384")
            a(f"s_load_dword s76, s[{SRD_X}:{SRD_X+1}], s{S_T0+3}")
    need1 = lambda s: [(1, "A", s // 2), (1, "W", s)]
    a(f"s_waitcnt vmcnt({sch.wait_for(need1(0))})")
    a("s_barrier")
    stamp(a, 2)
    def Apart(part):
        l_issue_A(a, c1, SRD_X, OPT["xld"], iA[0], part)
        n0 = 5; n1 = c1.nA // 4 - 5
        sch.add((1, "A", iA[0]), n0 if part == 0 else n1)
        if part == 1: iA[0] += 1
    if c1.RA == 2:
        A(c1, SRD_X, OPT["xld"], 1); W(c1, 1); W(c1, 1)
    else:
        A(c1, SRD_X, OPT["xld"], 1); W(c1, 1); Apart(0)
    for u in (4, 5, 6, 7, 8): w_touch(a, S_PW1, u, 8)
    for s in range(c1.NST):
        if s + 1 < c1.NST:
            nw_ = min(63, sch.wait_for(need1(s+1)))
            if s == 14 and OPT["sidec"]:
                l0, l1 = lab("Lv"), lab("Lv")
                a(f"s_cmp_ge_u32 s{S_WG}, 224\ns_cselect_b32 s{S_T0}, s{S_LW}, 0\ns_cmp_eq_u32 s{S_T0}, 2\ns_cbranch_scc1 {l0}")
                a(f"s_waitcnt vmcnt({nw_})\ns_branch {l1}\n{l0}:\ns_waitcnt vmcnt({min(63, nw_ + 16)})\n{l1}:")
            else:
                a(f"s_waitcnt vmcnt({nw_})")
        a("s_barrier")
        if c1.RA == 2:
            if s % 2 == 1 and iA[0] < c1.NA: A(c1, SRD_X, OPT["xld"], 1)
            if iW[0] < c1.NU: W(c1, 1)
        else:
            if iW[0] < c1.NU: W(c1, 1)
            if iA[0] < c1.NA: Apart(1 if s % 2 == 0 else 0)
        w_touch(a, S_PW1, s + 9, 8)
        if OPT["vtouch"] and s in (1, 7, 9):
            def tch(s=s):
                if s == 1: vtouch8(a, SRD_W, 8)
                else:
                    mk_srd(a, SRD_T, S_PW2, 2621440)
                    vtouch8(a, SRD_T, 0 if s == 7 else 8)
            only(a, f"s_cmp_eq_u32 s{S_LW}, 3", tch)
        if s >= 8 and OPT["t2"]:
            w_touch(a, S_PW2, 2*(s-8), 8); w_touch(a, S_PW2, 2*(s-8) + 1, 8)
        if OPT["stg"] and s in (12, 13):
            if s == 12:
                mk_srd(a, SRD_T, S_PW2, 2621440)
                stage_W2_loads(a, c2, SRD_T, 3)
                sch.add("stg", 15)
            else:
                sch.add("stg", 10)
                b = Asm(); stage_W2_loads(b, c2, SRD_T, 5)
                keep = False
                for l in b.lines:
                    if f"{3*32768}" in l and "s_xor" in l: keep = True
                    if keep: a(l.strip())
        if s == 13 and OPT["sidec"]:
            only(a, f"s_cmp_ge_u32 s{S_WG}, 224\ns_cselect_b32 s{S_T0}, s{S_LW}, 0\ns_cmp_eq_u32 s{S_T0}, 2", lambda: ge_loads_c(a))
        if s == 2:
            mk_srd(a, SRD_T, S_PW2, 2621440)
            a(f"s_mul_i32 s{S_T0+2}, s{S_WG}, 12288\ns_mul_i32 s{S_T0+3}, s{S_LW}, 3072\ns_add_u32 s{S_T0+2}, s{S_T0+2}, s{S_T0+3}")
            a(f"v_lshl_add_u32 v4, v0, 4, s{S_T0+2}")
            for k in range(3): a(f"buffer_load_dwordx4 v[{V_DUMMY}:{V_DUMMY+3}], v4, s[{SRD_T}:{SRD_T+3}], 0 offen offset:{k*1024}")
            mk_srd(a, SRD_T, S_PWG, 524288)
            a(f"s_lshl_b32 s{S_T0+2}, s{S_WG}, 11\ns_lshl_b32 s{S_T0+3}, s{S_LW}, 9\ns_add_u32 s{S_T0+2}, s{S_T0+2}, s{S_T0+3}")
            a(f"v_and_b32 v4, 31, v0\nv_lshl_add_u32 v4, v4, 4, s{S_T0+2}")
            a(f"buffer_load_dwordx4 v[{V_DUMMY}:{V_DUMMY+3}], v4, s[{SRD_T}:{SRD_T+3}], 0 offen")
            sch.add("pf", 4)
        if s == 3:
            read_misc(a, 0, S_TAG)
            a(f"s_lshl_b32 s{S_T0+1}, s{S_X}, 8\ns_add_u32 s{S_T0+1}, s{S_T0+1}, {WS_G0}")
            a(f"v_and_b32 v28, 31, v0\nv_lshlrev_b32 v28, 3, v28\nv_add_u32 v28, s{S_T0+1}, v28")
            def xcc_issue():
                a(f"buffer_load_dwordx2 v[26:27], v28, {WSR}, 0 offen sc1")
            only(a, f"s_cmp_eq_u32 s{S_LW}, 0", xcc_issue)
            mark1 = len(sch.ops)
        if s == 7:
            def xcc_check():
                a(f"s_waitcnt vmcnt({len(sch.ops) - mark1})")
                l0 = lab("Lc")
                a(f"s_mov_b32 s{S_T0+16}, 0\nv_cmp_ne_u32 vcc, s{S_TAG}, v26\ns_cbranch_vccz {l0}")
                poll(a, 28, 26, width=2)
                a(f"{l0}:")
                a(f"s_getreg_b32 s{S_T0}, hwreg(HW_REG_XCC_ID, 0, 4)")
                a(f"v_cmp_ne_u32 vcc, s{S_T0}, v27\ns_nop 4\ns_cmp_eq_u64 vcc, 0\ns_cselect_b32 s{S_FAST}, 1, 0")
                a(f"s_cmp_ge_u32 s{S_T0+16}, {SPIN_MAX}\ns_cselect_b32 s{S_FAST}, 0, s{S_FAST}")
                if OPT["force_slow"]: a(f"s_mov_b32 s{S_FAST}, 0")
                write_misc(a, 4, S_FAST)
            only(a, f"s_cmp_eq_u32 s{S_LW}, 0", xcc_check)
        if s == 6 and not OPT["sidec"]:
            only(a, f"s_cmp_lt_u32 s{S_WG}, 128\ns_cselect_b32 s{S_T0}, s{S_LW}, 0\ns_cmp_eq_u32 s{S_T0}, 1", lambda: relayout_loads(a))
            mark3 = len(sch.ops)
        if s == 11 and not OPT["sidelate"] and not OPT["sidec"]:
            only(a, f"s_cmp_lt_u32 s{S_WG}, 128\ns_cselect_b32 s{S_T0}, s{S_LW}, 0\ns_cmp_eq_u32 s{S_T0}, 1", lambda: relayout_finish(a, len(sch.ops) - mark3))
        if s == 13 and not OPT["sidelate"] and not OPT["sidec"]:
            only(a, f"s_cmp_ge_u32 s{S_WG}, 224\ns_cselect_b32 s{S_T0}, s{S_LW}, 0\ns_cmp_eq_u32 s{S_T0}, 2", lambda: ge_loads(a))
    stamp(a, 3)
    mk_srd(a, SRD_W, S_PW2, 2621440)
    a(f"s_lshl_b32 s{S_T0}, s{S_X}, 19\ns_add_u32 s{S_T0}, s{S_T0}, {WS_H}")
    mk_srd(a, SRD_X, S_PWS, 0x100000, add=f"s{S_T0}")
    iA[0] = 0; iW[0] = 0
    a(f"s_mov_b32 s{S_LSA}, 0\ns_mov_b32 s{S_LSW}, 0")
    if not OPT["sidelate"] and not OPT["sidec"]:
        only(a, f"s_cmp_lt_u32 s{S_WG}, 128\ns_cselect_b32 s{S_T0}, s{S_LW}, 0\ns_cmp_eq_u32 s{S_T0}, 1", lambda: relayout_flag(a))
        only(a, f"s_cmp_ge_u32 s{S_WG}, 224\ns_cselect_b32 s{S_T0}, s{S_LW}, 0\ns_cmp_eq_u32 s{S_T0}, 2", lambda: ge_finish(a))
    npre = int(OPT["npre"])
    if OPT["stg"]:
        npre = 5
        a("s_waitcnt vmcnt(0)")
        stage_W2_write(a, c2, 5)
        iW[0] = 5
        a(f"s_mov_b32 s{S_LSW}, 0")
    else:
        for _ in range(npre): W(c2, 2)
    if OPT["sidec"]:
        only(a, f"s_cmp_ge_u32 s{S_WG}, 224\ns_cselect_b32 s{S_T0}, s{S_LW}, 0\ns_cmp_eq_u32 s{S_T0}, 2", lambda: ge_stage_l(a, 0 if OPT["stg"] else 5*npre))
    def rl_job():
        relayout_finish(a, 0 if OPT["stg"] else 5*npre); relayout_flag(a)
    if OPT["sidelate"] and not OPT["sidec"]: only(a, f"s_cmp_lt_u32 s{S_WG}, 128\ns_cselect_b32 s{S_T0}, s{S_LW}, 0\ns_cmp_eq_u32 s{S_T0}, 1", rl_job)
    def ge_job():
        a("s_waitcnt lgkmcnt(0)")
        ge_loads(a); ge_finish(a)
    if OPT["sidelate"] and not OPT["sidec"]: only(a, f"s_cmp_ge_u32 s{S_WG}, 224\ns_cselect_b32 s{S_T0}, s{S_LW}, 0\ns_cmp_eq_u32 s{S_T0}, 2", ge_job)
    a(f"s_lshl_b32 s{S_T0+8}, s{S_M}, 7")
    a(f"s_cmp_eq_u32 s{S_QQ}, 0\ns_cselect_b32 s{S_T0+10}, 2, 0")
    a(f"s_cmp_eq_u32 s{S_QQ}, 3\ns_cselect_b32 s{S_T0+11}, 0, 522\ns_add_u32 s{S_T0+11}, s{S_T0+11}, 502")
    a(f"s_sub_u32 s{S_T0+11}, s{S_T0+11}, s{S_T0+10}")
    l_setup_a(a, c2, S_T0+8, f"s{S_T0+10}", f"s{S_T0+11}")
    if OPT["seqpre"]:
        l0, l1 = lab("Lq"), lab("Lq")
        a(f"v_mov_b32 v2, {INBOX + 64}\ns_mov_b32 s{S_T0+16}, 0\n{l0}:\nds_read_b128 v[4:7], v2")
        a(f"s_add_u32 s{S_T0+16}, s{S_T0+16}, 1\ns_cmp_ge_u32 s{S_T0+16}, {SPIN_MAX*8}\ns_cbranch_scc1 {l1}")
        a(f"s_waitcnt lgkmcnt(0)\nv_and_b32 v4, v4, v5\nv_and_b32 v6, v6, v7\nv_and_b32 v4, v4, v6\nv_cmp_eq_u32 vcc, 0, v4\ns_cbranch_vccnz {l0}\n{l1}:\ns_waitcnt lgkmcnt(0)")
        while iW[0] < 5: W(c2, 2)
        npre = 5
    a(f"s_lshl_b32 s{S_T0}, s{S_M}, 3\nv_lshrrev_b32 v6, 2, v0\nv_add_u32 v6, s{S_T0}, v6\nv_min_u32 v6, 31, v6")
    a(f"v_lshlrev_b32 v6, 4, v6\nv_and_b32 v7, 3, v0\nv_lshl_add_u32 v6, v7, 2, v6")
    a(f"s_lshl_b32 s{S_T0}, s{S_X}, 9\ns_add_u32 s{S_T0}, s{S_T0}, {WS_F1}\nv_add_u32 v6, s{S_T0}, v6")
    poll(a, 6, 7)
    sch.ops = []
    stamp(a, 4)
    A(c2, SRD_X, "sc1", 2)
    if npre < 3: W(c2, 2)
    A(c2, SRD_X, "sc1", 2)
    if npre < 4: W(c2, 2)
    a(f"s_waitcnt vmcnt({sch.wait_for([(2, 'A', 0)])}) lgkmcnt(0)")
    a("s_barrier")
    stamp(a, 5)
    if npre < 5: W(c2, 2)
    A(c2, SRD_X, "sc1", 2)
    for s in range(c2.NST):
        if s + 1 < c2.NST:
            tags = [(2, "A", s+1), (2, "W", 2*s+2), (2, "W", 2*s+3)]
            tags = [t for t in tags if t in sch.ops]
            a(f"s_waitcnt vmcnt({min(63, sch.wait_for(tags))})")
        a("s_barrier")
        if iW[0] < c2.NU: W(c2, 2)
        if iA[0] < c2.NA: A(c2, SRD_X, "sc1", 2)
        if iW[0] < c2.NU: W(c2, 2)
        if s == 4:
            a(f"v_lshlrev_b32 v28, 2, v0\nv_add_u32 v28, {WS_RL}, v28\nv_add_u32 v29, 256, v28")
            a(f"v_and_b32 v30, 31, v0\nv_lshlrev_b32 v30, 3, v30\nv_add_u32 v30, {WS_GE}, v30")
            def side_issue():
                a(f"buffer_load_dword v24, v28, {WSR}, 0 offen sc1\nbuffer_load_dword v25, v29, {WSR}, 0 offen sc1")
                a(f"buffer_load_dwordx2 v[26:27], v30, {WSR}, 0 offen sc1")
            only(a, f"s_cmp_eq_u32 s{S_LW}, 3", side_issue)
            mark2 = len(sch.ops)
        if s == 6:
            def side_check():
                a(f"s_waitcnt vmcnt({len(sch.ops) - mark2})")
                for (vv, va, w) in [(24, 28, 1), (25, 29, 1), (26, 30, 2)]:
                    l0 = lab("Lc")
                    a(f"v_cmp_ne_u32 vcc, s{S_TAG}, v{vv}\ns_cbranch_vccz {l0}")
                    poll(a, va, vv, width=w)
                    a(f"{l0}:")
                a(f"v_cmp_ne_u32 vcc, 0, v27\ns_nop 4\ns_cmp_lg_u64 vcc, 0\ns_cselect_b32 s{S_UNS}, 1, 0")
                write_misc(a, 8, S_UNS)
            only(a, f"s_cmp_eq_u32 s{S_LW}, 3", side_check)
        if OPT["stg"] and s == 5: stage_WF_loads(a, 0, 16); sch.add("stg", 16)
        if OPT["stg"] and s == 6: stage_WF_loads(a, 16, 32); sch.add("stg", 16)
        if s == 7:
            read_misc(a, 8, S_UNS)
    stamp(a, 6)
    if OPT["stg"]:
        a("s_waitcnt vmcnt(0)")
        stage_WF_write(a)
    else:
        fe_l_wpre(a, 0)
    fe_l(a, sch)
    stamp(a, 8)
    joint_l(a)
    stamp(a, 10)
    cond0 = f"s_cmp_eq_u32 s{S_WG}, 0\ns_cselect_b32 s{S_T0}, s{S_LW}, 0\ns_cmp_eq_u32 s{S_T0}, 2"
    for k in range(4): a(f"v_lshlrev_b32 v{48+k}, 3, v0\nv_add_u32 v{48+k}, {WS_G0 + k*512}, v{48+k}")
    def nonce_issue():
        for k in range(4): a(f"buffer_load_dwordx2 v[{52+2*k}:{53+2*k}], v{48+k}, {WSR}, 0 offen sc1")
    only(a, cond0, nonce_issue)
    n = joint_store(a, 0, False)
    a("s_barrier")
    joint_store_issue(a, n, OPT["pace"])
    stamp(a, 11)
    def nonce_update():
        a(f"s_waitcnt vmcnt({n})")
        for k in range(4):
            l0 = lab("Lc")
            a(f"v_cmp_ne_u32 vcc, s{S_TAG}, v{52+2*k}\ns_cbranch_vccz {l0}")
            poll(a, 48+k, 52+2*k, width=2)
            a(f"{l0}:")
        a(f"s_mov_b32 s{S_T0+8}, {WS_NONCE}")
        flag_store(a, S_T0+8, fast_variant=False)
    only(a, cond0, nonce_update)
    n = joint_store(a, 1, True)
    a("s_barrier")
    joint_store_issue(a, n)
    a("L_fin:")
    a("s_waitcnt vmcnt(0)")
    if OPT["dbg"]:
        def dbgw():
            a("s_memrealtime s[74:75]\ns_waitcnt lgkmcnt(0)")
            mk_srd(a, SRD_T, S_PDBG, 256)
            a(f"s_lshl_b32 s{S_T0}, s{S_WG}, 2\nv_mov_b32 v2, s{S_T0}\nv_mov_b32 v3, s76\nv_mov_b32 v4, s74")
            a(f"buffer_store_dword v3, v2, s[{SRD_T}:{SRD_T+3}], 0 offen\nbuffer_store_dword v4, v2, s[{SRD_T}:{SRD_T+3}], 0 offen offset:32")
            a("s_waitcnt vmcnt(0)")
        only(a, f"s_cmp_lt_u32 s{S_WG}, 8\ns_cselect_b32 s{S_T0}, s{S_WAVE}, 1\ns_cmp_eq_u32 s{S_T0}, 0", dbgw)
    stamp(a, 12)
    stamp_flush(a, 14, "L_stx")
    a("L_end:")
    a("s_endpgm")
    a("L_code_end:")
    if OPT["codepf"]:
        a.lines.insert(0, ".set CODE_LAST, L_code_end - L_pc_here - 16")
    return file_text([(None, (256,1,1), (512,1,1), 160*1024)], a.text(), [kernel_desc(KN, 256, 102)])

if __name__ == "__main__":
    for arg in sys.argv[2:]:
        if arg == "--stamp": OPT["stamp"] = True
        elif arg == "--cyc": OPT["cyc"] = True
        elif arg.startswith("--o="):
            k, v = arg[4:].split("=", 1)
            OPT[k] = None if v == "None" else (True if v == "True" else (False if v == "False" else (int(v) if v.isdigit() else v.replace("+", " "))))
    open(sys.argv[1], "w").write(emit())
```

```python
import sys
from asmlib import *
import gen as G
from gen import (f2h, mk_srd, load_ptrs, ids, Conv, swz_of, xfrag_read, wfrag_reads, group_reads, group_mfmas, interleave,
                 gelu_consts, gelu_block, LSched, C2LOG2E, OOB, SWZ_TBL,
                 WS_H, WS_F, WS_P, WS_WO, WS_WF, WS_QE, WS_QR,
                 S_WG, SRD_X, SRD_W, SRD_WS, SRD_OUT, SRD_T, S_PX, S_PW1, S_PW2, S_PG, S_PWF, S_PWG, S_PWO, S_POUT, S_PDBG, S_PWS,
                 S_X, S_Q, S_B, S_QQ, S_M, S_N, S_WAVE, S_LW, S_T0, S_CNT, S_GRP, S_UNS,
                 V_ACC, V_E0, V_E1, V_O, V_W, V_XA0, V_XA1, V_WA0, V_WA1, V_XB, V_WB0, V_WB1, S_SLOTA, S_SLOTW,
                 V_LA, V_LWV, S_OFA, S_OFW, S_LSA, S_LSW)

WS_NONCE = 0x0F30000
WS_G0    = 0x0F31000
WS_F1    = 0x0F32000
WS_F2    = 0x0F33000
WS_F3    = 0x0F34000
WS_RL    = 0x0F35000
WS_GE    = 0x0F36000
WS_STAMP = 0x1000000
S_TAG, S_FAST = 86, 87
MISC = 163584
INBOX = MISC + 64
SPIN_MAX = 40000

OPT = dict(cpace=0, fesplit=12, fewreg=True, cpre=False, nobar=False, notanh=False, fastA0=True, wo_pre=6, wbl2=False, wbq=5, seqpre=False, sidec=True, stg=False, tailst=False, cloopcnt=True, hot=False, vtouch=True, sidelate=True, npre=2, t2=False, tx=False, gelupk=True, lprio=0, pace=3, nepi=6, steps=False, wstep=4096, jst=False, wold='', nomfma=False, nowl=False, pk=False, ostage=True, twist=True, wowarm=True, wtouch=None, qperm=0, dbg=False, codepf=True, stamp=False, cyc=False, xpf=None, xld="", scout="nt", scl_fast="", force_slow=False)
S_ST = 88
def tstamp(a, i, which=1):
    if OPT["tailst"] and int(OPT["tailst"]) == which: stamp(a, i, True)
def stamp(a, i, force=False):
    if OPT["tailst"] and i in (7, 8, 9, 13) and not force: return
    if OPT["stamp"]:
        a(f"{'s_memtime' if OPT['cyc'] else 's_memrealtime'} s[74:75]")
        a("s_waitcnt lgkmcnt(0)")
        a(f"s_mov_b32 s{S_ST+i}, s74")
def stamp_flush(a, n, lab):
    if not OPT["stamp"]: return
    a(f"s_and_b32 s{S_T0}, s{S_WAVE}, 3\ns_cmp_eq_u32 s{S_T0}, 0\ns_cbranch_scc0 {lab}")
    a(f"s_lshr_b32 s{S_T0}, s{S_WAVE}, 2\ns_lshl_b32 s{S_T0}, s{S_T0}, 6")
    a(f"s_lshl_b32 s{S_T0+1}, s{S_WG}, 7\ns_add_u32 s{S_T0}, s{S_T0}, s{S_T0+1}")
    a(f"s_add_u32 s{S_T0}, s{S_T0}, {WS_STAMP}")
    for i in range(n):
        a(f"v_mov_b32 v2, s{S_ST+i}\nv_mov_b32 v3, s{S_T0}")
        a(f"buffer_store_dword v2, v3, s[{SRD_WS}:{SRD_WS+3}], 0 offen offset:{4*i}")
    a("s_waitcnt vmcnt(0)")
    a(f"{lab}:")

LABN = [0]
def lab(p="L"):
    LABN[0] += 1
    return f"{p}_{LABN[0]}"

WSR = f"s[{SRD_WS}:{SRD_WS+3}]"

def poll(a, vaddr, vtmp, width=1):
    l0, l1 = lab("Lp"), lab("Lp")
    a(f"s_mov_b32 s{S_T0+16}, 0")
    a(f"{l0}:")
    if width == 1: a(f"buffer_load_dword v{vtmp}, v{vaddr}, {WSR}, 0 offen sc1")
    else: a(f"buffer_load_dwordx2 v[{vtmp}:{vtmp+1}], v{vaddr}, {WSR}, 0 offen sc1")
    a(f"s_add_u32 s{S_T0+16}, s{S_T0+16}, 1")
    a(f"s_cmp_ge_u32 s{S_T0+16}, {SPIN_MAX}")
    a(f"s_cbranch_scc1 {l1}")
    a("s_waitcnt vmcnt(0)")
    a(f"v_cmp_ne_u32 vcc, s{S_TAG}, v{vtmp}")
    a(f"s_cbranch_vccnz {l0}")
    a(f"{l1}:")
    a("s_waitcnt vmcnt(0)")

def flag_store(a, off_sgpr, fast_variant=True):
    a(f"v_mov_b32 v2, s{S_TAG}\nv_mov_b32 v3, s{off_sgpr}")
    a(f"s_mov_b64 s[{S_T0+14}:{S_T0+15}], exec\ns_mov_b64 exec, 1")
    if fast_variant:
        l0, l1 = lab("Lf"), lab("Lf")
        a(f"s_cmp_eq_u32 s{S_FAST}, 0\ns_cbranch_scc1 {l0}")
        a(f"buffer_store_dword v2, v3, {WSR}, 0 offen")
        a(f"s_branch {l1}\n{l0}:")
        a(f"buffer_store_dword v2, v3, {WSR}, 0 offen sc1")
        a(f"{l1}:")
    else:
        a(f"buffer_store_dword v2, v3, {WSR}, 0 offen sc1")
    a(f"s_mov_b64 exec, s[{S_T0+14}:{S_T0+15}]")

def local_stores(a, instrs):
    l0, l1 = lab("Ls"), lab("Ls")
    a(f"s_cmp_eq_u32 s{S_FAST}, 0\ns_cbranch_scc1 {l0}")
    for i in instrs: a(i.replace("{SC}", OPT["scl_fast"]))
    a(f"s_branch {l1}\n{l0}:")
    for i in instrs: a(i.replace("{SC}", "sc1"))
    a(f"{l1}:")

def pair_sync(a, event, partner_xor):
    l0, l1 = lab("Ly"), lab("Ly")
    a("s_waitcnt lgkmcnt(0)")
    a(f"s_xor_b32 s{S_T0+12}, s{S_LW}, {partner_xor}")
    a(f"s_lshl_b32 s{S_T0+12}, s{S_T0+12}, 2\ns_add_u32 s{S_T0+12}, s{S_T0+12}, {INBOX + event*16}")
    a(f"s_lshl_b32 s{S_T0+13}, s{S_LW}, 2\ns_add_u32 s{S_T0+13}, s{S_T0+13}, {INBOX + event*16}")
    a(f"v_mov_b32 v2, s{S_T0+12}\nv_mov_b32 v3, 1\nds_write_b32 v2, v3")
    a(f"v_mov_b32 v2, s{S_T0+13}\ns_mov_b32 s{S_T0+16}, 0")
    a(f"{l0}:")
    a("ds_read_b32 v3, v2")
    a(f"s_add_u32 s{S_T0+16}, s{S_T0+16}, 1\ns_cmp_ge_u32 s{S_T0+16}, {SPIN_MAX*8}\ns_cbranch_scc1 {l1}")
    a("s_waitcnt lgkmcnt(0)")
    a("v_cmp_eq_u32 vcc, 0, v3")
    a(f"s_cbranch_vccnz {l0}")
    a(f"{l1}:")
    a("s_waitcnt lgkmcnt(0)")

def conv_c_loop(a, c, st0):
    t = c.tag
    stamp(a, st0)
    a("s_barrier")
    stamp(a, st0 + 1)
    for r in group_reads(c, V_E0, 0, 0): a(r)
    for r in group_reads(c, V_E0, 1, 1): a(r)
    a(f"s_mov_b32 s{S_CNT}, 0")
    a(f"L_{t}_cloop:")
    SETS = [[V_WA0, V_XA0, V_WA1, V_XA1], [18, 19, 20, 21]]
    def use(r, st):
        return (r.replace(f", v{V_WA0} ", f", v{st[0]} ").replace(f", v{V_XA0} ", f", v{st[1]} ")
                 .replace(f", v{V_WA1} ", f", v{st[2]} ").replace(f", v{V_XA1} ", f", v{st[3]} "))
    for par in range(2):
        es, en = (V_E0, V_E1) if par == 0 else (V_E1, V_E0)
        cur, nxt = SETS[par], SETS[1 - par]
        a("s_waitcnt lgkmcnt(8)")
        interleave(a, group_mfmas(es, 0, 0), [use(r, cur) for r in group_reads(c, es, 2, 2)])
        a("s_waitcnt lgkmcnt(5)")
        sc = []
        if c.idx == 1:
            sc += [f"s_add_u32 s{S_SLOTW}, s{S_SLOTW}, {c.WB}", f"s_cmp_ge_u32 s{S_SLOTW}, {c.RW * c.WB}", f"s_cselect_b32 s{S_SLOTW}, 0, s{S_SLOTW}"]
            if par == 1:
                if c.RA == 2: sc += [f"s_xor_b32 s{S_SLOTA}, s{S_SLOTA}, {c.AB}"]
                else: sc += [f"s_add_u32 s{S_SLOTA}, s{S_SLOTA}, {c.AB}", f"s_cmp_ge_u32 s{S_SLOTA}, {c.RA * c.AB}", f"s_cselect_b32 s{S_SLOTA}, 0, s{S_SLOTA}"]
            xb = V_XB + (2 if par == 0 else 0)
        else:
            sc += [f"s_add_u32 s{S_SLOTW}, s{S_SLOTW}, {2 * c.WB}", f"s_add_u32 s{S_T0}, s{S_SLOTW}, s{S_GRP}",
                   f"s_cmp_ge_u32 s{S_T0}, {c.RW * c.WB}", f"s_cselect_b32 s{S_T0}, {c.RW * c.WB}, 0", f"s_sub_u32 s{S_SLOTW}, s{S_SLOTW}, s{S_T0}",
                   f"s_add_u32 s{S_SLOTA}, s{S_SLOTA}, {2 * c.AB}", f"s_cmp_ge_u32 s{S_SLOTA}, {c.RA * c.AB}",
                   f"s_cselect_b32 s{S_T0}, {c.RA * c.AB}, 0", f"s_sub_u32 s{S_SLOTA}, s{S_SLOTA}, s{S_T0}"]
            xb = V_XB
        rd = [use(r, cur) for r in group_reads(c, es, 3, 3)]
        mf = group_mfmas(es, 1, 1)
        k = 0
        for i, m in enumerate(mf):
            a(m)
            if i < len(rd): a(rd[i])
            else:
                while k < len(sc) and k < 3 * (i - len(rd) + 1): a(sc[k]); k += 1
        while k < len(sc): a(sc[k]); k += 1
        a("s_waitcnt lgkmcnt(5)")
        rd = [use(r, cur) for r in group_reads(c, es, 4, 4)]
        nx = [f"v_add_u32 v{nxt[0]}, s{S_SLOTW}, v{V_WB0}", f"v_add_u32 v{nxt[1]}, s{S_SLOTA}, v{xb}",
              f"v_add_u32 v{nxt[2]}, s{S_SLOTW}, v{V_WB1}", f"v_add_u32 v{nxt[3]}, s{S_SLOTA}, v{xb+1}"]
        mf = group_mfmas(es, 2, 2)
        oth = rd + nx[:3]
        for i, m in enumerate(mf):
            a(m)
            if i < len(oth): a(oth[i])
            if i == len(mf) - 2: a(nx[3])
        if OPT["cloopcnt"] and par == 1:
            pass
        a("s_waitcnt lgkmcnt(0)")
        a("s_barrier")
        interleave(a, group_mfmas(es, 3, 3), [use(r, nxt) for r in group_reads(c, en, 0, 0)])
        r1 = [use(r, nxt) for r in group_reads(c, en, 1, 1)]
        if par == 1:
            mf = group_mfmas(es, 4, 4)
            interleave(a, mf[:-1], r1[:-1])
            a(r1[-1]) if len(r1) >= len(mf) else None
            a(f"s_add_u32 s{S_CNT}, s{S_CNT}, 2")
            a(f"s_cmp_lt_u32 s{S_CNT}, {c.NST}")
            a(mf[-1])
        else:
            interleave(a, group_mfmas(es, 4, 4), r1)
            if c.idx == 2 and OPT["sidec"]:
                l2 = lab("Le")
                a(f"s_cmp_eq_u32 s{S_CNT}, 0\ns_cbranch_scc0 {l2}")
                side_flag_deferred(a)
                a(f"{l2}:")
    a(f"s_cbranch_scc1 L_{t}_cloop")
    a("s_waitcnt lgkmcnt(0)")
    stamp(a, st0 + 2)

V_TW0, V_TW1, V_TR = 236, 237, 238
V_SO = 240
V_GC = 244
V_XW, V_XR = 250, 251
S_GB, S_FA = 73, 72
S_FA = 76

def tbuf_write_addr(a, base, wm_shift):
    a(f"""
    v_and_b32 v2, 15, v0
    v_lshrrev_b32 v3, 4, v0
    s_and_b32 s{S_T0}, s{S_LW}, 1
    s_lshl_b32 s{S_T0}, s{S_T0}, 3
    v_or_b32 v4, s{S_T0}, v3
    v_and_b32 v5, 14, v2
    v_xor_b32 v4, v4, v5
    v_lshlrev_b32 v4, 3, v4
    v_lshl_add_u32 v{V_TW0}, v2, 9, v4
    """)
    if wm_shift:
        a(f"s_lshr_b32 s{S_T0}, s{S_LW}, 1\ns_lshl_b32 s{S_T0}, s{S_T0}, 13\nv_add_u32 v{V_TW0}, s{S_T0}, v{V_TW0}")
    a(f"v_xor_b32 v{V_TW1}, 32, v{V_TW0}")
    if base: a(f"v_add_u32 v{V_TW0}, {base}, v{V_TW0}\nv_add_u32 v{V_TW1}, {base}, v{V_TW1}")

def flag_addr(a, base):
    a(f"s_lshl_b32 s{S_FA}, s{S_X}, 9\ns_lshl_b32 s{S_T0+9}, s{S_Q}, 4\ns_add_u32 s{S_FA}, s{S_FA}, s{S_T0+9}")
    a(f"s_lshl_b32 s{S_T0+9}, s{S_LW}, 2\ns_add_u32 s{S_FA}, s{S_FA}, s{S_T0+9}\ns_add_u32 s{S_FA}, s{S_FA}, {base}")

def wave_flag(a):
    a("s_waitcnt vmcnt(0)")
    flag_store(a, S_FA)

def gelu_block2(a, src, n, tmp, vc, dst):
    if OPT["gelupk"]: return gelu_block(a, src, n, tmp, vc, dst)
    for p in range(n): a(f"v_mul_f32 v{tmp+p}, v{src+p}, v{src+p}")
    for p in range(n): a(f"v_fma_f32 v{tmp+p}, v{tmp+p}, v{vc}, v{vc+2}")
    for p in range(n): a(f"v_mul_f32 v{tmp+p}, v{tmp+p}, v{src+p}")
    for p in range(n): a(f"v_exp_f32 v{tmp+p}, v{tmp+p}")
    for p in range(n): a(f"v_add_f32 v{tmp+p}, 1.0, v{tmp+p}")
    for p in range(n): a(f"v_rcp_f32 v{tmp+p}, v{tmp+p}")
    for p in range(n): a(f"v_mul_f32 v{tmp+p}, v{tmp+p}, v{src+p}")
    for p in range(0, n, 2): a(f"v_cvt_pk_bf16_f32 v{dst+p//2}, v{tmp+p}, v{tmp+p+1}")

def conv1_tail_pre(a):
    tbuf_write_addr(a, 0, True)
    gelu_consts(a, V_GC)
    a(f"s_lshl_b32 s{S_T0}, s{S_LW}, 12\nv_lshl_add_u32 v{V_TR}, v0, 4, s{S_T0}")
    a("v_and_b32 v5, 7, v0\nv_lshrrev_b32 v6, 3, v0\nv_lshlrev_b32 v6, 10, v6")
    for k in range(4):
        a(f"s_and_b32 s{S_T0+2}, s{S_LW}, 1\ns_lshl_b32 s{S_T0+2}, s{S_T0+2}, 2\ns_add_u32 s{S_T0+2}, s{S_T0+2}, {k}")
        a(f"v_xor_b32 v7, s{S_T0+2}, v5\nv_lshl_add_u32 v7, v7, 4, v6\nv_add_u32 v{V_SO+k}, {k*8192}, v7")
    a(f"""
    s_lshl_b32 s{S_GB}, s{S_X}, 19
    s_lshl_b32 s{S_T0+9}, s{S_M}, 17
    s_add_u32 s{S_GB}, s{S_GB}, s{S_T0+9}
    s_lshl_b32 s{S_T0+9}, s{S_N}, 7
    s_add_u32 s{S_GB}, s{S_GB}, s{S_T0+9}
    s_lshl_b32 s{S_T0+9}, s{S_LW}, 15
    s_add_u32 s{S_GB}, s{S_GB}, s{S_T0+9}
    s_add_u32 s{S_GB}, s{S_GB}, {WS_H}
    """)
    flag_addr(a, WS_F1)

def read_tag_fast(a):
    a(f"v_mov_b32 v2, {MISC}\nds_read_b64 v[4:5], v2\ns_waitcnt lgkmcnt(0)\nv_readfirstlane_b32 s{S_TAG}, v4\nv_readfirstlane_b32 s{S_FAST}, v5")

def conv1_tail_c(a):
    a(f"v_mov_b32 v2, {MISC}\nds_read_b64 v[4:5], v2")
    a("s_nop 4")
    for jj in range(4):
        gelu_block2(a, V_ACC + jj*8, 8, 64, V_GC, 72 + jj*4)
        if jj == 0: a(f"v_readfirstlane_b32 s{S_TAG}, v4\nv_readfirstlane_b32 s{S_FAST}, v5") if False else None
        for nb in range(2):
            r = 72 + jj*4 + nb*2
            a(f"ds_write_b64 v{V_TW1 if nb else V_TW0}, v[{r}:{r+1}] offset:{jj*128}")
    tstamp(a, 7)
    pair_sync(a, 0, 1)
    a(f"v_readfirstlane_b32 s{S_TAG}, v4\nv_readfirstlane_b32 s{S_FAST}, v5")
    tstamp(a, 8)
    for k in range(4): a(f"ds_read_b128 v[{24+4*k}:{27+4*k}], v{V_TR} offset:{k*1024}")
    a("s_waitcnt lgkmcnt(0)")
    tstamp(a, 9)
    local_stores(a, [f"buffer_store_dwordx4 v[{24+4*k}:{27+4*k}], v{V_SO+k}, {WSR}, s{S_GB} offen {{SC}}" for k in range(4)])
    c_stores_issued(a)
    if OPT["tailst"] and int(OPT["tailst"]) == 1:
        a("s_waitcnt vmcnt(0)"); tstamp(a, 13)
    wave_flag(a)

def c_stores_issued(a):
    if not OPT["seqpre"]: return
    a(f"s_lshl_b32 s{S_T0}, s{S_LW}, 2\ns_add_u32 s{S_T0}, s{S_T0}, {INBOX + 64}\nv_mov_b32 v2, s{S_T0}\nv_mov_b32 v3, 1\nds_write_b32 v2, v3")

C2_T = 131072
C2_X = C2_T + 8192
def conv2_tail_pre(a):
    a(f"s_lshl_b32 s{S_T0}, s{S_LW}, 12\ns_add_u32 s{S_T0}, s{S_T0}, {C2_X}\nv_lshl_add_u32 v{V_XW}, v0, 4, s{S_T0}")
    a(f"s_xor_b32 s{S_T0}, s{S_LW}, 2\ns_lshl_b32 s{S_T0}, s{S_T0}, 12\ns_add_u32 s{S_T0}, s{S_T0}, {C2_X}\nv_lshl_add_u32 v{V_XR}, v0, 4, s{S_T0}")
    tbuf_write_addr(a, C2_T, False)
    gelu_consts(a, V_GC)
    a(f"s_lshr_b32 s{S_T0}, s{S_LW}, 1\ns_lshl_b32 s{S_T0}, s{S_T0}, 8")
    a(f"v_add_u32 v{V_TW0}, s{S_T0}, v{V_TW0}\nv_add_u32 v{V_TW1}, s{S_T0}, v{V_TW1}")
    a(f"""
    v_lshrrev_b32 v2, 4, v0
    s_and_b32 s{S_T0}, s{S_LW}, 1
    s_lshl_b32 s{S_T0}, s{S_T0}, 3
    v_add_u32 v2, s{S_T0}, v2
    v_bfe_u32 v3, v0, 3, 1
    s_lshr_b32 s{S_T0+1}, s{S_LW}, 1
    s_lshl_b32 s{S_T0+1}, s{S_T0+1}, 1
    v_add_u32 v3, s{S_T0+1}, v3
    v_and_b32 v5, 7, v0
    """)
    for k in range(2):
        a(f"v_add_u32 v6, {4*k}, v2\nv_lshl_add_u32 v7, v6, 2, v3")
        a(f"v_lshlrev_b32 v22, 7, v7\nv_lshl_add_u32 v22, v5, 4, v22\nv_add_u32 v{V_TR+k}, {C2_T}, v22")
        a(f"v_bfe_u32 v22, v6, 1, 3\nv_xor_b32 v22, v22, v5\nv_lshlrev_b32 v22, 4, v22\nv_lshl_add_u32 v{V_SO+k}, v7, 10, v22")
    a(f"""
    s_lshl_b32 s{S_GB}, s{S_X}, 18
    s_lshl_b32 s{S_T0+9}, s{S_M}, 16
    s_add_u32 s{S_GB}, s{S_GB}, s{S_T0+9}
    s_lshl_b32 s{S_T0+9}, s{S_N}, 7
    s_add_u32 s{S_GB}, s{S_GB}, s{S_T0+9}
    s_add_u32 s{S_GB}, s{S_GB}, {WS_F}
    """)
    flag_addr(a, WS_F2)

def conv2_tail_c(a):
    a(f"v_mov_b32 v2, {MISC + 8}\nds_read_b32 v4, v2")
    a("s_nop 4")
    l0, l1 = lab("Lk"), lab("Lk")
    a(f"s_cmp_ge_u32 s{S_LW}, 2\ns_cbranch_scc1 {l0}")
    for q in range(4): a(f"ds_write_b128 v{V_XW}, v[{V_ACC+16+4*q}:{V_ACC+19+4*q}] offset:{q*1024}")
    a(f"s_branch {l1}\n{l0}:")
    for q in range(4): a(f"ds_write_b128 v{V_XW}, v[{V_ACC+4*q}:{V_ACC+3+4*q}] offset:{q*1024}")
    a("s_waitcnt lgkmcnt(0)")
    for r in range(16): a(f"v_mov_b32 v{V_ACC+r}, v{V_ACC+16+r}")
    a(f"{l1}:")
    pair_sync(a, 1, 2)
    a(f"v_readfirstlane_b32 s{S_UNS}, v4")
    tstamp(a, 7, 2)
    for q in range(4): a(f"ds_read_b128 v[{64+4*q}:{67+4*q}], v{V_XR} offset:{q*1024}")
    for q in range(4):
        a(f"s_waitcnt lgkmcnt({3-q})")
        for p in (4*q, 4*q+2):
            a(f"v_pk_add_f32 v[{V_ACC+p}:{V_ACC+p+1}], v[{V_ACC+p}:{V_ACC+p+1}], v[{64+p}:{64+p+1}]")
    for jj in range(2):
        gelu_block2(a, V_ACC + jj*8, 8, 80, V_GC, 72 + jj*4)
        for nb in range(2):
            r = 72 + jj*4 + nb*2
            a(f"ds_write_b64 v{V_TW1 if nb else V_TW0}, v[{r}:{r+1}] offset:{jj*128}")
    tstamp(a, 8, 2)
    pair_sync(a, 2, 1)
    for k in range(2): a(f"ds_read_b128 v[{24+4*k}:{27+4*k}], v{V_TR+k}")
    a("s_waitcnt lgkmcnt(0)")
    tstamp(a, 9, 2)
    local_stores(a, [f"buffer_store_dwordx4 v[{24+4*k}:{27+4*k}], v{V_SO+k}, {WSR}, s{S_GB} offen {{SC}}" for k in range(2)])
    if OPT["tailst"] and int(OPT["tailst"]) == 2:
        a("s_waitcnt vmcnt(0)"); tstamp(a, 13, 2)
    wave_flag(a)

def read_misc(a, off, sreg):
    a(f"v_mov_b32 v2, {MISC + off}\nds_read_b32 v3, v2\ns_waitcnt lgkmcnt(0)\nv_readfirstlane_b32 s{sreg}, v3")
def write_misc(a, off, sreg):
    a(f"v_mov_b32 v2, {MISC + off}\nv_mov_b32 v3, s{sreg}\nds_write_b32 v2, v3\ns_waitcnt lgkmcnt(0)")

V_DUMMY = 200
def x_prefetch(a):
    d = V_DUMMY
    a(f"""
    v_lshlrev_b32 v4, 4, v0
    s_mul_i32 s{S_T0}, s{S_QQ}, 1000
    s_mul_i32 s{S_T0+1}, s{S_Q}, 33
    s_add_u32 s{S_T0}, s{S_T0}, s{S_T0+1}
    s_lshl_b32 s{S_T0+1}, s{S_LW}, 3
    s_add_u32 s{S_T0}, s{S_T0}, s{S_T0+1}
    s_sub_u32 s{S_T0}, s{S_T0}, 6
    s_lshl_b32 s{S_T0}, s{S_T0}, 10
    v_add_u32 v5, s{S_T0}, v4
    """)
    for k in range(9):
        a(f"buffer_load_dwordx4 v[{d}:{d+3}], v5, s[{SRD_X}:{SRD_X+3}], 0 offen {OPT['xpf']}")
        a(f"v_add_u32 v5, 1024, v5")

FE_W = 0
FE_A = 131072
def fe_c(a):
    a("v_and_b32 v2, 15, v0\nv_lshrrev_b32 v3, 4, v0")
    swz_of(a, 2, 4, S_T0+2)
    a(f"v_xor_b32 v4, v4, v3\nv_lshlrev_b32 v4, 4, v4\nv_lshl_add_u32 v8, v2, 7, v4\nv_add_u32 v8, {FE_A}, v8\nv_xor_b32 v9, 64, v8")
    a(f"s_lshl_b32 s{S_T0}, s{S_LW}, 15\nv_lshl_add_u32 v10, v0, 4, s{S_T0}")
    for r in range(16): a(f"v_mov_b32 v{32+r}, 0")
    a(f"""
    v_lshlrev_b32 v4, 11, v2
    v_lshl_add_u32 v{V_SO}, v3, 4, v4
    v_add_u32 v{V_SO+1}, 0x8000, v{V_SO}
    s_lshr_b32 s{S_T0}, s{S_Q}, 2
    s_lshl_b32 s{S_T0}, s{S_T0}, 16
    s_and_b32 s{S_T0+1}, s{S_Q}, 3
    s_lshl_b32 s{S_T0+1}, s{S_T0+1}, 9
    s_add_u32 s{S_T0}, s{S_T0}, s{S_T0+1}
    s_lshl_b32 s{S_T0+1}, s{S_LW}, 7
    s_add_u32 s{S_T0}, s{S_T0}, s{S_T0+1}
    s_lshl_b32 s{S_T0+1}, s{S_X}, 19
    s_add_u32 s{S_T0}, s{S_T0}, s{S_T0+1}
    s_add_u32 s{S_GB}, s{S_T0}, {WS_P}
    v_mov_b32 v6, {f2h(126.0)}
    v_mov_b32 v7, {f2h(-126.0)}
    """)
    flag_addr(a, WS_F3)
    wreg = OPT["fewreg"]
    def wloc(sidx, nbl):
        if wreg and sidx < min(FE_SPLIT, 12): return 128 + (sidx*2 + nbl) * 4
        return 64 + (sidx & 3) * 16 + 8 + 4*nbl
    if wreg:
        a("s_barrier")
        for sidx in range(min(FE_SPLIT, 12)):
            for nbl in range(2):
                r = wloc(sidx, nbl)
                a(f"ds_read_b128 v[{r}:{r+3}], v10 offset:{nbl*16384 + sidx*1024}")
            if sidx % 4 == 3: a("s_waitcnt lgkmcnt(0)")
    def rd(sidx):
        du, h = sidx >> 1, sidx & 1
        reg = 64 + (sidx & 3) * 16
        out = []
        if not (wreg and sidx < min(FE_SPLIT, 12)):
            out = [f"ds_read_b128 v[{reg+8+4*nbl}:{reg+11+4*nbl}], v10 offset:{nbl*16384 + sidx*1024}" for nbl in range(2)]
        out += [f"ds_read_b128 v[{reg+4*tb}:{reg+4*tb+3}], v{8+h} offset:{du*4096 + tb*2048}" for tb in range(2)]
        return out
    for ph in range(4):
        a("s_barrier")
        if ph == 0: stamp(a, 7)
        steps = list(range(4*ph, 4*ph+4))
        n = len(rd(steps[0]))
        for sidx in steps[:3]:
            for r in rd(sidx): a(r)
        for j, sidx in enumerate(steps):
            a(f"s_waitcnt lgkmcnt({[2*n, 2*n, n, 0][j]})")
            reg = 64 + (sidx & 3) * 16
            mf = []
            for tb in range(2):
                for nbl in range(2):
                    acc = 32 + (tb*2 + nbl) * 4
                    w = wloc(sidx, nbl)
                    mf.append(f"v_mfma_f32_16x16x32_bf16 v[{acc}:{acc+3}], v[{w}:{w+3}], v[{reg+4*tb}:{reg+4*tb+3}], v[{acc}:{acc+3}]")
            interleave(a, mf, rd(steps[3]) if j == 0 else [])
    a("s_barrier")
    stamp(a, 8)
    a("s_nop 7")
    a(f"s_mov_b32 s{S_T0}, {f2h(C2LOG2E)}")
    for r in range(16): a(f"v_mul_f32 v{32+r}, s{S_T0}, v{32+r}")
    l0 = lab("Lr")
    a(f"s_cmp_eq_u32 s{S_UNS}, 0\ns_cbranch_scc0 {l0}")
    for r in range(16): a(f"v_med3_f32 v{32+r}, v{32+r}, v7, v6")
    for r in range(16): a(f"v_exp_f32 v{32+r}, v{32+r}")
    a(f"{l0}:")
    st = []
    for tb in range(2):
        for nbl in range(2):
            acc = 32 + (tb*2 + nbl) * 4
            st.append(f"buffer_store_dwordx4 v[{acc}:{acc+3}], v{V_SO+tb}, {WSR}, s{S_GB} offen offset:{nbl*64} {{SC}}")
    local_stores(a, st)
    wave_flag(a)

FE_SPLIT = 12
def fe_l_wpre(a, half):
    s0, s1 = (0, FE_SPLIT) if half == 0 else (FE_SPLIT, 16)
    a(f"s_and_b32 s{S_T0}, s{S_Q}, 3\ns_lshl_b32 s{S_T0}, s{S_T0}, 17\ns_add_u32 s{S_T0}, s{S_T0}, {WS_WF}")
    a(f"s_lshl_b32 s{S_T0+1}, s{S_LW}, 15\ns_add_u32 s{S_T0}, s{S_T0}, s{S_T0+1}")
    a("v_lshlrev_b32 v5, 4, v0")
    n = 0
    for st in range(s0, s1):
        for nb in range(2):
            off = nb * 16384 + st * 1024
            a(f"s_add_u32 m0, s{S_T0+1}, {FE_W + off}")
            a(f"s_add_u32 s{S_T0+2}, s{S_T0}, {off}")
            a(f"buffer_load_dwordx4 v5, {WSR}, s{S_T0+2} offen {OPT['wold']} lds")
            n += 1
    return n

def fe_l(a, sch):
    a(f"s_lshr_b32 s{S_T0}, s{S_Q}, 3\ns_lshl_b32 s{S_T0}, s{S_T0}, 7\ns_lshl_b32 s{S_T0+1}, s{S_X}, 9\ns_add_u32 s{S_T0}, s{S_T0}, s{S_T0+1}\ns_add_u32 s{S_T0}, s{S_T0}, {WS_F2}")
    a(f"v_and_b32 v6, 31, v0\nv_lshlrev_b32 v6, 2, v6\nv_add_u32 v6, s{S_T0}, v6")
    a(f"v_lshrrev_b32 v2, 3, v0\ns_lshl_b32 s{S_T0}, s{S_LW}, 3\nv_add_u32 v2, s{S_T0}, v2\nv_and_b32 v3, 7, v0")
    swz_of(a, 2, 4, S_T0+2)
    a(f"v_xor_b32 v4, v4, v3\nv_lshlrev_b32 v4, 4, v4\nv_lshl_add_u32 v4, v2, 10, v4")
    if OPT["fewreg"]:
        a("s_waitcnt vmcnt(0) lgkmcnt(0)")
        a("s_barrier")
    poll(a, 6, 7)
    stamp(a, 7)
    a(f"s_lshr_b32 s{S_T0}, s{S_Q}, 2\ns_lshl_b32 s{S_T0}, s{S_T0}, 15\ns_lshl_b32 s{S_T0+1}, s{S_X}, 18\ns_add_u32 s{S_T0}, s{S_T0}, s{S_T0+1}\ns_add_u32 s{S_T0}, s{S_T0}, {WS_F}")
    a(f"s_lshl_b32 s{S_T0+1}, s{S_LW}, 10")
    a(f"s_mov_b32 s{S_T0+8}, s{S_T0}\ns_mov_b32 s{S_T0+9}, s{S_T0+1}")
    def fdma(d0, d1):
        for du in range(d0, d1):
            a(f"s_add_u32 m0, s{S_T0+9}, {FE_A + du*4096}")
            a(f"s_add_u32 s{S_T0+2}, s{S_T0+8}, {du*128}")
            a(f"buffer_load_dwordx4 v4, {WSR}, s{S_T0+2} offen sc1 lds")
    def wowarm():
        if not OPT["wowarm"]: return 0
        a(f"s_lshl_b32 s{S_T0}, s{S_Q}, 14\ns_lshl_b32 s{S_T0+1}, s{S_LW}, 12\ns_add_u32 s{S_T0}, s{S_T0}, s{S_T0+1}\ns_add_u32 s{S_T0}, s{S_T0}, {WS_WO}")
        a("v_lshlrev_b32 v5, 4, v0")
        for k in range(4): a(f"buffer_load_dwordx4 v[{V_DUMMY}:{V_DUMMY+3}], v5, {WSR}, s{S_T0} offen offset:{k*1024} {OPT['wold']}")
        return 4
    if FE_SPLIT == 16:
        fdma(0, 8)
        for ph in range(4):
            a(f"s_waitcnt vmcnt({6 - 2*ph}) lgkmcnt(0)")
            a("s_barrier")
        wowarm()
        a("s_barrier")
        return
    fdma(0, 4)
    a("s_waitcnt vmcnt(2) lgkmcnt(0)")
    a("s_barrier")
    fdma(4, 8)
    nw = fe_l_wpre(a, 1) if not OPT["stg"] else 0
    a(f"s_waitcnt vmcnt({4 + nw})")
    a("s_barrier")
    nwarm = wowarm()
    a(f"s_waitcnt vmcnt({2 + nw + nwarm})")
    a("s_barrier")
    a(f"s_waitcnt vmcnt({nwarm})")
    a("s_barrier")
    a("s_barrier")

J_ACT = 0
J_P   = 65536
J_Q   = 65536 + 16384
def joint_l(a):
    a(f"s_mov_b32 s{S_T0}, {WS_QE}\ns_cmp_eq_u32 s{S_UNS}, 0\ns_cselect_b32 s{S_T0}, s{S_T0}, {WS_QR}")
    a(f"s_lshl_b32 s{S_T0+1}, s{S_B}, 14\ns_add_u32 s{S_T0}, s{S_T0}, s{S_T0+1}")
    a(f"s_lshl_b32 s{S_T0+1}, s{S_LW}, 8\ns_add_u32 s{S_T0}, s{S_T0}, s{S_T0+1}")
    a(f"s_lshl_b32 s{S_T0+1}, s{S_LW}, 12")
    a("v_lshrrev_b32 v2, 4, v0\nv_and_b32 v3, 15, v0\nv_lshlrev_b32 v3, 4, v3\nv_lshl_add_u32 v4, v2, 10, v3")
    for j in range(4):
        a(f"s_add_u32 m0, s{S_T0+1}, {J_Q + j*1024}")
        a("s_nop 0")
        a(f"buffer_load_dwordx4 v4, {WSR}, s{S_T0} offen sc1 lds")
        a(f"s_add_u32 s{S_T0}, s{S_T0}, 4096")
    a(f"""
    v_lshrrev_b32 v2, 3, v0
    v_and_b32 v3, 7, v0
    v_and_b32 v5, 6, v2
    v_xor_b32 v3, v3, v5
    v_lshlrev_b32 v3, 4, v3
    v_lshl_add_u32 v5, v2, 11, v3
    s_lshr_b32 s{S_T0}, s{S_Q}, 2
    s_lshl_b32 s{S_T0}, s{S_T0}, 6
    s_lshl_b32 s{S_T0+2}, s{S_X}, 9
    s_add_u32 s{S_T0}, s{S_T0}, s{S_T0+2}
    s_add_u32 s{S_T0}, s{S_T0}, {WS_F3}
    v_and_b32 v6, 15, v0
    v_lshlrev_b32 v6, 2, v6
    v_add_u32 v9, s{S_T0}, v6
    s_waitcnt vmcnt(0)
    """)
    a(f"v_and_b32 v6, 7, v0\nv_lshlrev_b32 v6, 4, v6\ns_lshl_b32 s{S_T0}, s{S_LW}, 12\ns_add_u32 s{S_T0}, s{S_T0}, {J_Q}\nv_add_u32 v6, s{S_T0}, v6")
    for sidx in range(16):
        for hh in range(2):
            r = 128 + sidx*8 + hh*4
            a(f"ds_read_b128 v[{r}:{r+3}], v6 offset:{sidx*256 + hh*128}")
        if sidx % 4 == 3: a("s_waitcnt lgkmcnt(0)")
    poll(a, 9, 14)
    stamp(a, 9)
    a(f"""
    s_lshl_b32 s{S_T0}, s{S_X}, 19
    s_lshl_b32 s{S_T0+1}, s{S_Q}, 14
    s_add_u32 s{S_T0}, s{S_T0}, s{S_T0+1}
    s_add_u32 s{S_T0}, s{S_T0}, {WS_P}
    s_lshl_b32 s{S_T0+1}, s{S_LW}, 7
    s_add_u32 s{S_T0}, s{S_T0}, s{S_T0+1}
    s_lshl_b32 s{S_T0+1}, s{S_LW}, 10
    """)
    for k in range(4):
        a(f"s_add_u32 m0, s{S_T0+1}, {J_P + k*4096}")
        a("s_nop 0")
        a(f"buffer_load_dwordx4 v5, {WSR}, s{S_T0} offen sc1 lds")
        a(f"s_add_u32 s{S_T0}, s{S_T0}, 512")
    a(f"""
    v_lshrrev_b32 v2, 3, v0
    v_and_b32 v5, 6, v2
    s_lshl_b32 s{S_T0}, s{S_LW}, 1
    v_xor_b32 v5, s{S_T0}, v5
    v_lshlrev_b32 v5, 4, v5
    v_lshl_add_u32 v7, v2, 7, v5
    v_add_u32 v7, {J_P}, v7
    s_lshl_b32 s{S_T0}, s{S_LW}, 10
    v_lshlrev_b32 v8, 4, v0
    v_add_u32 v8, s{S_T0}, v8
    v_mov_b32 v10, 1.0
    v_mov_b32 v11, 1.0
    v_mov_b32 v12, -2.0
    v_mov_b32 v13, -2.0
    s_waitcnt vmcnt(0)
    s_barrier
    """)
    def prd(sidx):
        r = 16 + (sidx & 1) * 8
        return [f"ds_read_b128 v[{r}:{r+3}], v7 offset:{sidx*1024}", f"ds_read_b128 v[{r+4}:{r+7}], v7 offset:{sidx*1024 + 16}"]
    def body(safe):
        for r in prd(0): a(r)
        for sidx in range(16 if not OPT["notanh"] else 2):
            if sidx + 1 < 16:
                for r in prd(sidx+1): a(r)
            if sidx in (0, 2): a("s_waitcnt lgkmcnt(2)")
            elif sidx + 1 < 16: a("s_waitcnt lgkmcnt(3)")
            else: a("s_waitcnt lgkmcnt(1)")
            if sidx >= 4 and not OPT["nobar"]:
                a("s_barrier")
            p = 16 + (sidx & 1) * 8
            q = 128 + sidx * 8
            t = 32
            pk = OPT["pk"]
            if safe:
                if pk:
                    for e in range(0, 8, 2): a(f"v_pk_fma_f32 v[{t+e}:{t+e+1}], v[{p+e}:{p+e+1}], v[{q+e}:{q+e+1}], v[10:11]")
                else:
                    for e in range(8): a(f"v_fma_f32 v{t+e}, v{p+e}, v{q+e}, 1.0")
            else:
                for e in range(8): a(f"v_add_f32 v{t+e}, v{p+e}, v{q+e}")
                for e in range(8): a(f"v_exp_f32 v{t+e}, v{t+e}")
                for e in range(8): a(f"v_add_f32 v{t+e}, 1.0, v{t+e}")
            for e in range(8): a(f"v_rcp_f32 v{t+e}, v{t+e}")
            if pk:
                for e in range(0, 8, 2): a(f"v_pk_fma_f32 v[{t+e}:{t+e+1}], v[{t+e}:{t+e+1}], v[12:13], v[10:11]")
            else:
                for e in range(8): a(f"v_fma_f32 v{t+e}, v{t+e}, -2.0, 1.0")
            w = 40 + (sidx & 1) * 4
            for e in range(0, 8, 2): a(f"v_cvt_pk_bf16_f32 v{w+e//2}, v{t+e}, v{t+e+1}")
            a(f"ds_write_b128 v8, v[{w}:{w+3}] offset:{J_ACT + sidx*4096}")
            if sidx == 1:
                a("s_waitcnt lgkmcnt(0)")
                a("s_barrier")
        a("s_waitcnt lgkmcnt(1)")
        if not OPT["nobar"]: a("s_barrier")
        a("s_waitcnt lgkmcnt(0)")
        if not OPT["nobar"]: a("s_barrier")
    l0, l1 = lab("Lu"), lab("Lu")
    if OPT["lprio"]: a(f"s_setprio {OPT['lprio']}")
    a(f"s_cmp_eq_u32 s{S_UNS}, 0\ns_cbranch_scc0 {l0}")
    body(True)
    a(f"s_branch {l1}\n{l0}:")
    body(False)
    a(f"{l1}:")

J_O = 98304
NEPI = 4
def interleave2(a, mf, others):
    n = len(others); k = 0
    for i, m in enumerate(mf):
        a(m)
        take = -(-(n - k) // (len(mf) - i))
        for _ in range(take):
            a(others[k]); k += 1

def joint_store(a, p, allwaves):
    nrow = 8 if allwaves else 16
    wv = S_WAVE if allwaves else S_LW
    sh = 3 if allwaves else 4
    a(f"""
    v_lshrrev_b32 v2, 5, v0
    v_and_b32 v3, 31, v0
    s_lshl_b32 s{S_T0}, s{wv}, {sh + 9}
    s_add_u32 s{S_T0}, s{S_T0}, {J_O + p*32768}
    v_lshl_add_u32 v4, v0, 4, s{S_T0}
    v_lshrrev_b32 v5, 3, v3
    v_lshlrev_b32 v5, 8, v5
    v_and_b32 v6, 7, v3
    v_lshl_add_u32 v5, v6, 4, v5
    v_lshl_add_u32 v5, v2, 10, v5
    s_mul_i32 s{S_T0}, s{S_B}, 1000
    s_mul_i32 s{S_T0+1}, s{S_QQ}, 250
    s_add_u32 s{S_T0}, s{S_T0}, s{S_T0+1}
    s_lshl_b32 s{S_T0+1}, s{S_Q}, 3
    s_add_u32 s{S_T0}, s{S_T0}, s{S_T0+1}
    s_lshl_b32 s{S_T0}, s{S_T0}, 13
    s_lshl_b32 s{S_T0+2}, s{wv}, {sh + 10}
    s_add_u32 s{S_T0}, s{S_T0}, s{S_T0+2}
    s_add_u32 s{S_T0}, s{S_T0}, {p*128}
    s_sub_u32 s{S_T0+3}, 250, s{S_T0+1}
    s_lshl_b32 s{S_T0+3}, s{S_T0+3}, 3
    s_lshl_b32 s{S_T0+2}, s{wv}, {sh}
    s_cmp_gt_u32 s{S_T0+3}, s{S_T0+2}
    s_cselect_b32 s{S_T0+2}, 0, {hex(OOB)}
    v_add_u32 v5, s{S_T0}, v5
    v_or_b32 v5, s{S_T0+2}, v5
    """)
    return nrow // 2

def joint_store_issue(a, ninstr, pace=None):
    for k in range(ninstr): a(f"ds_read_b128 v[{16+4*k}:{19+4*k}], v4 offset:{k*1024}")
    for k in range(ninstr):
        a(f"s_waitcnt lgkmcnt({ninstr-1-k})")
        if pace is not None and k > pace: a(f"s_waitcnt vmcnt({pace})")
        a(f"s_mov_b32 s{S_T0}, {k*2048}")
        a(f"buffer_store_dwordx4 v[{16+4*k}:{19+4*k}], v5, s[{SRD_OUT}:{SRD_OUT+3}], s{S_T0} offen {OPT['scout']}")

def joint_c(a):
    ACC = 128; WR = 48; AF = 12; NF = 20; TMP = 44
    def acc(rb, cb): return ACC + (cb*2 + rb) * 16
    a(f"s_lshl_b32 s{S_T0+4}, s{S_LW}, 17\ns_add_u32 s{S_T0+4}, s{S_T0+4}, {WS_WO}")
    a("v_lshlrev_b32 v4, 4, v0")
    def wreg(f): return WR + (f % NF) * 4
    def wld(f):
        out = [f"buffer_load_dwordx4 v[{wreg(f)}:{wreg(f)+3}], v4, {WSR}, s{S_T0+4} offen offset:{(f%4)*1024} {OPT['wold']}"]
        if f % 4 == 3: out.append(f"s_add_u32 s{S_T0+4}, s{S_T0+4}, 4096")
        return out
    vm = []
    issued = 0
    while issued < int(OPT["wo_pre"]):
        for r in wld(issued): a(r)
        vm.append(issued); issued += 1
    a("v_and_b32 v2, 31, v0\nv_lshrrev_b32 v3, 5, v0\nv_lshlrev_b32 v5, 10, v3\nv_lshl_add_u32 v5, v2, 4, v5")
    a(f"s_lshl_b32 s{S_T0}, s{S_LW}, 7\ns_add_u32 s{S_T0}, s{S_T0}, {J_O}\nv_lshlrev_b32 v7, 11, v3\nv_lshl_add_u32 v7, v2, 2, v7\nv_add_u32 v7, s{S_T0}, v7")
    a("s_barrier")
    while issued < NF:
        for r in wld(issued): a(r)
        vm.append(issued); issued += 1
    a("s_barrier")
    stamp(a, 10)
    def ard(n):
        sidx = n & 15
        r = AF + (n & 1) * 16
        return [f"ds_read_b128 v[{r+4*(2*h+rb)}:{r+4*(2*h+rb)+3}], v5 offset:{J_ACT + sidx*4096 + h*2048 + rb*512}" for h in range(2) for rb in range(2)]
    def epi(half):
        out = []
        for rb in range(2):
            for r in range(16):
                tmp = TMP + ((rb*16 + r) & 3)
                out.append(f"v_cvt_pk_bf16_f32 v{tmp}, v{acc(rb, 2*half) + r}, v{acc(rb, 2*half+1) + r}")
                out.append(f"ds_write_b32 v7, v{tmp} offset:{half*32768 + (32*rb + (r&3) + 8*(r>>2))*512}")
        return out
    for r in ard(0): a(r)
    pend = []
    consumed = 0
    for n in range(32):
        p, sidx = n >> 4, n & 15
        cbs = [0, 1, 2] if p == 0 else [3]
        nfr = 2 * len(cbs)
        first = consumed
        if OPT["steps"]: a("s_memtime s[74:75]")
        need = first + nfr - 1
        last = vm.index(need)
        if OPT["steps"]:
            a("s_waitcnt lgkmcnt(0)\nv_writelane_b32 v1, s74, %d\ns_memtime s[74:75]" % (2*n))
        a(f"s_waitcnt vmcnt({len(vm) - 1 - last}) lgkmcnt(0)")
        if OPT["steps"]: a("v_writelane_b32 v1, s74, %d" % (2*n+1))
        if p == 0 and 2 <= sidx + 1 <= 15 and not OPT["nobar"]:
            a("s_barrier")
        if n == 16 + NEPI:
            a("s_barrier")
        others = ard(n + 1) if n + 1 < 32 else []
        lim = min(128, first + NF)
        ld = []
        while issued < lim:
            ld += wld(issued); vm.append(issued); issued += 1
        others = others + ld
        if p == 1 and pend:
            k = min(len(pend), -(-64 // NEPI))
            others += pend[:k]; pend = pend[k:]
        mf = []
        af = AF + (n & 1) * 16
        for h in range(2):
            for rb in range(2):
                for ci, cb in enumerate(cbs):
                    d = acc(rb, cb)
                    w = wreg(first + h * len(cbs) + ci)
                    c = "0" if (sidx == 0 and h == 0) else f"v[{d}:{d+15}]"
                    mf.append(f"v_mfma_f32_32x32x16_bf16 v[{d}:{d+15}], v[{af+4*(2*h+rb)}:{af+4*(2*h+rb)+3}], v[{w}:{w+3}], {c}")
        interleave2(a, mf, others)
        consumed += nfr
        if n == 15:
            pend = epi(0)
    assert not pend and consumed == 128
    stamp(a, 11)
    a("s_nop 7\ns_nop 7")
    for o in epi(1): a(o)
    a("s_waitcnt lgkmcnt(0)")
    if OPT["steps"]:
        a(f"s_lshl_b32 s{S_T0}, s{S_WG}, 10\ns_lshl_b32 s{S_T0+1}, s{S_LW}, 8\ns_add_u32 s{S_T0}, s{S_T0}, s{S_T0+1}\ns_add_u32 s{S_T0}, s{S_T0}, {WS_STAMP + 0x10000}")
        a(f"v_lshlrev_b32 v2, 2, v0\nbuffer_store_dword v1, v2, {WSR}, s{S_T0} offen")
    n = joint_store(a, 1, True)
    a("s_barrier")
    joint_store_issue(a, n)

def relayout_loads(a, R=32):
    U = S_T0 + 8
    a(f"s_mov_b32 s{U}, s{S_WG}")
    a(f"s_lshr_b32 s{U+1}, s{U}, 2\ns_and_b32 s{U+1}, s{U+1}, 15\ns_and_b32 s{U+2}, s{U}, 3")
    a(f"s_cmp_ge_u32 s{U}, 64")
    a(f"s_cselect_b32 s{SRD_T}, s{S_PWF}, s{S_PWO}")
    a(f"s_cselect_b32 s{SRD_T+1}, s{S_PWF+1}, s{S_PWO+1}")
    a(f"s_and_b32 s{SRD_T+1}, s{SRD_T+1}, 0xffff")
    a(f"s_mov_b32 s{SRD_T+2}, 524288\ns_mov_b32 s{SRD_T+3}, 0x20000")
    a(f"""
    v_and_b32 v2, 15, v0
    v_lshrrev_b32 v3, 4, v0
    v_lshlrev_b32 v4, 13, v3
    v_lshl_add_u32 v4, v2, 4, v4
    s_lshl_b32 s{U+3}, s{U+1}, 15
    s_lshl_b32 s{U+4}, s{U+2}, 8
    s_add_u32 s{U+3}, s{U+3}, s{U+4}
    v_add_u32 v4, s{U+3}, v4
    v_add_u32 v5, 4096, v4
    """)
    for e in range(8):
        a(f"buffer_load_dwordx4 v[{R+4*e}:{R+3+4*e}], v{4 + (e>>2)}, s[{SRD_T}:{SRD_T+3}], 0 offen offset:{(e&3)*1024}")

RL_LDS = 154624
def relayout_finish(a, nyounger, R=32):
    U = S_T0 + 8
    a(f"s_mov_b32 s{U}, s{S_WG}")
    a(f"s_lshr_b32 s{U+1}, s{U}, 2\ns_and_b32 s{U+1}, s{U+1}, 15\ns_and_b32 s{U+2}, s{U}, 3")
    a("v_and_b32 v2, 15, v0\nv_lshrrev_b32 v3, 4, v0")
    l0, l1 = lab("Lw"), lab("Lw")
    a(f"s_cmp_ge_u32 s{U}, 64\ns_cbranch_scc1 {l0}")
    a(f"""
    v_and_b32 v6, 7, v2
    v_lshlrev_b32 v5, 6, v6
    v_and_b32 v6, 1, v3
    v_lshl_add_u32 v5, v6, 9, v5
    v_lshrrev_b32 v6, 1, v3
    v_lshl_add_u32 v5, v6, 12, v5
    v_lshrrev_b32 v6, 3, v2
    v_lshl_add_u32 v5, v6, 11, v5
    v_add_u32 v5, {RL_LDS}, v5
    """)
    for b in range(8): a(f"v_add_u32 v{24+b}, {(b&1)*1024 + (b>>1)*16}, v5")
    a(f"s_lshl_b32 s{U+3}, s{U+2}, 17\ns_add_u32 s{U+3}, s{U+3}, {WS_WO}")
    a(f"s_mul_i32 s{U+4}, s{U+1}, 6144\ns_add_u32 s{U+4}, s{U+4}, s{U+3}")
    a(f"s_lshl_b32 s{U+5}, s{U+1}, 11\ns_add_u32 s{U+5}, s{U+5}, s{U+3}\ns_add_u32 s{U+5}, s{U+5}, 98304")
    a(f"s_mov_b32 s{U+6}, 0")
    a(f"s_branch {l1}\n{l0}:")
    a(f"""
    v_lshrrev_b32 v5, 1, v2
    v_lshlrev_b32 v5, 10, v5
    v_and_b32 v6, 1, v2
    v_lshl_add_u32 v5, v6, 7, v5
    v_lshl_add_u32 v5, v3, 8, v5
    v_add_u32 v5, {RL_LDS}, v5
    """)
    for b in range(8): a(f"v_add_u32 v{24+b}, {b*16}, v5")
    a(f"s_lshl_b32 s{U+4}, s{U+2}, 17\ns_lshl_b32 s{U+5}, s{U+1}, 10\ns_add_u32 s{U+4}, s{U+4}, s{U+5}\ns_add_u32 s{U+4}, s{U+4}, {WS_WF}")
    a(f"s_mov_b32 s{U+6}, 1")
    a(f"{l1}:")
    a(f"s_mov_b32 s{U+1}, 0x05040100\ns_mov_b32 s{U+2}, 0x07060302")
    a(f"s_waitcnt vmcnt({nyounger})")
    for b in range(8):
        d = b >> 1
        sel = U + 1 + (b & 1)
        for m in range(4):
            lo, hi = R + 4*(2*m) + d, R + 4*(2*m+1) + d
            a(f"v_perm_b32 v{64+4*b+m}, v{hi}, v{lo}, s{sel}")
        a(f"ds_write_b128 v{24+b}, v[{64+4*b}:{67+4*b}]")
    a(f"v_lshlrev_b32 v2, 4, v0\nv_add_u32 v3, {RL_LDS}, v2\ns_waitcnt lgkmcnt(0)")
    for f in range(8): a(f"ds_read_b128 v[{64+4*f}:{67+4*f}], v3 offset:{f*1024}")
    l2, l3 = lab("Lw"), lab("Lw")
    a(f"s_cmp_eq_u32 s{U+6}, 0\ns_cbranch_scc0 {l2}")
    for f in range(8):
        h, cb = f >> 2, f & 3
        if cb < 3: a(f"s_add_u32 s{U+1}, s{U+4}, {(3*h + cb)*1024}")
        else: a(f"s_add_u32 s{U+1}, s{U+5}, {h*1024}")
        a(f"s_waitcnt lgkmcnt({7-f})")
        a(f"buffer_store_dwordx4 v[{64+4*f}:{67+4*f}], v2, {WSR}, s{U+1} offen sc1")
    a(f"s_branch {l3}\n{l2}:")
    for f in range(8):
        a(f"s_add_u32 s{U+1}, s{U+4}, {f*16384}")
        a(f"s_waitcnt lgkmcnt({7-f})")
        a(f"buffer_store_dwordx4 v[{64+4*f}:{67+4*f}], v2, {WSR}, s{U+1} offen sc1")
    a(f"{l3}:")

def relayout_flag(a):
    U = S_T0 + 8
    a(f"s_lshl_b32 s{U}, s{S_WG}, 2\ns_add_u32 s{U}, s{U}, {WS_RL}")
    a("s_waitcnt vmcnt(0)")
    flag_store(a, U, fast_variant=False)

GE_LDS = 17408
def ge_loads(a):
    U = S_T0 + 8
    a(f"s_sub_u32 s{U}, s{S_WG}, 224")
    mk_srd(a, SRD_T, S_PWG, 524288)
    a(f"""
    v_lshrrev_b32 v2, 1, v0
    v_and_b32 v3, 1, v0
    v_lshlrev_b32 v3, 4, v3
    v_lshl_add_u32 v2, v2, 10, v3
    s_lshl_b32 s{U+1}, s{U}, 5
    v_add_u32 v2, s{U+1}, v2
    s_mov_b32 s{U+2}, 0
    """)
    for k in range(16):
        a(f"s_mov_b32 m0, {GE_LDS + k*1024}")
        a(f"s_nop 0")
        a(f"buffer_load_dwordx4 v2, s[{SRD_T}:{SRD_T+3}], s{U+2} offen lds")
        a(f"s_add_u32 s{U+2}, s{U+2}, 32768")
    mk_srd(a, SRD_T, S_PG, 16384)
    a(f"""
    v_and_b32 v4, 15, v0
    v_lshrrev_b32 v5, 4, v0
    v_lshlrev_b32 v6, 10, v4
    v_lshl_add_u32 v6, v5, 4, v6
    """)
    for sidx in range(16):
        a(f"buffer_load_dwordx4 v[{64+4*sidx}:{67+4*sidx}], v6, s[{SRD_T}:{SRD_T+3}], 0 offen offset:{sidx*64}")

GE_R = 100
def ge_loads_c(a):
    U = S_T0 + 8
    a(f"s_sub_u32 s{U}, s{S_WG}, 224")
    mk_srd(a, SRD_T, S_PWG, 524288)
    a(f"""
    v_lshrrev_b32 v2, 1, v0
    v_and_b32 v3, 1, v0
    v_lshlrev_b32 v3, 4, v3
    v_lshl_add_u32 v2, v2, 10, v3
    s_lshl_b32 s{U+1}, s{U}, 5
    v_add_u32 v2, s{U+1}, v2
    s_mov_b32 s{U+2}, 0
    """)
    for k in range(16):
        a(f"buffer_load_dwordx4 v[{GE_R+4*k}:{GE_R+3+4*k}], v2, s[{SRD_T}:{SRD_T+3}], s{U+2} offen")
        a(f"s_add_u32 s{U+2}, s{U+2}, 32768")

def ge_stage_l(a, nyounger):
    a(f"v_lshlrev_b32 v2, 4, v0\nv_add_u32 v2, {GE_LDS}, v2")
    a(f"s_waitcnt vmcnt({nyounger})")
    for k in range(16):
        a(f"ds_write_b128 v2, v[{GE_R+4*k}:{GE_R+3+4*k}] offset:{k*1024}")
    a("s_waitcnt lgkmcnt(0)")
    a(f"v_mov_b32 v2, {INBOX + 48}\nv_mov_b32 v3, 1\nds_write_b32 v2, v3\ns_waitcnt lgkmcnt(0)")

G_R = 172
def ge_gloads_c(a):
    mk_srd(a, SRD_T, S_PG, 16384)
    a("v_lshrrev_b32 v4, 2, v0\nv_and_b32 v5, 3, v0\nv_lshlrev_b32 v6, 10, v4\nv_lshl_add_u32 v6, v5, 4, v6")
    for sidx in range(16):
        a(f"buffer_load_dwordx4 v[{G_R+4*sidx}:{G_R+3+4*sidx}], v6, s[{SRD_T}:{SRD_T+3}], 0 offen offset:{sidx*64}")

def ge_finish_c(a):
    a("v_and_b32 v4, 15, v0\nv_lshrrev_b32 v5, 4, v0\nv_lshl_add_u32 v4, v4, 2, v5\nv_lshlrev_b32 v4, 2, v4")
    for r in range(64):
        a(f"ds_bpermute_b32 v{G_R+r}, v4, v{G_R+r}")
        if r % 8 == 7: a("s_waitcnt lgkmcnt(0)")
    l0, l1 = lab("Lg"), lab("Lg")
    a(f"v_mov_b32 v2, {INBOX + 48}\ns_mov_b32 s{S_T0+16}, 0\n{l0}:\nds_read_b32 v3, v2")
    a(f"s_add_u32 s{S_T0+16}, s{S_T0+16}, 1\ns_cmp_ge_u32 s{S_T0+16}, {SPIN_MAX*8}\ns_cbranch_scc1 {l1}")
    a(f"s_waitcnt lgkmcnt(0)\nv_cmp_eq_u32 vcc, 0, v3\ns_cbranch_vccnz {l0}\n{l1}:\ns_waitcnt lgkmcnt(0)")
    ge_finish(a, G_R, True)

def ge_finish(a, GR=64, defer=False):
    U = S_T0 + 8
    TR = 128 if GR == 64 else 64
    a(f"s_sub_u32 s{U}, s{S_WG}, 224")
    a(f"""
    v_and_b32 v4, 15, v0
    v_lshrrev_b32 v5, 4, v0
    v_lshrrev_b32 v7, 2, v4
    v_lshl_add_u32 v7, v5, 3, v7
    v_lshlrev_b32 v7, 5, v7
    v_and_b32 v6, 3, v4
    v_lshl_add_u32 v7, v6, 3, v7
    v_add_u32 v7, {GE_LDS}, v7
    v_mov_b32 v32, 0
    v_mov_b32 v33, 0
    v_mov_b32 v34, 0
    v_mov_b32 v35, 0
    s_waitcnt vmcnt(0)
    """)
    for sidx in range(16):
        r = TR + 4*sidx
        a(f"ds_read_b64_tr_b16 v[{r}:{r+1}], v7 offset:{sidx*1024}")
        a(f"ds_read_b64_tr_b16 v[{r+2}:{r+3}], v7 offset:{sidx*1024 + 128}")
        if sidx % 4 == 3: a("s_waitcnt lgkmcnt(0)")
    for sidx in range(16):
        r = TR + 4*sidx
        a(f"v_mfma_f32_16x16x32_bf16 v[32:35], v[{r}:{r+3}], v[{GR+4*sidx}:{GR+3+4*sidx}], v[32:35]")
    a("s_nop 7\ns_nop 7")
    a(f"s_mov_b32 s{U+1}, {f2h(C2LOG2E)}")
    for r in range(4): a(f"v_mul_f32 v{32+r}, s{U+1}, v{32+r}")
    a(f"v_max3_f32 v40, abs(v32), abs(v33), abs(v34)\nv_max_f32 v40, abs(v35), v40")
    a(f"v_mov_b32 v42, {f2h(96.0)}")
    a(f"v_cmp_nle_f32 vcc, v40, v42")
    for r in range(4): a(f"v_exp_f32 v{36+r}, v{32+r}")
    a("s_nop 1")
    a(f"s_cmp_lg_u64 vcc, 0\ns_cselect_b32 s{U+3}, 1, 0")
    a(f"""
    v_lshrrev_b32 v9, 3, v4
    v_lshlrev_b32 v9, 14, v9
    v_and_b32 v10, 7, v4
    v_lshl_add_u32 v9, v10, 4, v9
    v_lshl_add_u32 v9, v5, 7, v9
    s_lshl_b32 s{U+1}, s{U}, 9
    v_add_u32 v9, s{U+1}, v9
    v_add_u32 v10, {WS_QR}, v9
    v_add_u32 v9, {WS_QE}, v9
    buffer_store_dwordx4 v[32:35], v10, {WSR}, 0 offen sc1
    buffer_store_dwordx4 v[36:39], v9, {WSR}, 0 offen sc1
    """)
    if defer:
        a(f"s_lshl_b32 s{S_SIDEA}, s{U}, 3\ns_add_u32 s{S_SIDEA}, s{S_SIDEA}, {WS_GE}\ns_mov_b32 s{S_SIDEV}, s{U+3}\ns_mov_b32 s{S_SIDEK}, 2")
        return
    a(f"""
    s_lshl_b32 s{U+1}, s{U}, 3
    s_add_u32 s{U+1}, s{U+1}, {WS_GE}
    v_mov_b32 v12, s{U+1}
    v_mov_b32 v10, s{S_TAG}
    v_mov_b32 v11, s{U+3}
    s_waitcnt vmcnt(0)
    s_mov_b64 s[{S_T0+14}:{S_T0+15}], exec
    s_mov_b64 exec, 1
    buffer_store_dwordx2 v[10:11], v12, {WSR}, 0 offen sc1
    s_mov_b64 exec, s[{S_T0+14}:{S_T0+15}]
    """)

S_SIDEA, S_SIDEV, S_SIDEK = 5, 6, 7
def side_flag_deferred(a):
    l0, l1 = lab("Ld"), lab("Ld")
    a(f"s_cmp_eq_u32 s{S_SIDEK}, 0\ns_cbranch_scc1 {l0}")
    a(f"v_mov_b32 v22, s{S_TAG}\nv_mov_b32 v23, s{S_SIDEV}\nv_mov_b32 v24, s{S_SIDEA}")
    a("s_waitcnt vmcnt(0)")
    a(f"s_mov_b64 s[{S_T0+14}:{S_T0+15}], exec\ns_mov_b64 exec, 1")
    a(f"s_cmp_eq_u32 s{S_SIDEK}, 1\ns_cbranch_scc1 {l1}")
    a(f"buffer_store_dwordx2 v[22:23], v24, {WSR}, 0 offen sc1")
    a(f"s_branch {l1}_e\n{l1}:")
    a(f"buffer_store_dword v22, v24, {WSR}, 0 offen sc1")
    a(f"{l1}_e:")
    a(f"s_mov_b64 exec, s[{S_T0+14}:{S_T0+15}]\ns_mov_b32 s{S_SIDEK}, 0")
    a(f"{l0}:")

def l_setup_w(a):
    a(f"""
    v_lshrrev_b32 v4, 3, v0
    v_lshrrev_b32 v5, 1, v4
    v_and_b32 v5, 1, v5
    s_and_b32 s{S_T0}, s{S_LW}, 1
    s_lshl_b32 s{S_T0}, s{S_T0}, 1
    v_or_b32 v5, s{S_T0}, v5
    v_lshlrev_b32 v5, 1, v5
    v_and_b32 v6, 7, v0
    v_xor_b32 v6, v6, v5
    v_lshlrev_b32 v6, 4, v6
    s_lshl_b32 s{S_T0}, s{S_LW}, 3
    v_add_u32 v4, s{S_T0}, v4
    v_lshl_add_u32 v{V_LWV}, v4, 10, v6
    """)

def l_setup_a(a, c, row_base_sgpr, lo_valid, hi_valid, issue=None):
    na = (c.nA + 3) // 4
    a(f"v_lshrrev_b32 v2, 3, v0\nv_and_b32 v3, 7, v0")
    a(f"s_lshl_b32 s{S_T0}, s{S_LW}, 3\ns_mov_b32 s{S_T0+1}, {c.MAGIC}\ns_mov_b32 s{S_T0+2}, {hex(SWZ_TBL)}")
    a(f"v_mov_b32 v7, {hex(OOB)}\nv_add_u32 v4, s{S_T0}, v2")
    for k in range(na):
        a(f"""
        v_mul_u32_u24 v5, s{S_T0+1}, v4
        v_lshrrev_b32 v5, 16, v5
        v_mul_u32_u24 v6, {c.RS}, v5
        v_sub_u32 v6, v4, v6
        v_and_b32 v20, 3, v5
        v_lshl_add_u32 v20, v6, 2, v20
        v_lshrrev_b32 v21, 2, v5
        v_lshl_add_u32 v20, v20, 1, v21
        v_add_u32 v20, s{row_base_sgpr}, v20
        v_lshlrev_b32 v21, 1, v6
        v_and_b32 v21, 28, v21
        v_lshrrev_b32 v21, v21, s{S_T0+2}
        v_and_b32 v21, 7, v21
        v_xor_b32 v21, v21, v3
        v_lshlrev_b32 v21, 4, v21
        v_lshl_add_u32 v21, v20, 10, v21
        v_subrev_u32 v22, {lo_valid}, v20
        v_cmp_gt_u32 vcc, {hi_valid}, v22
        v_cndmask_b32 v21, v7, v21, vcc
        """) if False else None
        a(f"""
        v_mul_u32_u24 v5, s{S_T0+1}, v4
        v_lshrrev_b32 v5, 16, v5
        v_mul_u32_u24 v6, {c.RS}, v5
        v_sub_u32 v6, v4, v6
        v_and_b32 v20, 3, v5
        v_lshl_add_u32 v20, v6, 2, v20
        v_lshrrev_b32 v21, 2, v5
        v_lshl_add_u32 v20, v20, 1, v21
        v_add_u32 v20, s{row_base_sgpr}, v20
        v_subrev_u32 v22, {lo_valid}, v20
        v_cmp_gt_u32 vcc, {hi_valid}, v22
        v_lshlrev_b32 v21, 1, v6
        v_and_b32 v21, 28, v21
        v_lshrrev_b32 v21, v21, s{S_T0+2}
        v_and_b32 v21, 7, v21
        v_xor_b32 v21, v21, v3
        v_lshlrev_b32 v21, 4, v21
        v_lshl_add_u32 v21, v20, 10, v21
        v_cndmask_b32 v{V_LA+k}, v7, v21, vcc
        """)
        if 8 * (4*k + 3) + 7 >= 8 * c.RS:
            a(f"v_cmp_gt_u32 vcc, {8*c.RS}, v4\ns_nop 1\nv_cndmask_b32 v{V_LA+k}, v7, v{V_LA+k}, vcc")
        if issue is not None: issue(k)
        if k + 1 < na: a("v_add_u32 v4, 32, v4")

S_PA, S_PWX = 3, 4
def l_issue_A(a, c, srdA, pol, idx, part=None):
    na = (c.nA + 3) // 4
    ks = range(na) if part is None else (range(0, 5) if part == 0 else range(5, na))
    a(f"s_xor_b32 s{S_OFA}, s{S_PA}, {(idx if not OPT['hot'] else 0)*128}")
    a(f"s_lshl_b32 s{S_T0}, s{S_LW}, 10\ns_add_u32 s{S_T0}, s{S_T0}, s{S_LSA}")
    for k in ks:
        extra = (4 * k + 3 >= c.nA)
        if extra:
            l0 = lab("Lx")
            a(f"s_cmp_lt_u32 s{S_LW}, {c.nA - 4 * k}\ns_cbranch_scc0 {l0}")
        a(f"s_add_u32 m0, s{S_T0}, {k*4096}")
        a("s_nop 0")
        a(f"buffer_load_dwordx4 v{V_LA+k}, s[{srdA}:{srdA+3}], s{S_OFA} offen {pol} lds")
        if extra: a(f"{l0}:")
    if part == 0: return
    step = c.AB if c.idx == 1 else 2 * c.AB
    a(f"s_add_u32 s{S_LSA}, s{S_LSA}, {step}")
    a(f"s_cmp_ge_u32 s{S_LSA}, {c.RA * c.AB}")
    a(f"s_cselect_b32 s{S_T0}, {c.RA * c.AB}, 0")
    a(f"s_sub_u32 s{S_LSA}, s{S_LSA}, s{S_T0}")

def l_issue_W(a, c, srdW, idx):
    a(f"s_lshl_b32 s{S_T0}, s{S_LW}, 10\ns_add_u32 s{S_T0}, s{S_T0}, s{S_LSW}\ns_xor_b32 s{S_T0+1}, s{S_PWX}, {(idx if not OPT['hot'] else idx & 1)*32768}")
    for tap in range(5):
        a(f"s_add_u32 m0, s{S_T0}, {c.WOFF + tap*4096}")
        if tap: a(f"s_add_u32 s{S_T0+1}, s{S_T0+1}, 524288")
        else: a("s_nop 0")
        a(f"buffer_load_dwordx4 v{V_LWV}, s[{srdW}:{srdW+3}], s{S_T0+1} offen lds")
    a(f"s_add_u32 s{S_LSW}, s{S_LSW}, {c.WB}")
    a(f"s_cmp_ge_u32 s{S_LSW}, {c.RW * c.WB}")
    a(f"s_cselect_b32 s{S_LSW}, 0, s{S_LSW}")

S_TCH = 73
SRD_H2 = SRD_T
def w_touch(a, ptr, unit, ncls):
    if not OPT["wtouch"] or unit >= 16: return
    mode = OPT["wtouch"]
    a(f"s_lshl_b32 s{S_TCH}, s{S_Q}, 10\ns_add_u32 s{S_TCH}, s{S_TCH}, {unit*32768}")
    if mode == "c3":
        a(f"s_lshl_b32 s{S_T0+2}, s{S_LW}, 19\ns_add_u32 s{S_TCH}, s{S_TCH}, s{S_T0+2}\ns_add_u32 s{S_TCH}, s{S_TCH}, 384")
        a(f"s_load_dword s76, s[{ptr}:{ptr+1}], s{S_TCH}")
        l0 = lab("Lt")
        a(f"s_cmp_eq_u32 s{S_LW}, 0\ns_cbranch_scc0 {l0}")
        a(f"s_add_u32 s{S_TCH}, s{S_TCH}, {4*524288}")
        a(f"s_load_dword s76, s[{ptr}:{ptr+1}], s{S_TCH}")
        a(f"{l0}:")
    else:
        ntap = int(mode)
        a(f"s_lshl_b32 s{S_T0+2}, s{S_LW}, 8\ns_add_u32 s{S_TCH}, s{S_TCH}, s{S_T0+2}")
        for tap in range(ntap):
            a(f"s_load_dword s76, s[{ptr}:{ptr+1}], s{S_TCH}")
            a(f"s_add_u32 s{S_T0+2}, s{S_TCH}, 128")
            a(f"s_load_dword s76, s[{ptr}:{ptr+1}], s{S_T0+2}")
            if tap + 1 < ntap: a(f"s_add_u32 s{S_TCH}, s{S_TCH}, 524288")

V_STG = 100
def stage_W2_loads(a, c, srd, nunit):
    for u in range(nunit):
        a(f"s_xor_b32 s{S_T0+1}, s{S_PWX}, {u*32768}")
        for tap in range(5):
            r = V_STG + (u*5 + tap) * 4
            if tap: a(f"s_add_u32 s{S_T0+1}, s{S_T0+1}, 524288")
            a(f"buffer_load_dwordx4 v[{r}:{r+3}], v{V_LWV}, s[{srd}:{srd+3}], s{S_T0+1} offen")
def stage_W2_write(a, c, nunit):
    a(f"s_lshl_b32 s{S_T0}, s{S_LW}, 10\nv_lshl_add_u32 v2, v0, 4, s{S_T0}")
    for u in range(nunit):
        a(f"v_add_u32 v3, {c.WOFF + u*c.WB}, v2")
        for tap in range(5):
            r = V_STG + (u*5 + tap) * 4
            a(f"ds_write_b128 v3, v[{r}:{r+3}] offset:{tap*4096}")
def stage_WF_loads(a, k0, k1):
    a(f"s_and_b32 s{S_T0}, s{S_Q}, 3\ns_lshl_b32 s{S_T0}, s{S_T0}, 17\ns_add_u32 s{S_T0}, s{S_T0}, {WS_WF}")
    a(f"s_lshl_b32 s{S_T0+1}, s{S_LW}, 15\ns_add_u32 s{S_T0}, s{S_T0}, s{S_T0+1}\nv_lshlrev_b32 v5, 4, v0")
    for k in range(k0, k1):
        r = V_STG + 4*k
        if k % 4 == 0 or k == k0: a(f"s_add_u32 s{S_T0+2}, s{S_T0}, {(k//4)*4096}")
        a(f"buffer_load_dwordx4 v[{r}:{r+3}], v5, {WSR}, s{S_T0+2} offen offset:{(k%4)*1024} {OPT['wold']}")
def stage_WF_write(a):
    a(f"s_lshl_b32 s{S_T0}, s{S_LW}, 15\nv_lshl_add_u32 v2, v0, 4, s{S_T0}")
    for k in range(32):
        r = V_STG + 4*k
        a(f"ds_write_b128 v2, v[{r}:{r+3}] offset:{FE_W + k*1024}")

V_TCH = 19
def vtouch8(a, srd, u0, vtmp=2):
    if not OPT["vtouch"]: return
    a(f"v_lshrrev_b32 v{vtmp}, 3, v0\nv_lshlrev_b32 v{vtmp}, 19, v{vtmp}\nv_and_b32 v{vtmp+1}, 7, v0\nv_lshl_add_u32 v{vtmp}, v{vtmp+1}, 15, v{vtmp}")
    a(f"s_lshl_b32 s{S_T0}, s{S_Q}, 10\ns_add_u32 s{S_T0}, s{S_T0}, {384 + u0*32768}\nv_add_u32 v{vtmp}, s{S_T0}, v{vtmp}")
    a(f"v_cmp_gt_u32 vcc, 40, v0\nv_mov_b32 v{vtmp+1}, {hex(OOB)}\ns_nop 0\nv_cndmask_b32 v{vtmp}, v{vtmp+1}, v{vtmp}, vcc")
    a(f"buffer_load_dword v{V_DUMMY+8}, v{vtmp}, s[{srd}:{srd+3}], 0 offen")

def only(a, cond_lines, body):
    l0 = lab("Lo")
    a(cond_lines)
    a(f"s_cbranch_scc0 {l0}")
    body()
    a(f"{l0}:")

def emit():
    global NEPI, FE_SPLIT
    NEPI = int(OPT["nepi"])
    FE_SPLIT = int(OPT["fesplit"])
    c1, c2 = Conv(1), Conv(2)
    a = Asm()
    kernel_begin(a, KN)
    a(f"s_cmp_ge_u32 s{S_WG}, 256\ns_cbranch_scc1 L_end")
    load_ptrs(a)
    if OPT["codepf"]:
        a("s_getpc_b64 s[4:5]")
        a("L_pc_here:")
        a(f"s_lshr_b32 s6, s{S_WG}, 3")
        a("s_lshl_b32 s6, s6, 3")
        a("v_lshrrev_b32 v1, 6, v0")
        a("v_add_u32 v1, s6, v1")
        a("v_and_b32 v1, 63, v1")
        a("v_lshlrev_b32 v1, 10, v1")
        a("v_and_b32 v2, 63, v0")
        a("v_lshl_add_u32 v1, v2, 4, v1")
        a(f"v_min_u32 v1, CODE_LAST, v1")
        a(f"global_load_dwordx4 v[{V_DUMMY+4}:{V_DUMMY+7}], v1, s[4:5]")
    stamp(a, 0)
    if OPT["dbg"]:
        a("s_memrealtime s[74:75]\ns_waitcnt lgkmcnt(0)\ns_mov_b32 s76, s74")
    ids(a)
    if OPT["qperm"]:
        a(f"s_xor_b32 s{S_Q}, s{S_Q}, {OPT['qperm']}")
    a(f"s_lshr_b32 s{S_M}, s{S_Q}, 3\ns_and_b32 s{S_N}, s{S_Q}, 7")
    a("s_waitcnt lgkmcnt(0)")
    mk_srd(a, SRD_WS, S_PWS, 0x10000000)
    a(f"s_mul_i32 s{S_T0}, s{S_B}, 4096000")
    mk_srd(a, SRD_X, S_PX, 4096000, add=f"s{S_T0}")
    mk_srd(a, SRD_W, S_PW1, 2621440)
    mk_srd(a, SRD_OUT, S_POUT, 16384000)
    a(f"s_cmp_ge_u32 s{S_WAVE}, 4\ns_cbranch_scc1 L_Lwaves")
    def nonce_load():
        a(f"v_mov_b32 v30, {WS_NONCE}\nbuffer_load_dword v31, v30, {WSR}, 0 offen sc1")
    only(a, f"s_cmp_eq_u32 s{S_LW}, 3", nonce_load)
    only(a, f"s_cmp_eq_u32 s{S_LW}, 1", lambda: vtouch8(a, SRD_W, 0))
    def zero_inbox():
        a(f"v_lshlrev_b32 v2, 2, v0\nv_add_u32 v2, {MISC}, v2\nv_mov_b32 v3, 0\nds_write_b32 v2, v3\ns_waitcnt lgkmcnt(0)")
    only(a, f"s_cmp_eq_u32 s{S_LW}, 0", zero_inbox)
    G.conv_c_setup(a, c1)
    conv1_tail_pre(a)
    a("s_barrier")
    def nonce_pub():
        a("s_waitcnt vmcnt(0)")
        a(f"v_add_u32 v31, 1, v31\ns_nop 0\nv_readfirstlane_b32 s{S_TAG}, v31")
        a(f"s_getreg_b32 s{S_T0}, hwreg(HW_REG_XCC_ID, 0, 4)")
        a(f"s_lshl_b32 s{S_T0+1}, s{S_X}, 8\ns_lshl_b32 s{S_T0+2}, s{S_Q}, 3\ns_add_u32 s{S_T0+1}, s{S_T0+1}, s{S_T0+2}\ns_add_u32 s{S_T0+1}, s{S_T0+1}, {WS_G0}")
        a(f"v_mov_b32 v28, s{S_TAG}\nv_mov_b32 v29, s{S_T0}\nv_mov_b32 v30, s{S_T0+1}")
        a(f"s_mov_b64 s[{S_T0+14}:{S_T0+15}], exec\ns_mov_b64 exec, 1")
        a(f"buffer_store_dwordx2 v[28:29], v30, {WSR}, 0 offen sc1")
        a(f"s_mov_b64 exec, s[{S_T0+14}:{S_T0+15}]")
        write_misc(a, 0, S_TAG)
    only(a, f"s_cmp_eq_u32 s{S_LW}, 3", nonce_pub)
    RLC = f"s_cmp_lt_u32 s{S_WG}, 128\ns_cselect_b32 s{S_T0}, s{S_LW}, 0\ns_cmp_eq_u32 s{S_T0}, 1"
    GEC = f"s_cmp_ge_u32 s{S_WG}, 224\ns_cselect_b32 s{S_T0}, s{S_LW}, 0\ns_cmp_eq_u32 s{S_T0}, 2"
    if OPT["sidec"]:
        only(a, RLC, lambda: relayout_loads(a, 172))
        only(a, GEC, lambda: ge_gloads_c(a))
    if OPT["xpf"] is not None: x_prefetch(a)
    conv_c_loop(a, c1, 1)
    conv1_tail_c(a)
    stamp(a, 4)
    if OPT["sidec"]:
        a(f"s_mov_b32 s{S_SIDEK}, 0\ns_mov_b32 s{S_SIDEA}, 0\ns_mov_b32 s{S_SIDEV}, 0")
        def rlj():
            relayout_finish(a, 1, 172)
            a(f"s_lshl_b32 s{S_SIDEA}, s{S_WG}, 2\ns_add_u32 s{S_SIDEA}, s{S_SIDEA}, {WS_RL}\ns_mov_b32 s{S_SIDEK}, 1")
        only(a, RLC, rlj)
        only(a, GEC, lambda: ge_finish_c(a))
    if OPT["cpre"]:
        mk_srd(a, SRD_W, S_PW2, 2621440)
        l_setup_w(a)
        a(f"s_add_u32 s{S_PA}, s{S_M}, s{S_N}\ns_and_b32 s{S_PA}, s{S_PA}, 1\ns_lshl_b32 s{S_PWX}, s{S_PA}, 16\ns_lshl_b32 s{S_T0}, s{S_N}, 7\ns_add_u32 s{S_PWX}, s{S_PWX}, s{S_T0}")
        a(f"s_mov_b32 s{S_LSW}, {2 * c2.WB}")
        for u in (2, 3, 4):
            l_issue_W(a, c2, SRD_W, u)
            if OPT["cpace"] is not None and u < 4: a(f"s_waitcnt vmcnt({OPT['cpace']})")
    a(f"s_lshr_b32 s{S_GRP}, s{S_LW}, 1\ns_mul_i32 s{S_GRP}, s{S_GRP}, {c2.WB}")
    G.conv_c_setup(a, c2)
    conv2_tail_pre(a)
    if OPT["cpre"]: a("s_waitcnt vmcnt(0)")
    b = Asm()
    a("s_barrier")
    stamp(a, 5)
    save = OPT["stamp"]; OPT["stamp"] = False
    conv_c_loop(b, c2, 0)
    OPT["stamp"] = save
    lines = b.lines
    i0 = next(i for i, l in enumerate(lines) if l.strip() == "s_barrier")
    a.lines += lines[i0+1:]
    stamp(a, 6)
    conv2_tail_c(a)
    stamp(a, 13)
    fe_c(a)
    stamp(a, 9)
    joint_c(a)
    a("s_branch L_fin")
    a("L_Lwaves:")
    sch = LSched()
    nA1, nA2 = c1.nA // 4, c2.nA // 4
    iA = [0]; iW = [0]
    def A(c, srd, pol, tag):
        l_issue_A(a, c, srd, pol, iA[0]); sch.add((tag, "A", iA[0]), c.nA // 4); iA[0] += 1
    def W(c, tag):
        l_issue_W(a, c, SRD_W, iW[0]); sch.add((tag, "W", iW[0]), 5); iW[0] += 1
    l_setup_w(a)
    a(f"s_mov_b32 s{S_LSA}, 0\ns_mov_b32 s{S_LSW}, 0")
    if OPT["twist"]:
        a(f"s_add_u32 s{S_PA}, s{S_M}, s{S_N}\ns_and_b32 s{S_PA}, s{S_PA}, 1")
    else:
        a(f"s_mov_b32 s{S_PA}, 0")
    a(f"s_lshl_b32 s{S_PWX}, s{S_PA}, 16\ns_lshl_b32 s{S_PA}, s{S_PA}, 7\ns_lshl_b32 s{S_T0}, s{S_N}, 7\ns_add_u32 s{S_PWX}, s{S_PWX}, s{S_T0}")
    W(c1, 1)
    a(f"s_mul_i32 s{S_T0+8}, s{S_QQ}, 1000\ns_lshl_b32 s{S_T0+9}, s{S_M}, 8\ns_add_u32 s{S_T0+8}, s{S_T0+8}, s{S_T0+9}\ns_sub_u32 s{S_T0+8}, s{S_T0+8}, 6")
    if OPT["fastA0"]:
        a(f"s_xor_b32 s{S_OFA}, s{S_PA}, 0\ns_lshl_b32 s{S_T0+4}, s{S_LW}, 10")
        def iss(k):
            extra = (4 * k + 3 >= c1.nA)
            if extra:
                l0 = lab("Lx")
                a(f"s_cmp_lt_u32 s{S_LW}, {c1.nA - 4 * k}\ns_cbranch_scc0 {l0}")
            a(f"s_add_u32 m0, s{S_T0+4}, {k*4096}\ns_nop 0")
            a(f"buffer_load_dwordx4 v{V_LA+k}, s[{SRD_X}:{SRD_X+3}], s{S_OFA} offen {OPT['xld']} lds")
            if extra: a(f"{l0}:")
        l_setup_a(a, c1, S_T0+8, 0, 4000, iss)
        a(f"s_mov_b32 s{S_LSA}, {c1.AB}")
        sch.add((1, "A", 0), c1.nA // 4); iA[0] = 1
    else:
        l_setup_a(a, c1, S_T0+8, 0, 4000)
        A(c1, SRD_X, OPT["xld"], 1)
    stamp(a, 1)
    a("s_barrier")
    W(c1, 1)
    if OPT["wtouch"] and OPT["tx"]:
        a(f"s_mul_i32 s{S_T0+2}, s{S_QQ}, 1000\ns_mul_i32 s{S_T0+3}, s{S_Q}, 33\ns_add_u32 s{S_T0+2}, s{S_T0+2}, s{S_T0+3}")
        a(f"s_lshl_b32 s{S_T0+3}, s{S_LW}, 3\ns_add_u32 s{S_T0+2}, s{S_T0+2}, s{S_T0+3}\ns_sub_u32 s{S_T0+2}, s{S_T0+2}, 6")
        for j in range(9):
            a(f"s_add_i32 s{S_T0+3}, s{S_T0+2}, {j}\ns_max_i32 s{S_T0+3}, s{S_T0+3}, 0\ns_min_i32 s{S_T0+3}, s{S_T0+3}, 3999")
            a(f"s_lshl_b32 s{S_T0+3}, s{S_T0+3}, 10\ns_add_u32 s{S_T0+3}, s{S_T0+3}, 384")
            a(f"s_load_dword s76, s[{SRD_X}:{SRD_X+1}], s{S_T0+3}")
    need1 = lambda s: [(1, "A", s // 2), (1, "W", s)]
    a(f"s_waitcnt vmcnt({sch.wait_for(need1(0))})")
    a("s_barrier")
    stamp(a, 2)
    def Apart(part):
        l_issue_A(a, c1, SRD_X, OPT["xld"], iA[0], part)
        n0 = 5; n1 = c1.nA // 4 - 5
        sch.add((1, "A", iA[0]), n0 if part == 0 else n1)
        if part == 1: iA[0] += 1
    if c1.RA == 2:
        A(c1, SRD_X, OPT["xld"], 1); W(c1, 1); W(c1, 1)
    else:
        A(c1, SRD_X, OPT["xld"], 1); W(c1, 1); Apart(0)
    for u in (4, 5, 6, 7, 8): w_touch(a, S_PW1, u, 8)
    for s in range(c1.NST):
        if s + 1 < c1.NST:
            nw_ = min(63, sch.wait_for(need1(s+1)))
            if s == 14 and OPT["sidec"]:
                l0, l1 = lab("Lv"), lab("Lv")
                a(f"s_cmp_ge_u32 s{S_WG}, 224\ns_cselect_b32 s{S_T0}, s{S_LW}, 0\ns_cmp_eq_u32 s{S_T0}, 2\ns_cbranch_scc1 {l0}")
                a(f"s_waitcnt vmcnt({nw_})\ns_branch {l1}\n{l0}:\ns_waitcnt vmcnt({min(63, nw_ + 16)})\n{l1}:")
            else:
                a(f"s_waitcnt vmcnt({nw_})")
        a("s_barrier")
        if c1.RA == 2:
            if s % 2 == 1 and iA[0] < c1.NA: A(c1, SRD_X, OPT["xld"], 1)
            if iW[0] < c1.NU: W(c1, 1)
        else:
            if iW[0] < c1.NU: W(c1, 1)
            if iA[0] < c1.NA: Apart(1 if s % 2 == 0 else 0)
        w_touch(a, S_PW1, s + 9, 8)
        if OPT["vtouch"] and s in (1, 7, 9):
            def tch(s=s):
                if s == 1: vtouch8(a, SRD_W, 8)
                else:
                    mk_srd(a, SRD_T, S_PW2, 2621440)
                    vtouch8(a, SRD_T, 0 if s == 7 else 8)
            only(a, f"s_cmp_eq_u32 s{S_LW}, 3", tch)
        if s >= 8 and OPT["t2"]:
            w_touch(a, S_PW2, 2*(s-8), 8); w_touch(a, S_PW2, 2*(s-8) + 1, 8)
        if OPT["stg"] and s in (12, 13):
            if s == 12:
                mk_srd(a, SRD_T, S_PW2, 2621440)
                stage_W2_loads(a, c2, SRD_T, 3)
                sch.add("stg", 15)
            else:
                sch.add("stg", 10)
                b = Asm(); stage_W2_loads(b, c2, SRD_T, 5)
                keep = False
                for l in b.lines:
                    if f"{3*32768}" in l and "s_xor" in l: keep = True
                    if keep: a(l.strip())
        if s == 13 and OPT["sidec"]:
            only(a, f"s_cmp_ge_u32 s{S_WG}, 224\ns_cselect_b32 s{S_T0}, s{S_LW}, 0\ns_cmp_eq_u32 s{S_T0}, 2", lambda: ge_loads_c(a))
        if s == 2:
            mk_srd(a, SRD_T, S_PW2, 2621440)
            a(f"s_mul_i32 s{S_T0+2}, s{S_WG}, 12288\ns_mul_i32 s{S_T0+3}, s{S_LW}, 3072\ns_add_u32 s{S_T0+2}, s{S_T0+2}, s{S_T0+3}")
            a(f"v_lshl_add_u32 v4, v0, 4, s{S_T0+2}")
            for k in range(3): a(f"buffer_load_dwordx4 v[{V_DUMMY}:{V_DUMMY+3}], v4, s[{SRD_T}:{SRD_T+3}], 0 offen offset:{k*1024}")
            mk_srd(a, SRD_T, S_PWG, 524288)
            a(f"s_lshl_b32 s{S_T0+2}, s{S_WG}, 11\ns_lshl_b32 s{S_T0+3}, s{S_LW}, 9\ns_add_u32 s{S_T0+2}, s{S_T0+2}, s{S_T0+3}")
            a(f"v_and_b32 v4, 31, v0\nv_lshl_add_u32 v4, v4, 4, s{S_T0+2}")
            a(f"buffer_load_dwordx4 v[{V_DUMMY}:{V_DUMMY+3}], v4, s[{SRD_T}:{SRD_T+3}], 0 offen")
            sch.add("pf", 4)
        if s == 3:
            read_misc(a, 0, S_TAG)
            a(f"s_lshl_b32 s{S_T0+1}, s{S_X}, 8\ns_add_u32 s{S_T0+1}, s{S_T0+1}, {WS_G0}")
            a(f"v_and_b32 v28, 31, v0\nv_lshlrev_b32 v28, 3, v28\nv_add_u32 v28, s{S_T0+1}, v28")
            def xcc_issue():
                a(f"buffer_load_dwordx2 v[26:27], v28, {WSR}, 0 offen sc1")
            only(a, f"s_cmp_eq_u32 s{S_LW}, 0", xcc_issue)
            mark1 = len(sch.ops)
        if s == 7:
            def xcc_check():
                a(f"s_waitcnt vmcnt({len(sch.ops) - mark1})")
                l0 = lab("Lc")
                a(f"s_mov_b32 s{S_T0+16}, 0\nv_cmp_ne_u32 vcc, s{S_TAG}, v26\ns_cbranch_vccz {l0}")
                poll(a, 28, 26, width=2)
                a(f"{l0}:")
                a(f"s_getreg_b32 s{S_T0}, hwreg(HW_REG_XCC_ID, 0, 4)")
                a(f"v_cmp_ne_u32 vcc, s{S_T0}, v27\ns_nop 4\ns_cmp_eq_u64 vcc, 0\ns_cselect_b32 s{S_FAST}, 1, 0")
                a(f"s_cmp_ge_u32 s{S_T0+16}, {SPIN_MAX}\ns_cselect_b32 s{S_FAST}, 0, s{S_FAST}")
                if OPT["force_slow"]: a(f"s_mov_b32 s{S_FAST}, 0")
                write_misc(a, 4, S_FAST)
            only(a, f"s_cmp_eq_u32 s{S_LW}, 0", xcc_check)
        if s == 6 and not OPT["sidec"]:
            only(a, f"s_cmp_lt_u32 s{S_WG}, 128\ns_cselect_b32 s{S_T0}, s{S_LW}, 0\ns_cmp_eq_u32 s{S_T0}, 1", lambda: relayout_loads(a))
            mark3 = len(sch.ops)
        if s == 11 and not OPT["sidelate"] and not OPT["sidec"]:
            only(a, f"s_cmp_lt_u32 s{S_WG}, 128\ns_cselect_b32 s{S_T0}, s{S_LW}, 0\ns_cmp_eq_u32 s{S_T0}, 1", lambda: relayout_finish(a, len(sch.ops) - mark3))
        if s == 13 and not OPT["sidelate"] and not OPT["sidec"]:
            only(a, f"s_cmp_ge_u32 s{S_WG}, 224\ns_cselect_b32 s{S_T0}, s{S_LW}, 0\ns_cmp_eq_u32 s{S_T0}, 2", lambda: ge_loads(a))
    stamp(a, 3)
    mk_srd(a, SRD_W, S_PW2, 2621440)
    a(f"s_lshl_b32 s{S_T0}, s{S_X}, 19\ns_add_u32 s{S_T0}, s{S_T0}, {WS_H}")
    mk_srd(a, SRD_X, S_PWS, 0x100000, add=f"s{S_T0}")
    iA[0] = 0; iW[0] = 0
    a(f"s_mov_b32 s{S_LSA}, 0\ns_mov_b32 s{S_LSW}, 0")
    if not OPT["sidelate"] and not OPT["sidec"]:
        only(a, f"s_cmp_lt_u32 s{S_WG}, 128\ns_cselect_b32 s{S_T0}, s{S_LW}, 0\ns_cmp_eq_u32 s{S_T0}, 1", lambda: relayout_flag(a))
        only(a, f"s_cmp_ge_u32 s{S_WG}, 224\ns_cselect_b32 s{S_T0}, s{S_LW}, 0\ns_cmp_eq_u32 s{S_T0}, 2", lambda: ge_finish(a))
    npre = int(OPT["npre"])
    if OPT["stg"]:
        npre = 5
        a("s_waitcnt vmcnt(0)")
        stage_W2_write(a, c2, 5)
        iW[0] = 5
        a(f"s_mov_b32 s{S_LSW}, 0")
    else:
        for _ in range(npre): W(c2, 2)
    if OPT["sidec"]:
        only(a, f"s_cmp_ge_u32 s{S_WG}, 224\ns_cselect_b32 s{S_T0}, s{S_LW}, 0\ns_cmp_eq_u32 s{S_T0}, 2", lambda: ge_stage_l(a, 0 if OPT["stg"] else 5*npre))
    def rl_job():
        relayout_finish(a, 0 if OPT["stg"] else 5*npre); relayout_flag(a)
    if OPT["sidelate"] and not OPT["sidec"]: only(a, f"s_cmp_lt_u32 s{S_WG}, 128\ns_cselect_b32 s{S_T0}, s{S_LW}, 0\ns_cmp_eq_u32 s{S_T0}, 1", rl_job)
    def ge_job():
        a("s_waitcnt lgkmcnt(0)")
        ge_loads(a); ge_finish(a)
    if OPT["sidelate"] and not OPT["sidec"]: only(a, f"s_cmp_ge_u32 s{S_WG}, 224\ns_cselect_b32 s{S_T0}, s{S_LW}, 0\ns_cmp_eq_u32 s{S_T0}, 2", ge_job)
    a(f"s_lshl_b32 s{S_T0+8}, s{S_M}, 7")
    a(f"s_cmp_eq_u32 s{S_QQ}, 0\ns_cselect_b32 s{S_T0+10}, 2, 0")
    a(f"s_cmp_eq_u32 s{S_QQ}, 3\ns_cselect_b32 s{S_T0+11}, 0, 522\ns_add_u32 s{S_T0+11}, s{S_T0+11}, 502")
    a(f"s_sub_u32 s{S_T0+11}, s{S_T0+11}, s{S_T0+10}")
    l_setup_a(a, c2, S_T0+8, f"s{S_T0+10}", f"s{S_T0+11}")
    if OPT["seqpre"]:
        l0, l1 = lab("Lq"), lab("Lq")
        a(f"v_mov_b32 v2, {INBOX + 64}\ns_mov_b32 s{S_T0+16}, 0\n{l0}:\nds_read_b128 v[4:7], v2")
        a(f"s_add_u32 s{S_T0+16}, s{S_T0+16}, 1\ns_cmp_ge_u32 s{S_T0+16}, {SPIN_MAX*8}\ns_cbranch_scc1 {l1}")
        a(f"s_waitcnt lgkmcnt(0)\nv_and_b32 v4, v4, v5\nv_and_b32 v6, v6, v7\nv_and_b32 v4, v4, v6\nv_cmp_eq_u32 vcc, 0, v4\ns_cbranch_vccnz {l0}\n{l1}:\ns_waitcnt lgkmcnt(0)")
        while iW[0] < 5: W(c2, 2)
        npre = 5
    if OPT["cpre"]:
        iW[0] = 5; npre = 5
        a(f"s_mov_b32 s{S_LSW}, 0")
    a(f"s_lshl_b32 s{S_T0}, s{S_M}, 3\nv_lshrrev_b32 v6, 2, v0\nv_add_u32 v6, s{S_T0}, v6\nv_min_u32 v6, 31, v6")
    a(f"v_lshlrev_b32 v6, 4, v6\nv_and_b32 v7, 3, v0\nv_lshl_add_u32 v6, v7, 2, v6")
    a(f"s_lshl_b32 s{S_T0}, s{S_X}, 9\ns_add_u32 s{S_T0}, s{S_T0}, {WS_F1}\nv_add_u32 v6, s{S_T0}, v6")
    poll(a, 6, 7)
    sch.ops = []
    stamp(a, 4)
    A(c2, SRD_X, "sc1", 2)
    if npre < 3: W(c2, 2)
    A(c2, SRD_X, "sc1", 2)
    if npre < 4: W(c2, 2)
    a(f"s_waitcnt vmcnt({sch.wait_for([(2, 'A', 0)])}) lgkmcnt(0)")
    a("s_barrier")
    stamp(a, 5)
    if npre < 5: W(c2, 2)
    A(c2, SRD_X, "sc1", 2)
    for s in range(c2.NST):
        if s + 1 < c2.NST:
            tags = [(2, "A", s+1), (2, "W", 2*s+2), (2, "W", 2*s+3)]
            tags = [t for t in tags if t in sch.ops]
            a(f"s_waitcnt vmcnt({min(63, sch.wait_for(tags))})")
        a("s_barrier")
        if iW[0] < c2.NU: W(c2, 2)
        if iA[0] < c2.NA: A(c2, SRD_X, "sc1", 2)
        if iW[0] < c2.NU: W(c2, 2)
        if s == 4:
            a(f"v_lshlrev_b32 v28, 2, v0\nv_add_u32 v28, {WS_RL}, v28\nv_add_u32 v29, 256, v28")
            a(f"v_and_b32 v30, 31, v0\nv_lshlrev_b32 v30, 3, v30\nv_add_u32 v30, {WS_GE}, v30")
            def side_issue():
                a(f"buffer_load_dword v24, v28, {WSR}, 0 offen sc1\nbuffer_load_dword v25, v29, {WSR}, 0 offen sc1")
                a(f"buffer_load_dwordx2 v[26:27], v30, {WSR}, 0 offen sc1")
            only(a, f"s_cmp_eq_u32 s{S_LW}, 3", side_issue)
            mark2 = len(sch.ops)
        if s == 6:
            def side_check():
                a(f"s_waitcnt vmcnt({len(sch.ops) - mark2})")
                for (vv, va, w) in [(24, 28, 1), (25, 29, 1), (26, 30, 2)]:
                    l0 = lab("Lc")
                    a(f"v_cmp_ne_u32 vcc, s{S_TAG}, v{vv}\ns_cbranch_vccz {l0}")
                    poll(a, va, vv, width=w)
                    a(f"{l0}:")
                a(f"v_cmp_ne_u32 vcc, 0, v27\ns_nop 4\ns_cmp_lg_u64 vcc, 0\ns_cselect_b32 s{S_UNS}, 1, 0")
                write_misc(a, 8, S_UNS)
            only(a, f"s_cmp_eq_u32 s{S_LW}, 3", side_check)
        if OPT["stg"] and s == 5: stage_WF_loads(a, 0, 16); sch.add("stg", 16)
        if OPT["stg"] and s == 6: stage_WF_loads(a, 16, 32); sch.add("stg", 16)
        if s == 7:
            read_misc(a, 8, S_UNS)
    stamp(a, 6)
    if OPT["stg"]:
        a("s_waitcnt vmcnt(0)")
        stage_WF_write(a)
    else:
        fe_l_wpre(a, 0)
    fe_l(a, sch)
    stamp(a, 8)
    joint_l(a)
    stamp(a, 10)
    cond0 = f"s_cmp_eq_u32 s{S_WG}, 0\ns_cselect_b32 s{S_T0}, s{S_LW}, 0\ns_cmp_eq_u32 s{S_T0}, 2"
    for k in range(4): a(f"v_lshlrev_b32 v{48+k}, 3, v0\nv_add_u32 v{48+k}, {WS_G0 + k*512}, v{48+k}")
    def nonce_issue():
        for k in range(4): a(f"buffer_load_dwordx2 v[{52+2*k}:{53+2*k}], v{48+k}, {WSR}, 0 offen sc1")
    only(a, cond0, nonce_issue)
    if OPT["wbl2"]:
        def wb():
            a("buffer_wbl2 sc1")
        only(a, f"s_cmp_eq_u32 s{S_Q}, {OPT['wbq']}\ns_cselect_b32 s{S_T0}, s{S_LW}, 0\ns_cmp_eq_u32 s{S_T0}, 1", wb)
    n = joint_store(a, 0, False)
    a("s_barrier")
    joint_store_issue(a, n, OPT["pace"])
    stamp(a, 11)
    def nonce_update():
        a(f"s_waitcnt vmcnt({n})")
        for k in range(4):
            l0 = lab("Lc")
            a(f"v_cmp_ne_u32 vcc, s{S_TAG}, v{52+2*k}\ns_cbranch_vccz {l0}")
            poll(a, 48+k, 52+2*k, width=2)
            a(f"{l0}:")
        a(f"s_mov_b32 s{S_T0+8}, {WS_NONCE}")
        flag_store(a, S_T0+8, fast_variant=False)
    only(a, cond0, nonce_update)
    n = joint_store(a, 1, True)
    a("s_barrier")
    joint_store_issue(a, n)
    a("L_fin:")
    a("s_waitcnt vmcnt(0)")
    if OPT["dbg"]:
        def dbgw():
            a("s_memrealtime s[74:75]\ns_waitcnt lgkmcnt(0)")
            mk_srd(a, SRD_T, S_PDBG, 256)
            a(f"s_lshl_b32 s{S_T0}, s{S_WG}, 2\nv_mov_b32 v2, s{S_T0}\nv_mov_b32 v3, s76\nv_mov_b32 v4, s74")
            a(f"buffer_store_dword v3, v2, s[{SRD_T}:{SRD_T+3}], 0 offen\nbuffer_store_dword v4, v2, s[{SRD_T}:{SRD_T+3}], 0 offen offset:32")
            a("s_waitcnt vmcnt(0)")
        only(a, f"s_cmp_lt_u32 s{S_WG}, 8\ns_cselect_b32 s{S_T0}, s{S_WAVE}, 1\ns_cmp_eq_u32 s{S_T0}, 0", dbgw)
    stamp(a, 12)
    stamp_flush(a, 14, "L_stx")
    a("L_end:")
    a("s_endpgm")
    a("L_code_end:")
    if OPT["codepf"]:
        a.lines.insert(0, ".set CODE_LAST, L_code_end - L_pc_here - 16")
    return file_text([(None, (256,1,1), (512,1,1), 160*1024)], a.text(), [kernel_desc(KN, 256, 102)])

if __name__ == "__main__":
    for arg in sys.argv[2:]:
        if arg == "--stamp": OPT["stamp"] = True
        elif arg == "--cyc": OPT["cyc"] = True
        elif arg.startswith("--o="):
            k, v = arg[4:].split("=", 1)
            OPT[k] = None if v == "None" else (True if v == "True" else (False if v == "False" else (int(v) if v.isdigit() else v.replace("+", " "))))
    open(sys.argv[1], "w").write(emit())
```

```python
import sys
from asmlib import *
import gen as G
from gen import (f2h, mk_srd, load_ptrs, ids, Conv, swz_of, xfrag_read, wfrag_reads, group_reads, group_mfmas, interleave,
                 gelu_consts, gelu_block, LSched, C2LOG2E, OOB, SWZ_TBL,
                 WS_H, WS_F, WS_P, WS_WO, WS_WF, WS_QE, WS_QR,
                 S_WG, SRD_X, SRD_W, SRD_WS, SRD_OUT, SRD_T, S_PX, S_PW1, S_PW2, S_PG, S_PWF, S_PWG, S_PWO, S_POUT, S_PDBG, S_PWS,
                 S_X, S_Q, S_B, S_QQ, S_M, S_N, S_WAVE, S_LW, S_T0, S_CNT, S_GRP, S_UNS,
                 V_ACC, V_E0, V_E1, V_O, V_W, V_XA0, V_XA1, V_WA0, V_WA1, V_XB, V_WB0, V_WB1, S_SLOTA, S_SLOTW,
                 V_LA, V_LWV, S_OFA, S_OFW, S_LSA, S_LSW)

WS_NONCE = 0x0F30000
WS_G0    = 0x0F31000
WS_F1    = 0x0F32000
WS_F2    = 0x0F33000
WS_F3    = 0x0F34000
WS_RL    = 0x0F35000
WS_GE    = 0x0F36000
WS_STAMP = 0x1000000
S_TAG, S_FAST = 86, 87
MISC = 163584
INBOX = MISC + 64
SPIN_MAX = 40000

OPT = dict(tlbw=True, cpace=0, fesplit=12, fewreg=True, cpre=False, nobar=False, notanh=False, fastA0=True, wo_pre=6, wbl2=False, wbq=5, seqpre=False, sidec=True, stg=False, tailst=False, cloopcnt=True, hot=False, vtouch=True, sidelate=True, npre=2, t2=False, tx=False, gelupk=True, lprio=0, pace=3, nepi=6, steps=False, wstep=4096, jst=False, wold='', nomfma=False, nowl=False, pk=False, ostage=True, twist=True, wowarm=True, wtouch=None, qperm=0, dbg=False, codepf=True, stamp=False, cyc=False, xpf=None, xld="", scout="nt", scl_fast="", force_slow=False)
S_ST = 88
def tstamp(a, i, which=1):
    if OPT["tailst"] and int(OPT["tailst"]) == which: stamp(a, i, True)
def stamp(a, i, force=False):
    if OPT["tailst"] and i in (7, 8, 9, 13) and not force: return
    if OPT["stamp"]:
        a(f"{'s_memtime' if OPT['cyc'] else 's_memrealtime'} s[74:75]")
        a("s_waitcnt lgkmcnt(0)")
        a(f"s_mov_b32 s{S_ST+i}, s74")
def stamp_flush(a, n, lab):
    if not OPT["stamp"]: return
    a(f"s_and_b32 s{S_T0}, s{S_WAVE}, 3\ns_cmp_eq_u32 s{S_T0}, 0\ns_cbranch_scc0 {lab}")
    a(f"s_lshr_b32 s{S_T0}, s{S_WAVE}, 2\ns_lshl_b32 s{S_T0}, s{S_T0}, 6")
    a(f"s_lshl_b32 s{S_T0+1}, s{S_WG}, 7\ns_add_u32 s{S_T0}, s{S_T0}, s{S_T0+1}")
    a(f"s_add_u32 s{S_T0}, s{S_T0}, {WS_STAMP}")
    for i in range(n):
        a(f"v_mov_b32 v2, s{S_ST+i}\nv_mov_b32 v3, s{S_T0}")
        a(f"buffer_store_dword v2, v3, s[{SRD_WS}:{SRD_WS+3}], 0 offen offset:{4*i}")
    a("s_waitcnt vmcnt(0)")
    a(f"{lab}:")

LABN = [0]
def lab(p="L"):
    LABN[0] += 1
    return f"{p}_{LABN[0]}"

WSR = f"s[{SRD_WS}:{SRD_WS+3}]"

def poll(a, vaddr, vtmp, width=1):
    l0, l1 = lab("Lp"), lab("Lp")
    a(f"s_mov_b32 s{S_T0+16}, 0")
    a(f"{l0}:")
    if width == 1: a(f"buffer_load_dword v{vtmp}, v{vaddr}, {WSR}, 0 offen sc1")
    else: a(f"buffer_load_dwordx2 v[{vtmp}:{vtmp+1}], v{vaddr}, {WSR}, 0 offen sc1")
    a(f"s_add_u32 s{S_T0+16}, s{S_T0+16}, 1")
    a(f"s_cmp_ge_u32 s{S_T0+16}, {SPIN_MAX}")
    a(f"s_cbranch_scc1 {l1}")
    a("s_waitcnt vmcnt(0)")
    a(f"v_cmp_ne_u32 vcc, s{S_TAG}, v{vtmp}")
    a(f"s_cbranch_vccnz {l0}")
    a(f"{l1}:")
    a("s_waitcnt vmcnt(0)")

def flag_store(a, off_sgpr, fast_variant=True):
    a(f"v_mov_b32 v2, s{S_TAG}\nv_mov_b32 v3, s{off_sgpr}")
    a(f"s_mov_b64 s[{S_T0+14}:{S_T0+15}], exec\ns_mov_b64 exec, 1")
    if fast_variant:
        l0, l1 = lab("Lf"), lab("Lf")
        a(f"s_cmp_eq_u32 s{S_FAST}, 0\ns_cbranch_scc1 {l0}")
        a(f"buffer_store_dword v2, v3, {WSR}, 0 offen")
        a(f"s_branch {l1}\n{l0}:")
        a(f"buffer_store_dword v2, v3, {WSR}, 0 offen sc1")
        a(f"{l1}:")
    else:
        a(f"buffer_store_dword v2, v3, {WSR}, 0 offen sc1")
    a(f"s_mov_b64 exec, s[{S_T0+14}:{S_T0+15}]")

def local_stores(a, instrs):
    l0, l1 = lab("Ls"), lab("Ls")
    a(f"s_cmp_eq_u32 s{S_FAST}, 0\ns_cbranch_scc1 {l0}")
    for i in instrs: a(i.replace("{SC}", OPT["scl_fast"]))
    a(f"s_branch {l1}\n{l0}:")
    for i in instrs: a(i.replace("{SC}", "sc1"))
    a(f"{l1}:")

def pair_sync(a, event, partner_xor):
    l0, l1 = lab("Ly"), lab("Ly")
    a("s_waitcnt lgkmcnt(0)")
    a(f"s_xor_b32 s{S_T0+12}, s{S_LW}, {partner_xor}")
    a(f"s_lshl_b32 s{S_T0+12}, s{S_T0+12}, 2\ns_add_u32 s{S_T0+12}, s{S_T0+12}, {INBOX + event*16}")
    a(f"s_lshl_b32 s{S_T0+13}, s{S_LW}, 2\ns_add_u32 s{S_T0+13}, s{S_T0+13}, {INBOX + event*16}")
    a(f"v_mov_b32 v2, s{S_T0+12}\nv_mov_b32 v3, 1\nds_write_b32 v2, v3")
    a(f"v_mov_b32 v2, s{S_T0+13}\ns_mov_b32 s{S_T0+16}, 0")
    a(f"{l0}:")
    a("ds_read_b32 v3, v2")
    a(f"s_add_u32 s{S_T0+16}, s{S_T0+16}, 1\ns_cmp_ge_u32 s{S_T0+16}, {SPIN_MAX*8}\ns_cbranch_scc1 {l1}")
    a("s_waitcnt lgkmcnt(0)")
    a("v_cmp_eq_u32 vcc, 0, v3")
    a(f"s_cbranch_vccnz {l0}")
    a(f"{l1}:")
    a("s_waitcnt lgkmcnt(0)")

def conv_c_loop(a, c, st0):
    t = c.tag
    stamp(a, st0)
    a("s_barrier")
    stamp(a, st0 + 1)
    for r in group_reads(c, V_E0, 0, 0): a(r)
    for r in group_reads(c, V_E0, 1, 1): a(r)
    a(f"s_mov_b32 s{S_CNT}, 0")
    a(f"L_{t}_cloop:")
    SETS = [[V_WA0, V_XA0, V_WA1, V_XA1], [18, 19, 20, 21]]
    def use(r, st):
        return (r.replace(f", v{V_WA0} ", f", v{st[0]} ").replace(f", v{V_XA0} ", f", v{st[1]} ")
                 .replace(f", v{V_WA1} ", f", v{st[2]} ").replace(f", v{V_XA1} ", f", v{st[3]} "))
    for par in range(2):
        es, en = (V_E0, V_E1) if par == 0 else (V_E1, V_E0)
        cur, nxt = SETS[par], SETS[1 - par]
        a("s_waitcnt lgkmcnt(8)")
        interleave(a, group_mfmas(es, 0, 0), [use(r, cur) for r in group_reads(c, es, 2, 2)])
        a("s_waitcnt lgkmcnt(5)")
        sc = []
        if c.idx == 1:
            sc += [f"s_add_u32 s{S_SLOTW}, s{S_SLOTW}, {c.WB}", f"s_cmp_ge_u32 s{S_SLOTW}, {c.RW * c.WB}", f"s_cselect_b32 s{S_SLOTW}, 0, s{S_SLOTW}"]
            if par == 1:
                if c.RA == 2: sc += [f"s_xor_b32 s{S_SLOTA}, s{S_SLOTA}, {c.AB}"]
                else: sc += [f"s_add_u32 s{S_SLOTA}, s{S_SLOTA}, {c.AB}", f"s_cmp_ge_u32 s{S_SLOTA}, {c.RA * c.AB}", f"s_cselect_b32 s{S_SLOTA}, 0, s{S_SLOTA}"]
            xb = V_XB + (2 if par == 0 else 0)
        else:
            sc += [f"s_add_u32 s{S_SLOTW}, s{S_SLOTW}, {2 * c.WB}", f"s_add_u32 s{S_T0}, s{S_SLOTW}, s{S_GRP}",
                   f"s_cmp_ge_u32 s{S_T0}, {c.RW * c.WB}", f"s_cselect_b32 s{S_T0}, {c.RW * c.WB}, 0", f"s_sub_u32 s{S_SLOTW}, s{S_SLOTW}, s{S_T0}",
                   f"s_add_u32 s{S_SLOTA}, s{S_SLOTA}, {2 * c.AB}", f"s_cmp_ge_u32 s{S_SLOTA}, {c.RA * c.AB}",
                   f"s_cselect_b32 s{S_T0}, {c.RA * c.AB}, 0", f"s_sub_u32 s{S_SLOTA}, s{S_SLOTA}, s{S_T0}"]
            xb = V_XB
        rd = [use(r, cur) for r in group_reads(c, es, 3, 3)]
        mf = group_mfmas(es, 1, 1)
        k = 0
        for i, m in enumerate(mf):
            a(m)
            if i < len(rd): a(rd[i])
            else:
                while k < len(sc) and k < 3 * (i - len(rd) + 1): a(sc[k]); k += 1
        while k < len(sc): a(sc[k]); k += 1
        a("s_waitcnt lgkmcnt(5)")
        rd = [use(r, cur) for r in group_reads(c, es, 4, 4)]
        nx = [f"v_add_u32 v{nxt[0]}, s{S_SLOTW}, v{V_WB0}", f"v_add_u32 v{nxt[1]}, s{S_SLOTA}, v{xb}",
              f"v_add_u32 v{nxt[2]}, s{S_SLOTW}, v{V_WB1}", f"v_add_u32 v{nxt[3]}, s{S_SLOTA}, v{xb+1}"]
        mf = group_mfmas(es, 2, 2)
        oth = rd + nx[:3]
        for i, m in enumerate(mf):
            a(m)
            if i < len(oth): a(oth[i])
            if i == len(mf) - 2: a(nx[3])
        if OPT["cloopcnt"] and par == 1:
            pass
        a("s_waitcnt lgkmcnt(0)")
        a("s_barrier")
        interleave(a, group_mfmas(es, 3, 3), [use(r, nxt) for r in group_reads(c, en, 0, 0)])
        r1 = [use(r, nxt) for r in group_reads(c, en, 1, 1)]
        if par == 1:
            mf = group_mfmas(es, 4, 4)
            interleave(a, mf[:-1], r1[:-1])
            a(r1[-1]) if len(r1) >= len(mf) else None
            a(f"s_add_u32 s{S_CNT}, s{S_CNT}, 2")
            a(f"s_cmp_lt_u32 s{S_CNT}, {c.NST}")
            a(mf[-1])
        else:
            interleave(a, group_mfmas(es, 4, 4), r1)
            if c.idx == 2 and OPT["sidec"]:
                l2 = lab("Le")
                a(f"s_cmp_eq_u32 s{S_CNT}, 0\ns_cbranch_scc0 {l2}")
                side_flag_deferred(a)
                a(f"{l2}:")
    a(f"s_cbranch_scc1 L_{t}_cloop")
    a("s_waitcnt lgkmcnt(0)")
    stamp(a, st0 + 2)

V_TW0, V_TW1, V_TR = 236, 237, 238
V_SO = 240
V_GC = 244
V_XW, V_XR = 250, 251
S_GB, S_FA = 73, 72
S_FA = 76

def tbuf_write_addr(a, base, wm_shift):
    a(f"""
    v_and_b32 v2, 15, v0
    v_lshrrev_b32 v3, 4, v0
    s_and_b32 s{S_T0}, s{S_LW}, 1
    s_lshl_b32 s{S_T0}, s{S_T0}, 3
    v_or_b32 v4, s{S_T0}, v3
    v_and_b32 v5, 14, v2
    v_xor_b32 v4, v4, v5
    v_lshlrev_b32 v4, 3, v4
    v_lshl_add_u32 v{V_TW0}, v2, 9, v4
    """)
    if wm_shift:
        a(f"s_lshr_b32 s{S_T0}, s{S_LW}, 1\ns_lshl_b32 s{S_T0}, s{S_T0}, 13\nv_add_u32 v{V_TW0}, s{S_T0}, v{V_TW0}")
    a(f"v_xor_b32 v{V_TW1}, 32, v{V_TW0}")
    if base: a(f"v_add_u32 v{V_TW0}, {base}, v{V_TW0}\nv_add_u32 v{V_TW1}, {base}, v{V_TW1}")

def flag_addr(a, base):
    a(f"s_lshl_b32 s{S_FA}, s{S_X}, 9\ns_lshl_b32 s{S_T0+9}, s{S_Q}, 4\ns_add_u32 s{S_FA}, s{S_FA}, s{S_T0+9}")
    a(f"s_lshl_b32 s{S_T0+9}, s{S_LW}, 2\ns_add_u32 s{S_FA}, s{S_FA}, s{S_T0+9}\ns_add_u32 s{S_FA}, s{S_FA}, {base}")

def wave_flag(a):
    a("s_waitcnt vmcnt(0)")
    flag_store(a, S_FA)

def gelu_block2(a, src, n, tmp, vc, dst):
    if OPT["gelupk"]: return gelu_block(a, src, n, tmp, vc, dst)
    for p in range(n): a(f"v_mul_f32 v{tmp+p}, v{src+p}, v{src+p}")
    for p in range(n): a(f"v_fma_f32 v{tmp+p}, v{tmp+p}, v{vc}, v{vc+2}")
    for p in range(n): a(f"v_mul_f32 v{tmp+p}, v{tmp+p}, v{src+p}")
    for p in range(n): a(f"v_exp_f32 v{tmp+p}, v{tmp+p}")
    for p in range(n): a(f"v_add_f32 v{tmp+p}, 1.0, v{tmp+p}")
    for p in range(n): a(f"v_rcp_f32 v{tmp+p}, v{tmp+p}")
    for p in range(n): a(f"v_mul_f32 v{tmp+p}, v{tmp+p}, v{src+p}")
    for p in range(0, n, 2): a(f"v_cvt_pk_bf16_f32 v{dst+p//2}, v{tmp+p}, v{tmp+p+1}")

def conv1_tail_pre(a):
    tbuf_write_addr(a, 0, True)
    gelu_consts(a, V_GC)
    a(f"s_lshl_b32 s{S_T0}, s{S_LW}, 12\nv_lshl_add_u32 v{V_TR}, v0, 4, s{S_T0}")
    a("v_and_b32 v5, 7, v0\nv_lshrrev_b32 v6, 3, v0\nv_lshlrev_b32 v6, 10, v6")
    for k in range(4):
        a(f"s_and_b32 s{S_T0+2}, s{S_LW}, 1\ns_lshl_b32 s{S_T0+2}, s{S_T0+2}, 2\ns_add_u32 s{S_T0+2}, s{S_T0+2}, {k}")
        a(f"v_xor_b32 v7, s{S_T0+2}, v5\nv_lshl_add_u32 v7, v7, 4, v6\nv_add_u32 v{V_SO+k}, {k*8192}, v7")
    a(f"""
    s_lshl_b32 s{S_GB}, s{S_X}, 19
    s_lshl_b32 s{S_T0+9}, s{S_M}, 17
    s_add_u32 s{S_GB}, s{S_GB}, s{S_T0+9}
    s_lshl_b32 s{S_T0+9}, s{S_N}, 7
    s_add_u32 s{S_GB}, s{S_GB}, s{S_T0+9}
    s_lshl_b32 s{S_T0+9}, s{S_LW}, 15
    s_add_u32 s{S_GB}, s{S_GB}, s{S_T0+9}
    s_add_u32 s{S_GB}, s{S_GB}, {WS_H}
    """)
    flag_addr(a, WS_F1)

def read_tag_fast(a):
    a(f"v_mov_b32 v2, {MISC}\nds_read_b64 v[4:5], v2\ns_waitcnt lgkmcnt(0)\nv_readfirstlane_b32 s{S_TAG}, v4\nv_readfirstlane_b32 s{S_FAST}, v5")

def conv1_tail_c(a):
    a(f"v_mov_b32 v2, {MISC}\nds_read_b64 v[4:5], v2")
    a("s_nop 4")
    for jj in range(4):
        gelu_block2(a, V_ACC + jj*8, 8, 64, V_GC, 72 + jj*4)
        if jj == 0: a(f"v_readfirstlane_b32 s{S_TAG}, v4\nv_readfirstlane_b32 s{S_FAST}, v5") if False else None
        for nb in range(2):
            r = 72 + jj*4 + nb*2
            a(f"ds_write_b64 v{V_TW1 if nb else V_TW0}, v[{r}:{r+1}] offset:{jj*128}")
    tstamp(a, 7)
    pair_sync(a, 0, 1)
    a(f"v_readfirstlane_b32 s{S_TAG}, v4\nv_readfirstlane_b32 s{S_FAST}, v5")
    tstamp(a, 8)
    for k in range(4): a(f"ds_read_b128 v[{24+4*k}:{27+4*k}], v{V_TR} offset:{k*1024}")
    a("s_waitcnt lgkmcnt(0)")
    tstamp(a, 9)
    local_stores(a, [f"buffer_store_dwordx4 v[{24+4*k}:{27+4*k}], v{V_SO+k}, {WSR}, s{S_GB} offen {{SC}}" for k in range(4)])
    c_stores_issued(a)
    if OPT["tailst"] and int(OPT["tailst"]) == 1:
        a("s_waitcnt vmcnt(0)"); tstamp(a, 13)
    wave_flag(a)

def c_stores_issued(a):
    if not OPT["seqpre"]: return
    a(f"s_lshl_b32 s{S_T0}, s{S_LW}, 2\ns_add_u32 s{S_T0}, s{S_T0}, {INBOX + 64}\nv_mov_b32 v2, s{S_T0}\nv_mov_b32 v3, 1\nds_write_b32 v2, v3")

C2_T = 131072
C2_X = C2_T + 8192
def conv2_tail_pre(a):
    a(f"s_lshl_b32 s{S_T0}, s{S_LW}, 12\ns_add_u32 s{S_T0}, s{S_T0}, {C2_X}\nv_lshl_add_u32 v{V_XW}, v0, 4, s{S_T0}")
    a(f"s_xor_b32 s{S_T0}, s{S_LW}, 2\ns_lshl_b32 s{S_T0}, s{S_T0}, 12\ns_add_u32 s{S_T0}, s{S_T0}, {C2_X}\nv_lshl_add_u32 v{V_XR}, v0, 4, s{S_T0}")
    tbuf_write_addr(a, C2_T, False)
    gelu_consts(a, V_GC)
    a(f"s_lshr_b32 s{S_T0}, s{S_LW}, 1\ns_lshl_b32 s{S_T0}, s{S_T0}, 8")
    a(f"v_add_u32 v{V_TW0}, s{S_T0}, v{V_TW0}\nv_add_u32 v{V_TW1}, s{S_T0}, v{V_TW1}")
    a(f"""
    v_lshrrev_b32 v2, 4, v0
    s_and_b32 s{S_T0}, s{S_LW}, 1
    s_lshl_b32 s{S_T0}, s{S_T0}, 3
    v_add_u32 v2, s{S_T0}, v2
    v_bfe_u32 v3, v0, 3, 1
    s_lshr_b32 s{S_T0+1}, s{S_LW}, 1
    s_lshl_b32 s{S_T0+1}, s{S_T0+1}, 1
    v_add_u32 v3, s{S_T0+1}, v3
    v_and_b32 v5, 7, v0
    """)
    for k in range(2):
        a(f"v_add_u32 v6, {4*k}, v2\nv_lshl_add_u32 v7, v6, 2, v3")
        a(f"v_lshlrev_b32 v22, 7, v7\nv_lshl_add_u32 v22, v5, 4, v22\nv_add_u32 v{V_TR+k}, {C2_T}, v22")
        a(f"v_bfe_u32 v22, v6, 1, 3\nv_xor_b32 v22, v22, v5\nv_lshlrev_b32 v22, 4, v22\nv_lshl_add_u32 v{V_SO+k}, v7, 10, v22")
    a(f"""
    s_lshl_b32 s{S_GB}, s{S_X}, 18
    s_lshl_b32 s{S_T0+9}, s{S_M}, 16
    s_add_u32 s{S_GB}, s{S_GB}, s{S_T0+9}
    s_lshl_b32 s{S_T0+9}, s{S_N}, 7
    s_add_u32 s{S_GB}, s{S_GB}, s{S_T0+9}
    s_add_u32 s{S_GB}, s{S_GB}, {WS_F}
    """)
    flag_addr(a, WS_F2)

def conv2_tail_c(a):
    a(f"v_mov_b32 v2, {MISC + 8}\nds_read_b32 v4, v2")
    a("s_nop 4")
    l0, l1 = lab("Lk"), lab("Lk")
    a(f"s_cmp_ge_u32 s{S_LW}, 2\ns_cbranch_scc1 {l0}")
    for q in range(4): a(f"ds_write_b128 v{V_XW}, v[{V_ACC+16+4*q}:{V_ACC+19+4*q}] offset:{q*1024}")
    a(f"s_branch {l1}\n{l0}:")
    for q in range(4): a(f"ds_write_b128 v{V_XW}, v[{V_ACC+4*q}:{V_ACC+3+4*q}] offset:{q*1024}")
    a("s_waitcnt lgkmcnt(0)")
    for r in range(16): a(f"v_mov_b32 v{V_ACC+r}, v{V_ACC+16+r}")
    a(f"{l1}:")
    pair_sync(a, 1, 2)
    a(f"v_readfirstlane_b32 s{S_UNS}, v4")
    tstamp(a, 7, 2)
    for q in range(4): a(f"ds_read_b128 v[{64+4*q}:{67+4*q}], v{V_XR} offset:{q*1024}")
    for q in range(4):
        a(f"s_waitcnt lgkmcnt({3-q})")
        for p in (4*q, 4*q+2):
            a(f"v_pk_add_f32 v[{V_ACC+p}:{V_ACC+p+1}], v[{V_ACC+p}:{V_ACC+p+1}], v[{64+p}:{64+p+1}]")
    for jj in range(2):
        gelu_block2(a, V_ACC + jj*8, 8, 80, V_GC, 72 + jj*4)
        for nb in range(2):
            r = 72 + jj*4 + nb*2
            a(f"ds_write_b64 v{V_TW1 if nb else V_TW0}, v[{r}:{r+1}] offset:{jj*128}")
    tstamp(a, 8, 2)
    pair_sync(a, 2, 1)
    for k in range(2): a(f"ds_read_b128 v[{24+4*k}:{27+4*k}], v{V_TR+k}")
    a("s_waitcnt lgkmcnt(0)")
    tstamp(a, 9, 2)
    local_stores(a, [f"buffer_store_dwordx4 v[{24+4*k}:{27+4*k}], v{V_SO+k}, {WSR}, s{S_GB} offen {{SC}}" for k in range(2)])
    if OPT["tailst"] and int(OPT["tailst"]) == 2:
        a("s_waitcnt vmcnt(0)"); tstamp(a, 13, 2)
    wave_flag(a)

def read_misc(a, off, sreg):
    a(f"v_mov_b32 v2, {MISC + off}\nds_read_b32 v3, v2\ns_waitcnt lgkmcnt(0)\nv_readfirstlane_b32 s{sreg}, v3")
def write_misc(a, off, sreg):
    a(f"v_mov_b32 v2, {MISC + off}\nv_mov_b32 v3, s{sreg}\nds_write_b32 v2, v3\ns_waitcnt lgkmcnt(0)")

V_DUMMY = 200
def x_prefetch(a):
    d = V_DUMMY
    a(f"""
    v_lshlrev_b32 v4, 4, v0
    s_mul_i32 s{S_T0}, s{S_QQ}, 1000
    s_mul_i32 s{S_T0+1}, s{S_Q}, 33
    s_add_u32 s{S_T0}, s{S_T0}, s{S_T0+1}
    s_lshl_b32 s{S_T0+1}, s{S_LW}, 3
    s_add_u32 s{S_T0}, s{S_T0}, s{S_T0+1}
    s_sub_u32 s{S_T0}, s{S_T0}, 6
    s_lshl_b32 s{S_T0}, s{S_T0}, 10
    v_add_u32 v5, s{S_T0}, v4
    """)
    for k in range(9):
        a(f"buffer_load_dwordx4 v[{d}:{d+3}], v5, s[{SRD_X}:{SRD_X+3}], 0 offen {OPT['xpf']}")
        a(f"v_add_u32 v5, 1024, v5")

FE_W = 0
FE_A = 131072
def fe_c(a):
    a("v_and_b32 v2, 15, v0\nv_lshrrev_b32 v3, 4, v0")
    swz_of(a, 2, 4, S_T0+2)
    a(f"v_xor_b32 v4, v4, v3\nv_lshlrev_b32 v4, 4, v4\nv_lshl_add_u32 v8, v2, 7, v4\nv_add_u32 v8, {FE_A}, v8\nv_xor_b32 v9, 64, v8")
    a(f"s_lshl_b32 s{S_T0}, s{S_LW}, 15\nv_lshl_add_u32 v10, v0, 4, s{S_T0}")
    for r in range(16): a(f"v_mov_b32 v{32+r}, 0")
    a(f"""
    v_lshlrev_b32 v4, 11, v2
    v_lshl_add_u32 v{V_SO}, v3, 4, v4
    v_add_u32 v{V_SO+1}, 0x8000, v{V_SO}
    s_lshr_b32 s{S_T0}, s{S_Q}, 2
    s_lshl_b32 s{S_T0}, s{S_T0}, 16
    s_and_b32 s{S_T0+1}, s{S_Q}, 3
    s_lshl_b32 s{S_T0+1}, s{S_T0+1}, 9
    s_add_u32 s{S_T0}, s{S_T0}, s{S_T0+1}
    s_lshl_b32 s{S_T0+1}, s{S_LW}, 7
    s_add_u32 s{S_T0}, s{S_T0}, s{S_T0+1}
    s_lshl_b32 s{S_T0+1}, s{S_X}, 19
    s_add_u32 s{S_T0}, s{S_T0}, s{S_T0+1}
    s_add_u32 s{S_GB}, s{S_T0}, {WS_P}
    v_mov_b32 v6, {f2h(126.0)}
    v_mov_b32 v7, {f2h(-126.0)}
    """)
    flag_addr(a, WS_F3)
    wreg = OPT["fewreg"]
    def wloc(sidx, nbl):
        if wreg and sidx < min(FE_SPLIT, 12): return 128 + (sidx*2 + nbl) * 4
        return 64 + (sidx & 3) * 16 + 8 + 4*nbl
    if wreg:
        a("s_barrier")
        for sidx in range(min(FE_SPLIT, 12)):
            for nbl in range(2):
                r = wloc(sidx, nbl)
                a(f"ds_read_b128 v[{r}:{r+3}], v10 offset:{nbl*16384 + sidx*1024}")
            if sidx % 4 == 3: a("s_waitcnt lgkmcnt(0)")
    def rd(sidx):
        du, h = sidx >> 1, sidx & 1
        reg = 64 + (sidx & 3) * 16
        out = []
        if not (wreg and sidx < min(FE_SPLIT, 12)):
            out = [f"ds_read_b128 v[{reg+8+4*nbl}:{reg+11+4*nbl}], v10 offset:{nbl*16384 + sidx*1024}" for nbl in range(2)]
        out += [f"ds_read_b128 v[{reg+4*tb}:{reg+4*tb+3}], v{8+h} offset:{du*4096 + tb*2048}" for tb in range(2)]
        return out
    for ph in range(4):
        a("s_barrier")
        if ph == 0: stamp(a, 7)
        steps = list(range(4*ph, 4*ph+4))
        n = len(rd(steps[0]))
        for sidx in steps[:3]:
            for r in rd(sidx): a(r)
        for j, sidx in enumerate(steps):
            a(f"s_waitcnt lgkmcnt({[2*n, 2*n, n, 0][j]})")
            reg = 64 + (sidx & 3) * 16
            mf = []
            for tb in range(2):
                for nbl in range(2):
                    acc = 32 + (tb*2 + nbl) * 4
                    w = wloc(sidx, nbl)
                    mf.append(f"v_mfma_f32_16x16x32_bf16 v[{acc}:{acc+3}], v[{w}:{w+3}], v[{reg+4*tb}:{reg+4*tb+3}], v[{acc}:{acc+3}]")
            interleave(a, mf, rd(steps[3]) if j == 0 else [])
    a("s_barrier")
    stamp(a, 8)
    a("s_nop 7")
    a(f"s_mov_b32 s{S_T0}, {f2h(C2LOG2E)}")
    for r in range(16): a(f"v_mul_f32 v{32+r}, s{S_T0}, v{32+r}")
    l0 = lab("Lr")
    a(f"s_cmp_eq_u32 s{S_UNS}, 0\ns_cbranch_scc0 {l0}")
    for r in range(16): a(f"v_med3_f32 v{32+r}, v{32+r}, v7, v6")
    for r in range(16): a(f"v_exp_f32 v{32+r}, v{32+r}")
    a(f"{l0}:")
    st = []
    for tb in range(2):
        for nbl in range(2):
            acc = 32 + (tb*2 + nbl) * 4
            st.append(f"buffer_store_dwordx4 v[{acc}:{acc+3}], v{V_SO+tb}, {WSR}, s{S_GB} offen offset:{nbl*64} {{SC}}")
    local_stores(a, st)
    wave_flag(a)

FE_SPLIT = 12
def fe_l_wpre(a, half):
    s0, s1 = (0, FE_SPLIT) if half == 0 else (FE_SPLIT, 16)
    a(f"s_and_b32 s{S_T0}, s{S_Q}, 3\ns_lshl_b32 s{S_T0}, s{S_T0}, 17\ns_add_u32 s{S_T0}, s{S_T0}, {WS_WF}")
    a(f"s_lshl_b32 s{S_T0+1}, s{S_LW}, 15\ns_add_u32 s{S_T0}, s{S_T0}, s{S_T0+1}")
    a("v_lshlrev_b32 v5, 4, v0")
    n = 0
    for st in range(s0, s1):
        for nb in range(2):
            off = nb * 16384 + st * 1024
            a(f"s_add_u32 m0, s{S_T0+1}, {FE_W + off}")
            a(f"s_add_u32 s{S_T0+2}, s{S_T0}, {off}")
            a(f"buffer_load_dwordx4 v5, {WSR}, s{S_T0+2} offen {OPT['wold']} lds")
            n += 1
    return n

def fe_l(a, sch):
    a(f"s_lshr_b32 s{S_T0}, s{S_Q}, 3\ns_lshl_b32 s{S_T0}, s{S_T0}, 7\ns_lshl_b32 s{S_T0+1}, s{S_X}, 9\ns_add_u32 s{S_T0}, s{S_T0}, s{S_T0+1}\ns_add_u32 s{S_T0}, s{S_T0}, {WS_F2}")
    a(f"v_and_b32 v6, 31, v0\nv_lshlrev_b32 v6, 2, v6\nv_add_u32 v6, s{S_T0}, v6")
    a(f"v_lshrrev_b32 v2, 3, v0\ns_lshl_b32 s{S_T0}, s{S_LW}, 3\nv_add_u32 v2, s{S_T0}, v2\nv_and_b32 v3, 7, v0")
    swz_of(a, 2, 4, S_T0+2)
    a(f"v_xor_b32 v4, v4, v3\nv_lshlrev_b32 v4, 4, v4\nv_lshl_add_u32 v4, v2, 10, v4")
    if OPT["fewreg"]:
        a("s_waitcnt vmcnt(0) lgkmcnt(0)")
        a("s_barrier")
    poll(a, 6, 7)
    stamp(a, 7)
    a(f"s_lshr_b32 s{S_T0}, s{S_Q}, 2\ns_lshl_b32 s{S_T0}, s{S_T0}, 15\ns_lshl_b32 s{S_T0+1}, s{S_X}, 18\ns_add_u32 s{S_T0}, s{S_T0}, s{S_T0+1}\ns_add_u32 s{S_T0}, s{S_T0}, {WS_F}")
    a(f"s_lshl_b32 s{S_T0+1}, s{S_LW}, 10")
    a(f"s_mov_b32 s{S_T0+8}, s{S_T0}\ns_mov_b32 s{S_T0+9}, s{S_T0+1}")
    def fdma(d0, d1):
        for du in range(d0, d1):
            a(f"s_add_u32 m0, s{S_T0+9}, {FE_A + du*4096}")
            a(f"s_add_u32 s{S_T0+2}, s{S_T0+8}, {du*128}")
            a(f"buffer_load_dwordx4 v4, {WSR}, s{S_T0+2} offen sc1 lds")
    def wowarm():
        if not OPT["wowarm"]: return 0
        a(f"s_lshl_b32 s{S_T0}, s{S_Q}, 14\ns_lshl_b32 s{S_T0+1}, s{S_LW}, 12\ns_add_u32 s{S_T0}, s{S_T0}, s{S_T0+1}\ns_add_u32 s{S_T0}, s{S_T0}, {WS_WO}")
        a("v_lshlrev_b32 v5, 4, v0")
        for k in range(4): a(f"buffer_load_dwordx4 v[{V_DUMMY}:{V_DUMMY+3}], v5, {WSR}, s{S_T0} offen offset:{k*1024} {OPT['wold']}")
        return 4
    if FE_SPLIT == 16:
        fdma(0, 8)
        for ph in range(4):
            a(f"s_waitcnt vmcnt({6 - 2*ph}) lgkmcnt(0)")
            a("s_barrier")
        wowarm()
        a("s_barrier")
        return
    fdma(0, 4)
    a("s_waitcnt vmcnt(2) lgkmcnt(0)")
    a("s_barrier")
    fdma(4, 8)
    nw = fe_l_wpre(a, 1) if not OPT["stg"] else 0
    a(f"s_waitcnt vmcnt({4 + nw})")
    a("s_barrier")
    nwarm = wowarm()
    a(f"s_waitcnt vmcnt({2 + nw + nwarm})")
    a("s_barrier")
    a(f"s_waitcnt vmcnt({nwarm})")
    a("s_barrier")
    a("s_barrier")

J_ACT = 0
J_P   = 65536
J_Q   = 65536 + 16384
def joint_l(a):
    a(f"s_mov_b32 s{S_T0}, {WS_QE}\ns_cmp_eq_u32 s{S_UNS}, 0\ns_cselect_b32 s{S_T0}, s{S_T0}, {WS_QR}")
    a(f"s_lshl_b32 s{S_T0+1}, s{S_B}, 14\ns_add_u32 s{S_T0}, s{S_T0}, s{S_T0+1}")
    a(f"s_lshl_b32 s{S_T0+1}, s{S_LW}, 8\ns_add_u32 s{S_T0}, s{S_T0}, s{S_T0+1}")
    a(f"s_lshl_b32 s{S_T0+1}, s{S_LW}, 12")
    a("v_lshrrev_b32 v2, 4, v0\nv_and_b32 v3, 15, v0\nv_lshlrev_b32 v3, 4, v3\nv_lshl_add_u32 v4, v2, 10, v3")
    for j in range(4):
        a(f"s_add_u32 m0, s{S_T0+1}, {J_Q + j*1024}")
        a("s_nop 0")
        a(f"buffer_load_dwordx4 v4, {WSR}, s{S_T0} offen sc1 lds")
        a(f"s_add_u32 s{S_T0}, s{S_T0}, 4096")
    a(f"""
    v_lshrrev_b32 v2, 3, v0
    v_and_b32 v3, 7, v0
    v_and_b32 v5, 6, v2
    v_xor_b32 v3, v3, v5
    v_lshlrev_b32 v3, 4, v3
    v_lshl_add_u32 v5, v2, 11, v3
    s_lshr_b32 s{S_T0}, s{S_Q}, 2
    s_lshl_b32 s{S_T0}, s{S_T0}, 6
    s_lshl_b32 s{S_T0+2}, s{S_X}, 9
    s_add_u32 s{S_T0}, s{S_T0}, s{S_T0+2}
    s_add_u32 s{S_T0}, s{S_T0}, {WS_F3}
    v_and_b32 v6, 15, v0
    v_lshlrev_b32 v6, 2, v6
    v_add_u32 v9, s{S_T0}, v6
    s_waitcnt vmcnt(0)
    """)
    a(f"v_and_b32 v6, 7, v0\nv_lshlrev_b32 v6, 4, v6\ns_lshl_b32 s{S_T0}, s{S_LW}, 12\ns_add_u32 s{S_T0}, s{S_T0}, {J_Q}\nv_add_u32 v6, s{S_T0}, v6")
    for sidx in range(16):
        for hh in range(2):
            r = 128 + sidx*8 + hh*4
            a(f"ds_read_b128 v[{r}:{r+3}], v6 offset:{sidx*256 + hh*128}")
        if sidx % 4 == 3: a("s_waitcnt lgkmcnt(0)")
    poll(a, 9, 14)
    stamp(a, 9)
    a(f"""
    s_lshl_b32 s{S_T0}, s{S_X}, 19
    s_lshl_b32 s{S_T0+1}, s{S_Q}, 14
    s_add_u32 s{S_T0}, s{S_T0}, s{S_T0+1}
    s_add_u32 s{S_T0}, s{S_T0}, {WS_P}
    s_lshl_b32 s{S_T0+1}, s{S_LW}, 7
    s_add_u32 s{S_T0}, s{S_T0}, s{S_T0+1}
    s_lshl_b32 s{S_T0+1}, s{S_LW}, 10
    """)
    for k in range(4):
        a(f"s_add_u32 m0, s{S_T0+1}, {J_P + k*4096}")
        a("s_nop 0")
        a(f"buffer_load_dwordx4 v5, {WSR}, s{S_T0} offen sc1 lds")
        a(f"s_add_u32 s{S_T0}, s{S_T0}, 512")
    a(f"""
    v_lshrrev_b32 v2, 3, v0
    v_and_b32 v5, 6, v2
    s_lshl_b32 s{S_T0}, s{S_LW}, 1
    v_xor_b32 v5, s{S_T0}, v5
    v_lshlrev_b32 v5, 4, v5
    v_lshl_add_u32 v7, v2, 7, v5
    v_add_u32 v7, {J_P}, v7
    s_lshl_b32 s{S_T0}, s{S_LW}, 10
    v_lshlrev_b32 v8, 4, v0
    v_add_u32 v8, s{S_T0}, v8
    v_mov_b32 v10, 1.0
    v_mov_b32 v11, 1.0
    v_mov_b32 v12, -2.0
    v_mov_b32 v13, -2.0
    s_waitcnt vmcnt(0)
    s_barrier
    """)
    def prd(sidx):
        r = 16 + (sidx & 1) * 8
        return [f"ds_read_b128 v[{r}:{r+3}], v7 offset:{sidx*1024}", f"ds_read_b128 v[{r+4}:{r+7}], v7 offset:{sidx*1024 + 16}"]
    def body(safe):
        for r in prd(0): a(r)
        for sidx in range(16 if not OPT["notanh"] else 2):
            if sidx + 1 < 16:
                for r in prd(sidx+1): a(r)
            if sidx in (0, 2): a("s_waitcnt lgkmcnt(2)")
            elif sidx + 1 < 16: a("s_waitcnt lgkmcnt(3)")
            else: a("s_waitcnt lgkmcnt(1)")
            if sidx >= 4 and not OPT["nobar"]:
                a("s_barrier")
            p = 16 + (sidx & 1) * 8
            q = 128 + sidx * 8
            t = 32
            pk = OPT["pk"]
            if safe:
                if pk:
                    for e in range(0, 8, 2): a(f"v_pk_fma_f32 v[{t+e}:{t+e+1}], v[{p+e}:{p+e+1}], v[{q+e}:{q+e+1}], v[10:11]")
                else:
                    for e in range(8): a(f"v_fma_f32 v{t+e}, v{p+e}, v{q+e}, 1.0")
            else:
                for e in range(8): a(f"v_add_f32 v{t+e}, v{p+e}, v{q+e}")
                for e in range(8): a(f"v_exp_f32 v{t+e}, v{t+e}")
                for e in range(8): a(f"v_add_f32 v{t+e}, 1.0, v{t+e}")
            for e in range(8): a(f"v_rcp_f32 v{t+e}, v{t+e}")
            if pk:
                for e in range(0, 8, 2): a(f"v_pk_fma_f32 v[{t+e}:{t+e+1}], v[{t+e}:{t+e+1}], v[12:13], v[10:11]")
            else:
                for e in range(8): a(f"v_fma_f32 v{t+e}, v{t+e}, -2.0, 1.0")
            w = 40 + (sidx & 1) * 4
            for e in range(0, 8, 2): a(f"v_cvt_pk_bf16_f32 v{w+e//2}, v{t+e}, v{t+e+1}")
            a(f"ds_write_b128 v8, v[{w}:{w+3}] offset:{J_ACT + sidx*4096}")
            if sidx == 1:
                a("s_waitcnt lgkmcnt(0)")
                a("s_barrier")
        a("s_waitcnt lgkmcnt(1)")
        if not OPT["nobar"]: a("s_barrier")
        a("s_waitcnt lgkmcnt(0)")
        if not OPT["nobar"]: a("s_barrier")
    l0, l1 = lab("Lu"), lab("Lu")
    if OPT["lprio"]: a(f"s_setprio {OPT['lprio']}")
    a(f"s_cmp_eq_u32 s{S_UNS}, 0\ns_cbranch_scc0 {l0}")
    body(True)
    a(f"s_branch {l1}\n{l0}:")
    body(False)
    a(f"{l1}:")

J_O = 98304
NEPI = 4
def interleave2(a, mf, others):
    n = len(others); k = 0
    for i, m in enumerate(mf):
        a(m)
        take = -(-(n - k) // (len(mf) - i))
        for _ in range(take):
            a(others[k]); k += 1

def joint_store(a, p, allwaves):
    nrow = 8 if allwaves else 16
    wv = S_WAVE if allwaves else S_LW
    sh = 3 if allwaves else 4
    a(f"""
    v_lshrrev_b32 v2, 5, v0
    v_and_b32 v3, 31, v0
    s_lshl_b32 s{S_T0}, s{wv}, {sh + 9}
    s_add_u32 s{S_T0}, s{S_T0}, {J_O + p*32768}
    v_lshl_add_u32 v4, v0, 4, s{S_T0}
    v_lshrrev_b32 v5, 3, v3
    v_lshlrev_b32 v5, 8, v5
    v_and_b32 v6, 7, v3
    v_lshl_add_u32 v5, v6, 4, v5
    v_lshl_add_u32 v5, v2, 10, v5
    s_mul_i32 s{S_T0}, s{S_B}, 1000
    s_mul_i32 s{S_T0+1}, s{S_QQ}, 250
    s_add_u32 s{S_T0}, s{S_T0}, s{S_T0+1}
    s_lshl_b32 s{S_T0+1}, s{S_Q}, 3
    s_add_u32 s{S_T0}, s{S_T0}, s{S_T0+1}
    s_lshl_b32 s{S_T0}, s{S_T0}, 13
    s_lshl_b32 s{S_T0+2}, s{wv}, {sh + 10}
    s_add_u32 s{S_T0}, s{S_T0}, s{S_T0+2}
    s_add_u32 s{S_T0}, s{S_T0}, {p*128}
    s_sub_u32 s{S_T0+3}, 250, s{S_T0+1}
    s_lshl_b32 s{S_T0+3}, s{S_T0+3}, 3
    s_lshl_b32 s{S_T0+2}, s{wv}, {sh}
    s_cmp_gt_u32 s{S_T0+3}, s{S_T0+2}
    s_cselect_b32 s{S_T0+2}, 0, {hex(OOB)}
    v_add_u32 v5, s{S_T0}, v5
    v_or_b32 v5, s{S_T0+2}, v5
    """)
    return nrow // 2

def joint_store_issue(a, ninstr, pace=None):
    for k in range(ninstr): a(f"ds_read_b128 v[{16+4*k}:{19+4*k}], v4 offset:{k*1024}")
    for k in range(ninstr):
        a(f"s_waitcnt lgkmcnt({ninstr-1-k})")
        if pace is not None and k > pace: a(f"s_waitcnt vmcnt({pace})")
        a(f"s_mov_b32 s{S_T0}, {k*2048}")
        a(f"buffer_store_dwordx4 v[{16+4*k}:{19+4*k}], v5, s[{SRD_OUT}:{SRD_OUT+3}], s{S_T0} offen {OPT['scout']}")

def joint_c(a):
    ACC = 128; WR = 48; AF = 12; NF = 20; TMP = 44
    def acc(rb, cb): return ACC + (cb*2 + rb) * 16
    a(f"s_lshl_b32 s{S_T0+4}, s{S_LW}, 17\ns_add_u32 s{S_T0+4}, s{S_T0+4}, {WS_WO}")
    a("v_lshlrev_b32 v4, 4, v0")
    def wreg(f): return WR + (f % NF) * 4
    def wld(f):
        out = [f"buffer_load_dwordx4 v[{wreg(f)}:{wreg(f)+3}], v4, {WSR}, s{S_T0+4} offen offset:{(f%4)*1024} {OPT['wold']}"]
        if f % 4 == 3: out.append(f"s_add_u32 s{S_T0+4}, s{S_T0+4}, 4096")
        return out
    vm = []
    issued = 0
    while issued < int(OPT["wo_pre"]):
        for r in wld(issued): a(r)
        vm.append(issued); issued += 1
    a("v_and_b32 v2, 31, v0\nv_lshrrev_b32 v3, 5, v0\nv_lshlrev_b32 v5, 10, v3\nv_lshl_add_u32 v5, v2, 4, v5")
    a(f"s_lshl_b32 s{S_T0}, s{S_LW}, 7\ns_add_u32 s{S_T0}, s{S_T0}, {J_O}\nv_lshlrev_b32 v7, 11, v3\nv_lshl_add_u32 v7, v2, 2, v7\nv_add_u32 v7, s{S_T0}, v7")
    a("s_barrier")
    while issued < NF:
        for r in wld(issued): a(r)
        vm.append(issued); issued += 1
    a("s_barrier")
    stamp(a, 10)
    def ard(n):
        sidx = n & 15
        r = AF + (n & 1) * 16
        return [f"ds_read_b128 v[{r+4*(2*h+rb)}:{r+4*(2*h+rb)+3}], v5 offset:{J_ACT + sidx*4096 + h*2048 + rb*512}" for h in range(2) for rb in range(2)]
    def epi(half):
        out = []
        for rb in range(2):
            for r in range(16):
                tmp = TMP + ((rb*16 + r) & 3)
                out.append(f"v_cvt_pk_bf16_f32 v{tmp}, v{acc(rb, 2*half) + r}, v{acc(rb, 2*half+1) + r}")
                out.append(f"ds_write_b32 v7, v{tmp} offset:{half*32768 + (32*rb + (r&3) + 8*(r>>2))*512}")
        return out
    for r in ard(0): a(r)
    pend = []
    consumed = 0
    for n in range(32):
        p, sidx = n >> 4, n & 15
        cbs = [0, 1, 2] if p == 0 else [3]
        nfr = 2 * len(cbs)
        first = consumed
        if OPT["steps"]: a("s_memtime s[74:75]")
        need = first + nfr - 1
        last = vm.index(need)
        if OPT["steps"]:
            a("s_waitcnt lgkmcnt(0)\nv_writelane_b32 v1, s74, %d\ns_memtime s[74:75]" % (2*n))
        a(f"s_waitcnt vmcnt({len(vm) - 1 - last}) lgkmcnt(0)")
        if OPT["steps"]: a("v_writelane_b32 v1, s74, %d" % (2*n+1))
        if p == 0 and 2 <= sidx + 1 <= 15 and not OPT["nobar"]:
            a("s_barrier")
        if n == 16 + NEPI:
            a("s_barrier")
        others = ard(n + 1) if n + 1 < 32 else []
        lim = min(128, first + NF)
        ld = []
        while issued < lim:
            ld += wld(issued); vm.append(issued); issued += 1
        others = others + ld
        if p == 1 and pend:
            k = min(len(pend), -(-64 // NEPI))
            others += pend[:k]; pend = pend[k:]
        mf = []
        af = AF + (n & 1) * 16
        for h in range(2):
            for rb in range(2):
                for ci, cb in enumerate(cbs):
                    d = acc(rb, cb)
                    w = wreg(first + h * len(cbs) + ci)
                    c = "0" if (sidx == 0 and h == 0) else f"v[{d}:{d+15}]"
                    mf.append(f"v_mfma_f32_32x32x16_bf16 v[{d}:{d+15}], v[{af+4*(2*h+rb)}:{af+4*(2*h+rb)+3}], v[{w}:{w+3}], {c}")
        interleave2(a, mf, others)
        consumed += nfr
        if n == 15:
            pend = epi(0)
    assert not pend and consumed == 128
    stamp(a, 11)
    a("s_nop 7\ns_nop 7")
    for o in epi(1): a(o)
    a("s_waitcnt lgkmcnt(0)")
    if OPT["steps"]:
        a(f"s_lshl_b32 s{S_T0}, s{S_WG}, 10\ns_lshl_b32 s{S_T0+1}, s{S_LW}, 8\ns_add_u32 s{S_T0}, s{S_T0}, s{S_T0+1}\ns_add_u32 s{S_T0}, s{S_T0}, {WS_STAMP + 0x10000}")
        a(f"v_lshlrev_b32 v2, 2, v0\nbuffer_store_dword v1, v2, {WSR}, s{S_T0} offen")
    n = joint_store(a, 1, True)
    a("s_barrier")
    joint_store_issue(a, n)

def relayout_loads(a, R=32):
    U = S_T0 + 8
    a(f"s_mov_b32 s{U}, s{S_WG}")
    a(f"s_lshr_b32 s{U+1}, s{U}, 2\ns_and_b32 s{U+1}, s{U+1}, 15\ns_and_b32 s{U+2}, s{U}, 3")
    a(f"s_cmp_ge_u32 s{U}, 64")
    a(f"s_cselect_b32 s{SRD_T}, s{S_PWF}, s{S_PWO}")
    a(f"s_cselect_b32 s{SRD_T+1}, s{S_PWF+1}, s{S_PWO+1}")
    a(f"s_and_b32 s{SRD_T+1}, s{SRD_T+1}, 0xffff")
    a(f"s_mov_b32 s{SRD_T+2}, 524288\ns_mov_b32 s{SRD_T+3}, 0x20000")
    a(f"""
    v_and_b32 v2, 15, v0
    v_lshrrev_b32 v3, 4, v0
    v_lshlrev_b32 v4, 13, v3
    v_lshl_add_u32 v4, v2, 4, v4
    s_lshl_b32 s{U+3}, s{U+1}, 15
    s_lshl_b32 s{U+4}, s{U+2}, 8
    s_add_u32 s{U+3}, s{U+3}, s{U+4}
    v_add_u32 v4, s{U+3}, v4
    v_add_u32 v5, 4096, v4
    """)
    for e in range(8):
        a(f"buffer_load_dwordx4 v[{R+4*e}:{R+3+4*e}], v{4 + (e>>2)}, s[{SRD_T}:{SRD_T+3}], 0 offen offset:{(e&3)*1024}")

RL_LDS = 154624
def relayout_finish(a, nyounger, R=32):
    U = S_T0 + 8
    a(f"s_mov_b32 s{U}, s{S_WG}")
    a(f"s_lshr_b32 s{U+1}, s{U}, 2\ns_and_b32 s{U+1}, s{U+1}, 15\ns_and_b32 s{U+2}, s{U}, 3")
    a("v_and_b32 v2, 15, v0\nv_lshrrev_b32 v3, 4, v0")
    l0, l1 = lab("Lw"), lab("Lw")
    a(f"s_cmp_ge_u32 s{U}, 64\ns_cbranch_scc1 {l0}")
    a(f"""
    v_and_b32 v6, 7, v2
    v_lshlrev_b32 v5, 6, v6
    v_and_b32 v6, 1, v3
    v_lshl_add_u32 v5, v6, 9, v5
    v_lshrrev_b32 v6, 1, v3
    v_lshl_add_u32 v5, v6, 12, v5
    v_lshrrev_b32 v6, 3, v2
    v_lshl_add_u32 v5, v6, 11, v5
    v_add_u32 v5, {RL_LDS}, v5
    """)
    for b in range(8): a(f"v_add_u32 v{24+b}, {(b&1)*1024 + (b>>1)*16}, v5")
    a(f"s_lshl_b32 s{U+3}, s{U+2}, 17\ns_add_u32 s{U+3}, s{U+3}, {WS_WO}")
    a(f"s_mul_i32 s{U+4}, s{U+1}, 6144\ns_add_u32 s{U+4}, s{U+4}, s{U+3}")
    a(f"s_lshl_b32 s{U+5}, s{U+1}, 11\ns_add_u32 s{U+5}, s{U+5}, s{U+3}\ns_add_u32 s{U+5}, s{U+5}, 98304")
    a(f"s_mov_b32 s{U+6}, 0")
    a(f"s_branch {l1}\n{l0}:")
    a(f"""
    v_lshrrev_b32 v5, 1, v2
    v_lshlrev_b32 v5, 10, v5
    v_and_b32 v6, 1, v2
    v_lshl_add_u32 v5, v6, 7, v5
    v_lshl_add_u32 v5, v3, 8, v5
    v_add_u32 v5, {RL_LDS}, v5
    """)
    for b in range(8): a(f"v_add_u32 v{24+b}, {b*16}, v5")
    a(f"s_lshl_b32 s{U+4}, s{U+2}, 17\ns_lshl_b32 s{U+5}, s{U+1}, 10\ns_add_u32 s{U+4}, s{U+4}, s{U+5}\ns_add_u32 s{U+4}, s{U+4}, {WS_WF}")
    a(f"s_mov_b32 s{U+6}, 1")
    a(f"{l1}:")
    a(f"s_mov_b32 s{U+1}, 0x05040100\ns_mov_b32 s{U+2}, 0x07060302")
    a(f"s_waitcnt vmcnt({nyounger})")
    for b in range(8):
        d = b >> 1
        sel = U + 1 + (b & 1)
        for m in range(4):
            lo, hi = R + 4*(2*m) + d, R + 4*(2*m+1) + d
            a(f"v_perm_b32 v{64+4*b+m}, v{hi}, v{lo}, s{sel}")
        a(f"ds_write_b128 v{24+b}, v[{64+4*b}:{67+4*b}]")
    a(f"v_lshlrev_b32 v2, 4, v0\nv_add_u32 v3, {RL_LDS}, v2\ns_waitcnt lgkmcnt(0)")
    for f in range(8): a(f"ds_read_b128 v[{64+4*f}:{67+4*f}], v3 offset:{f*1024}")
    l2, l3 = lab("Lw"), lab("Lw")
    a(f"s_cmp_eq_u32 s{U+6}, 0\ns_cbranch_scc0 {l2}")
    for f in range(8):
        h, cb = f >> 2, f & 3
        if cb < 3: a(f"s_add_u32 s{U+1}, s{U+4}, {(3*h + cb)*1024}")
        else: a(f"s_add_u32 s{U+1}, s{U+5}, {h*1024}")
        a(f"s_waitcnt lgkmcnt({7-f})")
        a(f"buffer_store_dwordx4 v[{64+4*f}:{67+4*f}], v2, {WSR}, s{U+1} offen sc1")
    a(f"s_branch {l3}\n{l2}:")
    for f in range(8):
        a(f"s_add_u32 s{U+1}, s{U+4}, {f*16384}")
        a(f"s_waitcnt lgkmcnt({7-f})")
        a(f"buffer_store_dwordx4 v[{64+4*f}:{67+4*f}], v2, {WSR}, s{U+1} offen sc1")
    a(f"{l3}:")

def relayout_flag(a):
    U = S_T0 + 8
    a(f"s_lshl_b32 s{U}, s{S_WG}, 2\ns_add_u32 s{U}, s{U}, {WS_RL}")
    a("s_waitcnt vmcnt(0)")
    flag_store(a, U, fast_variant=False)

GE_LDS = 17408
def ge_loads(a):
    U = S_T0 + 8
    a(f"s_sub_u32 s{U}, s{S_WG}, 224")
    mk_srd(a, SRD_T, S_PWG, 524288)
    a(f"""
    v_lshrrev_b32 v2, 1, v0
    v_and_b32 v3, 1, v0
    v_lshlrev_b32 v3, 4, v3
    v_lshl_add_u32 v2, v2, 10, v3
    s_lshl_b32 s{U+1}, s{U}, 5
    v_add_u32 v2, s{U+1}, v2
    s_mov_b32 s{U+2}, 0
    """)
    for k in range(16):
        a(f"s_mov_b32 m0, {GE_LDS + k*1024}")
        a(f"s_nop 0")
        a(f"buffer_load_dwordx4 v2, s[{SRD_T}:{SRD_T+3}], s{U+2} offen lds")
        a(f"s_add_u32 s{U+2}, s{U+2}, 32768")
    mk_srd(a, SRD_T, S_PG, 16384)
    a(f"""
    v_and_b32 v4, 15, v0
    v_lshrrev_b32 v5, 4, v0
    v_lshlrev_b32 v6, 10, v4
    v_lshl_add_u32 v6, v5, 4, v6
    """)
    for sidx in range(16):
        a(f"buffer_load_dwordx4 v[{64+4*sidx}:{67+4*sidx}], v6, s[{SRD_T}:{SRD_T+3}], 0 offen offset:{sidx*64}")

GE_R = 100
def ge_loads_c(a):
    U = S_T0 + 8
    a(f"s_sub_u32 s{U}, s{S_WG}, 224")
    mk_srd(a, SRD_T, S_PWG, 524288)
    a(f"""
    v_lshrrev_b32 v2, 1, v0
    v_and_b32 v3, 1, v0
    v_lshlrev_b32 v3, 4, v3
    v_lshl_add_u32 v2, v2, 10, v3
    s_lshl_b32 s{U+1}, s{U}, 5
    v_add_u32 v2, s{U+1}, v2
    s_mov_b32 s{U+2}, 0
    """)
    for k in range(16):
        a(f"buffer_load_dwordx4 v[{GE_R+4*k}:{GE_R+3+4*k}], v2, s[{SRD_T}:{SRD_T+3}], s{U+2} offen")
        a(f"s_add_u32 s{U+2}, s{U+2}, 32768")

def ge_stage_l(a, nyounger):
    a(f"v_lshlrev_b32 v2, 4, v0\nv_add_u32 v2, {GE_LDS}, v2")
    a(f"s_waitcnt vmcnt({nyounger})")
    for k in range(16):
        a(f"ds_write_b128 v2, v[{GE_R+4*k}:{GE_R+3+4*k}] offset:{k*1024}")
    a("s_waitcnt lgkmcnt(0)")
    a(f"v_mov_b32 v2, {INBOX + 48}\nv_mov_b32 v3, 1\nds_write_b32 v2, v3\ns_waitcnt lgkmcnt(0)")

G_R = 172
def ge_gloads_c(a):
    mk_srd(a, SRD_T, S_PG, 16384)
    a("v_lshrrev_b32 v4, 2, v0\nv_and_b32 v5, 3, v0\nv_lshlrev_b32 v6, 10, v4\nv_lshl_add_u32 v6, v5, 4, v6")
    for sidx in range(16):
        a(f"buffer_load_dwordx4 v[{G_R+4*sidx}:{G_R+3+4*sidx}], v6, s[{SRD_T}:{SRD_T+3}], 0 offen offset:{sidx*64}")

def ge_finish_c(a):
    a("v_and_b32 v4, 15, v0\nv_lshrrev_b32 v5, 4, v0\nv_lshl_add_u32 v4, v4, 2, v5\nv_lshlrev_b32 v4, 2, v4")
    for r in range(64):
        a(f"ds_bpermute_b32 v{G_R+r}, v4, v{G_R+r}")
        if r % 8 == 7: a("s_waitcnt lgkmcnt(0)")
    l0, l1 = lab("Lg"), lab("Lg")
    a(f"v_mov_b32 v2, {INBOX + 48}\ns_mov_b32 s{S_T0+16}, 0\n{l0}:\nds_read_b32 v3, v2")
    a(f"s_add_u32 s{S_T0+16}, s{S_T0+16}, 1\ns_cmp_ge_u32 s{S_T0+16}, {SPIN_MAX*8}\ns_cbranch_scc1 {l1}")
    a(f"s_waitcnt lgkmcnt(0)\nv_cmp_eq_u32 vcc, 0, v3\ns_cbranch_vccnz {l0}\n{l1}:\ns_waitcnt lgkmcnt(0)")
    ge_finish(a, G_R, True)

def ge_finish(a, GR=64, defer=False):
    U = S_T0 + 8
    TR = 128 if GR == 64 else 64
    a(f"s_sub_u32 s{U}, s{S_WG}, 224")
    a(f"""
    v_and_b32 v4, 15, v0
    v_lshrrev_b32 v5, 4, v0
    v_lshrrev_b32 v7, 2, v4
    v_lshl_add_u32 v7, v5, 3, v7
    v_lshlrev_b32 v7, 5, v7
    v_and_b32 v6, 3, v4
    v_lshl_add_u32 v7, v6, 3, v7
    v_add_u32 v7, {GE_LDS}, v7
    v_mov_b32 v32, 0
    v_mov_b32 v33, 0
    v_mov_b32 v34, 0
    v_mov_b32 v35, 0
    s_waitcnt vmcnt(0)
    """)
    for sidx in range(16):
        r = TR + 4*sidx
        a(f"ds_read_b64_tr_b16 v[{r}:{r+1}], v7 offset:{sidx*1024}")
        a(f"ds_read_b64_tr_b16 v[{r+2}:{r+3}], v7 offset:{sidx*1024 + 128}")
        if sidx % 4 == 3: a("s_waitcnt lgkmcnt(0)")
    for sidx in range(16):
        r = TR + 4*sidx
        a(f"v_mfma_f32_16x16x32_bf16 v[32:35], v[{r}:{r+3}], v[{GR+4*sidx}:{GR+3+4*sidx}], v[32:35]")
    a("s_nop 7\ns_nop 7")
    a(f"s_mov_b32 s{U+1}, {f2h(C2LOG2E)}")
    for r in range(4): a(f"v_mul_f32 v{32+r}, s{U+1}, v{32+r}")
    a(f"v_max3_f32 v40, abs(v32), abs(v33), abs(v34)\nv_max_f32 v40, abs(v35), v40")
    a(f"v_mov_b32 v42, {f2h(96.0)}")
    a(f"v_cmp_nle_f32 vcc, v40, v42")
    for r in range(4): a(f"v_exp_f32 v{36+r}, v{32+r}")
    a("s_nop 1")
    a(f"s_cmp_lg_u64 vcc, 0\ns_cselect_b32 s{U+3}, 1, 0")
    a(f"""
    v_lshrrev_b32 v9, 3, v4
    v_lshlrev_b32 v9, 14, v9
    v_and_b32 v10, 7, v4
    v_lshl_add_u32 v9, v10, 4, v9
    v_lshl_add_u32 v9, v5, 7, v9
    s_lshl_b32 s{U+1}, s{U}, 9
    v_add_u32 v9, s{U+1}, v9
    v_add_u32 v10, {WS_QR}, v9
    v_add_u32 v9, {WS_QE}, v9
    buffer_store_dwordx4 v[32:35], v10, {WSR}, 0 offen sc1
    buffer_store_dwordx4 v[36:39], v9, {WSR}, 0 offen sc1
    """)
    if defer:
        a(f"s_lshl_b32 s{S_SIDEA}, s{U}, 3\ns_add_u32 s{S_SIDEA}, s{S_SIDEA}, {WS_GE}\ns_mov_b32 s{S_SIDEV}, s{U+3}\ns_mov_b32 s{S_SIDEK}, 2")
        return
    a(f"""
    s_lshl_b32 s{U+1}, s{U}, 3
    s_add_u32 s{U+1}, s{U+1}, {WS_GE}
    v_mov_b32 v12, s{U+1}
    v_mov_b32 v10, s{S_TAG}
    v_mov_b32 v11, s{U+3}
    s_waitcnt vmcnt(0)
    s_mov_b64 s[{S_T0+14}:{S_T0+15}], exec
    s_mov_b64 exec, 1
    buffer_store_dwordx2 v[10:11], v12, {WSR}, 0 offen sc1
    s_mov_b64 exec, s[{S_T0+14}:{S_T0+15}]
    """)

S_SIDEA, S_SIDEV, S_SIDEK = 5, 6, 7
def side_flag_deferred(a):
    l0, l1 = lab("Ld"), lab("Ld")
    a(f"s_cmp_eq_u32 s{S_SIDEK}, 0\ns_cbranch_scc1 {l0}")
    a(f"v_mov_b32 v22, s{S_TAG}\nv_mov_b32 v23, s{S_SIDEV}\nv_mov_b32 v24, s{S_SIDEA}")
    a("s_waitcnt vmcnt(0)")
    a(f"s_mov_b64 s[{S_T0+14}:{S_T0+15}], exec\ns_mov_b64 exec, 1")
    a(f"s_cmp_eq_u32 s{S_SIDEK}, 1\ns_cbranch_scc1 {l1}")
    a(f"buffer_store_dwordx2 v[22:23], v24, {WSR}, 0 offen sc1")
    a(f"s_branch {l1}_e\n{l1}:")
    a(f"buffer_store_dword v22, v24, {WSR}, 0 offen sc1")
    a(f"{l1}_e:")
    a(f"s_mov_b64 exec, s[{S_T0+14}:{S_T0+15}]\ns_mov_b32 s{S_SIDEK}, 0")
    a(f"{l0}:")

def l_setup_w(a):
    a(f"""
    v_lshrrev_b32 v4, 3, v0
    v_lshrrev_b32 v5, 1, v4
    v_and_b32 v5, 1, v5
    s_and_b32 s{S_T0}, s{S_LW}, 1
    s_lshl_b32 s{S_T0}, s{S_T0}, 1
    v_or_b32 v5, s{S_T0}, v5
    v_lshlrev_b32 v5, 1, v5
    v_and_b32 v6, 7, v0
    v_xor_b32 v6, v6, v5
    v_lshlrev_b32 v6, 4, v6
    s_lshl_b32 s{S_T0}, s{S_LW}, 3
    v_add_u32 v4, s{S_T0}, v4
    v_lshl_add_u32 v{V_LWV}, v4, 10, v6
    """)

def l_setup_a(a, c, row_base_sgpr, lo_valid, hi_valid, issue=None):
    na = (c.nA + 3) // 4
    a(f"v_lshrrev_b32 v2, 3, v0\nv_and_b32 v3, 7, v0")
    a(f"s_lshl_b32 s{S_T0}, s{S_LW}, 3\ns_mov_b32 s{S_T0+1}, {c.MAGIC}\ns_mov_b32 s{S_T0+2}, {hex(SWZ_TBL)}")
    a(f"v_mov_b32 v7, {hex(OOB)}\nv_add_u32 v4, s{S_T0}, v2")
    for k in range(na):
        a(f"""
        v_mul_u32_u24 v5, s{S_T0+1}, v4
        v_lshrrev_b32 v5, 16, v5
        v_mul_u32_u24 v6, {c.RS}, v5
        v_sub_u32 v6, v4, v6
        v_and_b32 v20, 3, v5
        v_lshl_add_u32 v20, v6, 2, v20
        v_lshrrev_b32 v21, 2, v5
        v_lshl_add_u32 v20, v20, 1, v21
        v_add_u32 v20, s{row_base_sgpr}, v20
        v_lshlrev_b32 v21, 1, v6
        v_and_b32 v21, 28, v21
        v_lshrrev_b32 v21, v21, s{S_T0+2}
        v_and_b32 v21, 7, v21
        v_xor_b32 v21, v21, v3
        v_lshlrev_b32 v21, 4, v21
        v_lshl_add_u32 v21, v20, 10, v21
        v_subrev_u32 v22, {lo_valid}, v20
        v_cmp_gt_u32 vcc, {hi_valid}, v22
        v_cndmask_b32 v21, v7, v21, vcc
        """) if False else None
        a(f"""
        v_mul_u32_u24 v5, s{S_T0+1}, v4
        v_lshrrev_b32 v5, 16, v5
        v_mul_u32_u24 v6, {c.RS}, v5
        v_sub_u32 v6, v4, v6
        v_and_b32 v20, 3, v5
        v_lshl_add_u32 v20, v6, 2, v20
        v_lshrrev_b32 v21, 2, v5
        v_lshl_add_u32 v20, v20, 1, v21
        v_add_u32 v20, s{row_base_sgpr}, v20
        v_subrev_u32 v22, {lo_valid}, v20
        v_cmp_gt_u32 vcc, {hi_valid}, v22
        v_lshlrev_b32 v21, 1, v6
        v_and_b32 v21, 28, v21
        v_lshrrev_b32 v21, v21, s{S_T0+2}
        v_and_b32 v21, 7, v21
        v_xor_b32 v21, v21, v3
        v_lshlrev_b32 v21, 4, v21
        v_lshl_add_u32 v21, v20, 10, v21
        v_cndmask_b32 v{V_LA+k}, v7, v21, vcc
        """)
        if 8 * (4*k + 3) + 7 >= 8 * c.RS:
            a(f"v_cmp_gt_u32 vcc, {8*c.RS}, v4\ns_nop 1\nv_cndmask_b32 v{V_LA+k}, v7, v{V_LA+k}, vcc")
        if issue is not None: issue(k)
        if k + 1 < na: a("v_add_u32 v4, 32, v4")

S_PA, S_PWX = 3, 4
def l_issue_A(a, c, srdA, pol, idx, part=None):
    na = (c.nA + 3) // 4
    ks = range(na) if part is None else (range(0, 5) if part == 0 else range(5, na))
    a(f"s_xor_b32 s{S_OFA}, s{S_PA}, {(idx if not OPT['hot'] else 0)*128}")
    a(f"s_lshl_b32 s{S_T0}, s{S_LW}, 10\ns_add_u32 s{S_T0}, s{S_T0}, s{S_LSA}")
    for k in ks:
        extra = (4 * k + 3 >= c.nA)
        if extra:
            l0 = lab("Lx")
            a(f"s_cmp_lt_u32 s{S_LW}, {c.nA - 4 * k}\ns_cbranch_scc0 {l0}")
        a(f"s_add_u32 m0, s{S_T0}, {k*4096}")
        a("s_nop 0")
        a(f"buffer_load_dwordx4 v{V_LA+k}, s[{srdA}:{srdA+3}], s{S_OFA} offen {pol} lds")
        if extra: a(f"{l0}:")
    if part == 0: return
    step = c.AB if c.idx == 1 else 2 * c.AB
    a(f"s_add_u32 s{S_LSA}, s{S_LSA}, {step}")
    a(f"s_cmp_ge_u32 s{S_LSA}, {c.RA * c.AB}")
    a(f"s_cselect_b32 s{S_T0}, {c.RA * c.AB}, 0")
    a(f"s_sub_u32 s{S_LSA}, s{S_LSA}, s{S_T0}")

def l_issue_W(a, c, srdW, idx):
    a(f"s_lshl_b32 s{S_T0}, s{S_LW}, 10\ns_add_u32 s{S_T0}, s{S_T0}, s{S_LSW}\ns_xor_b32 s{S_T0+1}, s{S_PWX}, {(idx if not OPT['hot'] else idx & 1)*32768}")
    for tap in range(5):
        a(f"s_add_u32 m0, s{S_T0}, {c.WOFF + tap*4096}")
        if tap: a(f"s_add_u32 s{S_T0+1}, s{S_T0+1}, 524288")
        else: a("s_nop 0")
        a(f"buffer_load_dwordx4 v{V_LWV}, s[{srdW}:{srdW+3}], s{S_T0+1} offen lds")
    a(f"s_add_u32 s{S_LSW}, s{S_LSW}, {c.WB}")
    a(f"s_cmp_ge_u32 s{S_LSW}, {c.RW * c.WB}")
    a(f"s_cselect_b32 s{S_LSW}, 0, s{S_LSW}")

S_TCH = 73
SRD_H2 = SRD_T
def w_touch(a, ptr, unit, ncls):
    if not OPT["wtouch"] or unit >= 16: return
    mode = OPT["wtouch"]
    a(f"s_lshl_b32 s{S_TCH}, s{S_Q}, 10\ns_add_u32 s{S_TCH}, s{S_TCH}, {unit*32768}")
    if mode == "c3":
        a(f"s_lshl_b32 s{S_T0+2}, s{S_LW}, 19\ns_add_u32 s{S_TCH}, s{S_TCH}, s{S_T0+2}\ns_add_u32 s{S_TCH}, s{S_TCH}, 384")
        a(f"s_load_dword s76, s[{ptr}:{ptr+1}], s{S_TCH}")
        l0 = lab("Lt")
        a(f"s_cmp_eq_u32 s{S_LW}, 0\ns_cbranch_scc0 {l0}")
        a(f"s_add_u32 s{S_TCH}, s{S_TCH}, {4*524288}")
        a(f"s_load_dword s76, s[{ptr}:{ptr+1}], s{S_TCH}")
        a(f"{l0}:")
    else:
        ntap = int(mode)
        a(f"s_lshl_b32 s{S_T0+2}, s{S_LW}, 8\ns_add_u32 s{S_TCH}, s{S_TCH}, s{S_T0+2}")
        for tap in range(ntap):
            a(f"s_load_dword s76, s[{ptr}:{ptr+1}], s{S_TCH}")
            a(f"s_add_u32 s{S_T0+2}, s{S_TCH}, 128")
            a(f"s_load_dword s76, s[{ptr}:{ptr+1}], s{S_T0+2}")
            if tap + 1 < ntap: a(f"s_add_u32 s{S_TCH}, s{S_TCH}, 524288")

V_STG = 100
def stage_W2_loads(a, c, srd, nunit):
    for u in range(nunit):
        a(f"s_xor_b32 s{S_T0+1}, s{S_PWX}, {u*32768}")
        for tap in range(5):
            r = V_STG + (u*5 + tap) * 4
            if tap: a(f"s_add_u32 s{S_T0+1}, s{S_T0+1}, 524288")
            a(f"buffer_load_dwordx4 v[{r}:{r+3}], v{V_LWV}, s[{srd}:{srd+3}], s{S_T0+1} offen")
def stage_W2_write(a, c, nunit):
    a(f"s_lshl_b32 s{S_T0}, s{S_LW}, 10\nv_lshl_add_u32 v2, v0, 4, s{S_T0}")
    for u in range(nunit):
        a(f"v_add_u32 v3, {c.WOFF + u*c.WB}, v2")
        for tap in range(5):
            r = V_STG + (u*5 + tap) * 4
            a(f"ds_write_b128 v3, v[{r}:{r+3}] offset:{tap*4096}")
def stage_WF_loads(a, k0, k1):
    a(f"s_and_b32 s{S_T0}, s{S_Q}, 3\ns_lshl_b32 s{S_T0}, s{S_T0}, 17\ns_add_u32 s{S_T0}, s{S_T0}, {WS_WF}")
    a(f"s_lshl_b32 s{S_T0+1}, s{S_LW}, 15\ns_add_u32 s{S_T0}, s{S_T0}, s{S_T0+1}\nv_lshlrev_b32 v5, 4, v0")
    for k in range(k0, k1):
        r = V_STG + 4*k
        if k % 4 == 0 or k == k0: a(f"s_add_u32 s{S_T0+2}, s{S_T0}, {(k//4)*4096}")
        a(f"buffer_load_dwordx4 v[{r}:{r+3}], v5, {WSR}, s{S_T0+2} offen offset:{(k%4)*1024} {OPT['wold']}")
def stage_WF_write(a):
    a(f"s_lshl_b32 s{S_T0}, s{S_LW}, 15\nv_lshl_add_u32 v2, v0, 4, s{S_T0}")
    for k in range(32):
        r = V_STG + 4*k
        a(f"ds_write_b128 v2, v[{r}:{r+3}] offset:{FE_W + k*1024}")

V_TCH = 19
def vtouch8(a, srd, u0, vtmp=2):
    if not OPT["vtouch"]: return
    a(f"v_lshrrev_b32 v{vtmp}, 3, v0\nv_lshlrev_b32 v{vtmp}, 19, v{vtmp}\nv_and_b32 v{vtmp+1}, 7, v0\nv_lshl_add_u32 v{vtmp}, v{vtmp+1}, 15, v{vtmp}")
    a(f"s_lshl_b32 s{S_T0}, s{S_Q}, 10\ns_add_u32 s{S_T0}, s{S_T0}, {384 + u0*32768}\nv_add_u32 v{vtmp}, s{S_T0}, v{vtmp}")
    a(f"v_cmp_gt_u32 vcc, 40, v0\nv_mov_b32 v{vtmp+1}, {hex(OOB)}\ns_nop 0\nv_cndmask_b32 v{vtmp}, v{vtmp+1}, v{vtmp}, vcc")
    a(f"buffer_load_dword v{V_DUMMY+8}, v{vtmp}, s[{srd}:{srd+3}], 0 offen")

def only(a, cond_lines, body):
    l0 = lab("Lo")
    a(cond_lines)
    a(f"s_cbranch_scc0 {l0}")
    body()
    a(f"{l0}:")

def emit():
    global NEPI, FE_SPLIT
    NEPI = int(OPT["nepi"])
    FE_SPLIT = int(OPT["fesplit"])
    c1, c2 = Conv(1), Conv(2)
    a = Asm()
    kernel_begin(a, KN)
    a(f"s_cmp_ge_u32 s{S_WG}, 256\ns_cbranch_scc1 L_end")
    load_ptrs(a)
    if OPT["codepf"]:
        a("s_getpc_b64 s[4:5]")
        a("L_pc_here:")
        a(f"s_lshr_b32 s6, s{S_WG}, 3")
        a("s_lshl_b32 s6, s6, 3")
        a("v_lshrrev_b32 v1, 6, v0")
        a("v_add_u32 v1, s6, v1")
        a("v_and_b32 v1, 63, v1")
        a("v_lshlrev_b32 v1, 10, v1")
        a("v_and_b32 v2, 63, v0")
        a("v_lshl_add_u32 v1, v2, 4, v1")
        a(f"v_min_u32 v1, CODE_LAST, v1")
        a(f"global_load_dwordx4 v[{V_DUMMY+4}:{V_DUMMY+7}], v1, s[4:5]")
    stamp(a, 0)
    if OPT["dbg"]:
        a("s_memrealtime s[74:75]\ns_waitcnt lgkmcnt(0)\ns_mov_b32 s76, s74")
    ids(a)
    if OPT["qperm"]:
        a(f"s_xor_b32 s{S_Q}, s{S_Q}, {OPT['qperm']}")
    a(f"s_lshr_b32 s{S_M}, s{S_Q}, 3\ns_and_b32 s{S_N}, s{S_Q}, 7")
    a("s_waitcnt lgkmcnt(0)")
    mk_srd(a, SRD_WS, S_PWS, 0x10000000)
    a(f"s_mul_i32 s{S_T0}, s{S_B}, 4096000")
    mk_srd(a, SRD_X, S_PX, 4096000, add=f"s{S_T0}")
    mk_srd(a, SRD_W, S_PW1, 2621440)
    mk_srd(a, SRD_OUT, S_POUT, 16384000)
    a(f"s_cmp_ge_u32 s{S_WAVE}, 4\ns_cbranch_scc1 L_Lwaves")
    def nonce_load():
        a(f"v_mov_b32 v30, {WS_NONCE}\nbuffer_load_dword v31, v30, {WSR}, 0 offen sc1")
    only(a, f"s_cmp_eq_u32 s{S_LW}, 3", nonce_load)
    only(a, f"s_cmp_eq_u32 s{S_LW}, 1", lambda: vtouch8(a, SRD_W, 0))
    if OPT["tlbw"]:
        def tlb_warm():
            a(f"s_lshl_b32 s{S_T0}, s{S_X}, 19\ns_lshl_b32 s{S_T0+1}, s{S_X}, 18")
            offs = [(S_T0, WS_H), (S_T0, WS_H + 0x40000), (S_T0+1, WS_F), (S_T0, WS_P), (S_T0, WS_P + 0x40000)]
            a(f"v_mov_b32 v2, {WS_F1}")
            for i, (sr, base) in enumerate(offs):
                a(f"s_add_u32 s{S_T0+2}, s{sr}, {base}\nv_writelane_b32 v2, s{S_T0+2}, {i+1}")
            for i, base in enumerate([WS_WO, WS_WO + 0x40000, WS_WF, WS_WF + 0x40000, WS_QE, WS_F3]):
                a(f"s_mov_b32 s{S_T0+2}, {base}\nv_writelane_b32 v2, s{S_T0+2}, {i+6}")
            a(f"buffer_load_dword v{V_DUMMY+9}, v2, {WSR}, 0 offen")
            a(f"s_mul_i32 s{S_T0}, s{S_B}, 1000\ns_mul_i32 s{S_T0+1}, s{S_QQ}, 250\ns_add_u32 s{S_T0}, s{S_T0}, s{S_T0+1}\ns_lshl_b32 s{S_T0+1}, s{S_Q}, 3\ns_add_u32 s{S_T0}, s{S_T0}, s{S_T0+1}\ns_lshl_b32 s{S_T0}, s{S_T0}, 13")
            a(f"v_and_b32 v2, 1, v0\nv_mul_u32_u24 v2, {63*1024}, v2\nv_add_u32 v2, s{S_T0}, v2")
            a(f"buffer_load_dword v{V_DUMMY+10}, v2, s[{SRD_OUT}:{SRD_OUT+3}], 0 offen")
        only(a, f"s_cmp_eq_u32 s{S_LW}, 0", tlb_warm)
    def zero_inbox():
        a(f"v_lshlrev_b32 v2, 2, v0\nv_add_u32 v2, {MISC}, v2\nv_mov_b32 v3, 0\nds_write_b32 v2, v3\ns_waitcnt lgkmcnt(0)")
    only(a, f"s_cmp_eq_u32 s{S_LW}, 0", zero_inbox)
    G.conv_c_setup(a, c1)
    conv1_tail_pre(a)
    a("s_barrier")
    def nonce_pub():
        a("s_waitcnt vmcnt(0)")
        a(f"v_add_u32 v31, 1, v31\ns_nop 0\nv_readfirstlane_b32 s{S_TAG}, v31")
        a(f"s_getreg_b32 s{S_T0}, hwreg(HW_REG_XCC_ID, 0, 4)")
        a(f"s_lshl_b32 s{S_T0+1}, s{S_X}, 8\ns_lshl_b32 s{S_T0+2}, s{S_Q}, 3\ns_add_u32 s{S_T0+1}, s{S_T0+1}, s{S_T0+2}\ns_add_u32 s{S_T0+1}, s{S_T0+1}, {WS_G0}")
        a(f"v_mov_b32 v28, s{S_TAG}\nv_mov_b32 v29, s{S_T0}\nv_mov_b32 v30, s{S_T0+1}")
        a(f"s_mov_b64 s[{S_T0+14}:{S_T0+15}], exec\ns_mov_b64 exec, 1")
        a(f"buffer_store_dwordx2 v[28:29], v30, {WSR}, 0 offen sc1")
        a(f"s_mov_b64 exec, s[{S_T0+14}:{S_T0+15}]")
        write_misc(a, 0, S_TAG)
    only(a, f"s_cmp_eq_u32 s{S_LW}, 3", nonce_pub)
    RLC = f"s_cmp_lt_u32 s{S_WG}, 128\ns_cselect_b32 s{S_T0}, s{S_LW}, 0\ns_cmp_eq_u32 s{S_T0}, 1"
    GEC = f"s_cmp_ge_u32 s{S_WG}, 224\ns_cselect_b32 s{S_T0}, s{S_LW}, 0\ns_cmp_eq_u32 s{S_T0}, 2"
    if OPT["sidec"]:
        only(a, RLC, lambda: relayout_loads(a, 172))
        only(a, GEC, lambda: ge_gloads_c(a))
    if OPT["xpf"] is not None: x_prefetch(a)
    conv_c_loop(a, c1, 1)
    conv1_tail_c(a)
    stamp(a, 4)
    if OPT["sidec"]:
        a(f"s_mov_b32 s{S_SIDEK}, 0\ns_mov_b32 s{S_SIDEA}, 0\ns_mov_b32 s{S_SIDEV}, 0")
        def rlj():
            relayout_finish(a, 1, 172)
            a(f"s_lshl_b32 s{S_SIDEA}, s{S_WG}, 2\ns_add_u32 s{S_SIDEA}, s{S_SIDEA}, {WS_RL}\ns_mov_b32 s{S_SIDEK}, 1")
        only(a, RLC, rlj)
        only(a, GEC, lambda: ge_finish_c(a))
    if OPT["cpre"]:
        mk_srd(a, SRD_W, S_PW2, 2621440)
        l_setup_w(a)
        a(f"s_add_u32 s{S_PA}, s{S_M}, s{S_N}\ns_and_b32 s{S_PA}, s{S_PA}, 1\ns_lshl_b32 s{S_PWX}, s{S_PA}, 16\ns_lshl_b32 s{S_T0}, s{S_N}, 7\ns_add_u32 s{S_PWX}, s{S_PWX}, s{S_T0}")
        a(f"s_mov_b32 s{S_LSW}, {2 * c2.WB}")
        for u in (2, 3, 4):
            l_issue_W(a, c2, SRD_W, u)
            if OPT["cpace"] is not None and u < 4: a(f"s_waitcnt vmcnt({OPT['cpace']})")
    a(f"s_lshr_b32 s{S_GRP}, s{S_LW}, 1\ns_mul_i32 s{S_GRP}, s{S_GRP}, {c2.WB}")
    G.conv_c_setup(a, c2)
    conv2_tail_pre(a)
    if OPT["cpre"]: a("s_waitcnt vmcnt(0)")
    b = Asm()
    a("s_barrier")
    stamp(a, 5)
    save = OPT["stamp"]; OPT["stamp"] = False
    conv_c_loop(b, c2, 0)
    OPT["stamp"] = save
    lines = b.lines
    i0 = next(i for i, l in enumerate(lines) if l.strip() == "s_barrier")
    a.lines += lines[i0+1:]
    stamp(a, 6)
    conv2_tail_c(a)
    stamp(a, 13)
    fe_c(a)
    stamp(a, 9)
    joint_c(a)
    a("s_branch L_fin")
    a("L_Lwaves:")
    sch = LSched()
    nA1, nA2 = c1.nA // 4, c2.nA // 4
    iA = [0]; iW = [0]
    def A(c, srd, pol, tag):
        l_issue_A(a, c, srd, pol, iA[0]); sch.add((tag, "A", iA[0]), c.nA // 4); iA[0] += 1
    def W(c, tag):
        l_issue_W(a, c, SRD_W, iW[0]); sch.add((tag, "W", iW[0]), 5); iW[0] += 1
    l_setup_w(a)
    a(f"s_mov_b32 s{S_LSA}, 0\ns_mov_b32 s{S_LSW}, 0")
    if OPT["twist"]:
        a(f"s_add_u32 s{S_PA}, s{S_M}, s{S_N}\ns_and_b32 s{S_PA}, s{S_PA}, 1")
    else:
        a(f"s_mov_b32 s{S_PA}, 0")
    a(f"s_lshl_b32 s{S_PWX}, s{S_PA}, 16\ns_lshl_b32 s{S_PA}, s{S_PA}, 7\ns_lshl_b32 s{S_T0}, s{S_N}, 7\ns_add_u32 s{S_PWX}, s{S_PWX}, s{S_T0}")
    W(c1, 1)
    a(f"s_mul_i32 s{S_T0+8}, s{S_QQ}, 1000\ns_lshl_b32 s{S_T0+9}, s{S_M}, 8\ns_add_u32 s{S_T0+8}, s{S_T0+8}, s{S_T0+9}\ns_sub_u32 s{S_T0+8}, s{S_T0+8}, 6")
    if OPT["fastA0"]:
        a(f"s_xor_b32 s{S_OFA}, s{S_PA}, 0\ns_lshl_b32 s{S_T0+4}, s{S_LW}, 10")
        def iss(k):
            extra = (4 * k + 3 >= c1.nA)
            if extra:
                l0 = lab("Lx")
                a(f"s_cmp_lt_u32 s{S_LW}, {c1.nA - 4 * k}\ns_cbranch_scc0 {l0}")
            a(f"s_add_u32 m0, s{S_T0+4}, {k*4096}\ns_nop 0")
            a(f"buffer_load_dwordx4 v{V_LA+k}, s[{SRD_X}:{SRD_X+3}], s{S_OFA} offen {OPT['xld']} lds")
            if extra: a(f"{l0}:")
        l_setup_a(a, c1, S_T0+8, 0, 4000, iss)
        a(f"s_mov_b32 s{S_LSA}, {c1.AB}")
        sch.add((1, "A", 0), c1.nA // 4); iA[0] = 1
    else:
        l_setup_a(a, c1, S_T0+8, 0, 4000)
        A(c1, SRD_X, OPT["xld"], 1)
    stamp(a, 1)
    a("s_barrier")
    W(c1, 1)
    if OPT["wtouch"] and OPT["tx"]:
        a(f"s_mul_i32 s{S_T0+2}, s{S_QQ}, 1000\ns_mul_i32 s{S_T0+3}, s{S_Q}, 33\ns_add_u32 s{S_T0+2}, s{S_T0+2}, s{S_T0+3}")
        a(f"s_lshl_b32 s{S_T0+3}, s{S_LW}, 3\ns_add_u32 s{S_T0+2}, s{S_T0+2}, s{S_T0+3}\ns_sub_u32 s{S_T0+2}, s{S_T0+2}, 6")
        for j in range(9):
            a(f"s_add_i32 s{S_T0+3}, s{S_T0+2}, {j}\ns_max_i32 s{S_T0+3}, s{S_T0+3}, 0\ns_min_i32 s{S_T0+3}, s{S_T0+3}, 3999")
            a(f"s_lshl_b32 s{S_T0+3}, s{S_T0+3}, 10\ns_add_u32 s{S_T0+3}, s{S_T0+3}, 384")
            a(f"s_load_dword s76, s[{SRD_X}:{SRD_X+1}], s{S_T0+3}")
    need1 = lambda s: [(1, "A", s // 2), (1, "W", s)]
    a(f"s_waitcnt vmcnt({sch.wait_for(need1(0))})")
    a("s_barrier")
    stamp(a, 2)
    def Apart(part):
        l_issue_A(a, c1, SRD_X, OPT["xld"], iA[0], part)
        n0 = 5; n1 = c1.nA // 4 - 5
        sch.add((1, "A", iA[0]), n0 if part == 0 else n1)
        if part == 1: iA[0] += 1
    if c1.RA == 2:
        A(c1, SRD_X, OPT["xld"], 1); W(c1, 1); W(c1, 1)
    else:
        A(c1, SRD_X, OPT["xld"], 1); W(c1, 1); Apart(0)
    for u in (4, 5, 6, 7, 8): w_touch(a, S_PW1, u, 8)
    for s in range(c1.NST):
        if s + 1 < c1.NST:
            nw_ = min(63, sch.wait_for(need1(s+1)))
            if s == 14 and OPT["sidec"]:
                l0, l1 = lab("Lv"), lab("Lv")
                a(f"s_cmp_ge_u32 s{S_WG}, 224\ns_cselect_b32 s{S_T0}, s{S_LW}, 0\ns_cmp_eq_u32 s{S_T0}, 2\ns_cbranch_scc1 {l0}")
                a(f"s_waitcnt vmcnt({nw_})\ns_branch {l1}\n{l0}:\ns_waitcnt vmcnt({min(63, nw_ + 16)})\n{l1}:")
            else:
                a(f"s_waitcnt vmcnt({nw_})")
        a("s_barrier")
        if c1.RA == 2:
            if s % 2 == 1 and iA[0] < c1.NA: A(c1, SRD_X, OPT["xld"], 1)
            if iW[0] < c1.NU: W(c1, 1)
        else:
            if iW[0] < c1.NU: W(c1, 1)
            if iA[0] < c1.NA: Apart(1 if s % 2 == 0 else 0)
        w_touch(a, S_PW1, s + 9, 8)
        if OPT["vtouch"] and s in (1, 7, 9):
            def tch(s=s):
                if s == 1: vtouch8(a, SRD_W, 8)
                else:
                    mk_srd(a, SRD_T, S_PW2, 2621440)
                    vtouch8(a, SRD_T, 0 if s == 7 else 8)
            only(a, f"s_cmp_eq_u32 s{S_LW}, 3", tch)
        if s >= 8 and OPT["t2"]:
            w_touch(a, S_PW2, 2*(s-8), 8); w_touch(a, S_PW2, 2*(s-8) + 1, 8)
        if OPT["stg"] and s in (12, 13):
            if s == 12:
                mk_srd(a, SRD_T, S_PW2, 2621440)
                stage_W2_loads(a, c2, SRD_T, 3)
                sch.add("stg", 15)
            else:
                sch.add("stg", 10)
                b = Asm(); stage_W2_loads(b, c2, SRD_T, 5)
                keep = False
                for l in b.lines:
                    if f"{3*32768}" in l and "s_xor" in l: keep = True
                    if keep: a(l.strip())
        if s == 13 and OPT["sidec"]:
            only(a, f"s_cmp_ge_u32 s{S_WG}, 224\ns_cselect_b32 s{S_T0}, s{S_LW}, 0\ns_cmp_eq_u32 s{S_T0}, 2", lambda: ge_loads_c(a))
        if s == 2:
            mk_srd(a, SRD_T, S_PW2, 2621440)
            a(f"s_mul_i32 s{S_T0+2}, s{S_WG}, 12288\ns_mul_i32 s{S_T0+3}, s{S_LW}, 3072\ns_add_u32 s{S_T0+2}, s{S_T0+2}, s{S_T0+3}")
            a(f"v_lshl_add_u32 v4, v0, 4, s{S_T0+2}")
            for k in range(3): a(f"buffer_load_dwordx4 v[{V_DUMMY}:{V_DUMMY+3}], v4, s[{SRD_T}:{SRD_T+3}], 0 offen offset:{k*1024}")
            mk_srd(a, SRD_T, S_PWG, 524288)
            a(f"s_lshl_b32 s{S_T0+2}, s{S_WG}, 11\ns_lshl_b32 s{S_T0+3}, s{S_LW}, 9\ns_add_u32 s{S_T0+2}, s{S_T0+2}, s{S_T0+3}")
            a(f"v_and_b32 v4, 31, v0\nv_lshl_add_u32 v4, v4, 4, s{S_T0+2}")
            a(f"buffer_load_dwordx4 v[{V_DUMMY}:{V_DUMMY+3}], v4, s[{SRD_T}:{SRD_T+3}], 0 offen")
            sch.add("pf", 4)
        if s == 3:
            read_misc(a, 0, S_TAG)
            a(f"s_lshl_b32 s{S_T0+1}, s{S_X}, 8\ns_add_u32 s{S_T0+1}, s{S_T0+1}, {WS_G0}")
            a(f"v_and_b32 v28, 31, v0\nv_lshlrev_b32 v28, 3, v28\nv_add_u32 v28, s{S_T0+1}, v28")
            def xcc_issue():
                a(f"buffer_load_dwordx2 v[26:27], v28, {WSR}, 0 offen sc1")
            only(a, f"s_cmp_eq_u32 s{S_LW}, 0", xcc_issue)
            mark1 = len(sch.ops)
        if s == 7:
            def xcc_check():
                a(f"s_waitcnt vmcnt({len(sch.ops) - mark1})")
                l0 = lab("Lc")
                a(f"s_mov_b32 s{S_T0+16}, 0\nv_cmp_ne_u32 vcc, s{S_TAG}, v26\ns_cbranch_vccz {l0}")
                poll(a, 28, 26, width=2)
                a(f"{l0}:")
                a(f"s_getreg_b32 s{S_T0}, hwreg(HW_REG_XCC_ID, 0, 4)")
                a(f"v_cmp_ne_u32 vcc, s{S_T0}, v27\ns_nop 4\ns_cmp_eq_u64 vcc, 0\ns_cselect_b32 s{S_FAST}, 1, 0")
                a(f"s_cmp_ge_u32 s{S_T0+16}, {SPIN_MAX}\ns_cselect_b32 s{S_FAST}, 0, s{S_FAST}")
                if OPT["force_slow"]: a(f"s_mov_b32 s{S_FAST}, 0")
                write_misc(a, 4, S_FAST)
            only(a, f"s_cmp_eq_u32 s{S_LW}, 0", xcc_check)
        if s == 6 and not OPT["sidec"]:
            only(a, f"s_cmp_lt_u32 s{S_WG}, 128\ns_cselect_b32 s{S_T0}, s{S_LW}, 0\ns_cmp_eq_u32 s{S_T0}, 1", lambda: relayout_loads(a))
            mark3 = len(sch.ops)
        if s == 11 and not OPT["sidelate"] and not OPT["sidec"]:
            only(a, f"s_cmp_lt_u32 s{S_WG}, 128\ns_cselect_b32 s{S_T0}, s{S_LW}, 0\ns_cmp_eq_u32 s{S_T0}, 1", lambda: relayout_finish(a, len(sch.ops) - mark3))
        if s == 13 and not OPT["sidelate"] and not OPT["sidec"]:
            only(a, f"s_cmp_ge_u32 s{S_WG}, 224\ns_cselect_b32 s{S_T0}, s{S_LW}, 0\ns_cmp_eq_u32 s{S_T0}, 2", lambda: ge_loads(a))
    stamp(a, 3)
    mk_srd(a, SRD_W, S_PW2, 2621440)
    a(f"s_lshl_b32 s{S_T0}, s{S_X}, 19\ns_add_u32 s{S_T0}, s{S_T0}, {WS_H}")
    mk_srd(a, SRD_X, S_PWS, 0x100000, add=f"s{S_T0}")
    iA[0] = 0; iW[0] = 0
    a(f"s_mov_b32 s{S_LSA}, 0\ns_mov_b32 s{S_LSW}, 0")
    if not OPT["sidelate"] and not OPT["sidec"]:
        only(a, f"s_cmp_lt_u32 s{S_WG}, 128\ns_cselect_b32 s{S_T0}, s{S_LW}, 0\ns_cmp_eq_u32 s{S_T0}, 1", lambda: relayout_flag(a))
        only(a, f"s_cmp_ge_u32 s{S_WG}, 224\ns_cselect_b32 s{S_T0}, s{S_LW}, 0\ns_cmp_eq_u32 s{S_T0}, 2", lambda: ge_finish(a))
    npre = int(OPT["npre"])
    if OPT["stg"]:
        npre = 5
        a("s_waitcnt vmcnt(0)")
        stage_W2_write(a, c2, 5)
        iW[0] = 5
        a(f"s_mov_b32 s{S_LSW}, 0")
    else:
        for _ in range(npre): W(c2, 2)
    if OPT["sidec"]:
        only(a, f"s_cmp_ge_u32 s{S_WG}, 224\ns_cselect_b32 s{S_T0}, s{S_LW}, 0\ns_cmp_eq_u32 s{S_T0}, 2", lambda: ge_stage_l(a, 0 if OPT["stg"] else 5*npre))
    def rl_job():
        relayout_finish(a, 0 if OPT["stg"] else 5*npre); relayout_flag(a)
    if OPT["sidelate"] and not OPT["sidec"]: only(a, f"s_cmp_lt_u32 s{S_WG}, 128\ns_cselect_b32 s{S_T0}, s{S_LW}, 0\ns_cmp_eq_u32 s{S_T0}, 1", rl_job)
    def ge_job():
        a("s_waitcnt lgkmcnt(0)")
        ge_loads(a); ge_finish(a)
    if OPT["sidelate"] and not OPT["sidec"]: only(a, f"s_cmp_ge_u32 s{S_WG}, 224\ns_cselect_b32 s{S_T0}, s{S_LW}, 0\ns_cmp_eq_u32 s{S_T0}, 2", ge_job)
    a(f"s_lshl_b32 s{S_T0+8}, s{S_M}, 7")
    a(f"s_cmp_eq_u32 s{S_QQ}, 0\ns_cselect_b32 s{S_T0+10}, 2, 0")
    a(f"s_cmp_eq_u32 s{S_QQ}, 3\ns_cselect_b32 s{S_T0+11}, 0, 522\ns_add_u32 s{S_T0+11}, s{S_T0+11}, 502")
    a(f"s_sub_u32 s{S_T0+11}, s{S_T0+11}, s{S_T0+10}")
    l_setup_a(a, c2, S_T0+8, f"s{S_T0+10}", f"s{S_T0+11}")
    if OPT["seqpre"]:
        l0, l1 = lab("Lq"), lab("Lq")
        a(f"v_mov_b32 v2, {INBOX + 64}\ns_mov_b32 s{S_T0+16}, 0\n{l0}:\nds_read_b128 v[4:7], v2")
        a(f"s_add_u32 s{S_T0+16}, s{S_T0+16}, 1\ns_cmp_ge_u32 s{S_T0+16}, {SPIN_MAX*8}\ns_cbranch_scc1 {l1}")
        a(f"s_waitcnt lgkmcnt(0)\nv_and_b32 v4, v4, v5\nv_and_b32 v6, v6, v7\nv_and_b32 v4, v4, v6\nv_cmp_eq_u32 vcc, 0, v4\ns_cbranch_vccnz {l0}\n{l1}:\ns_waitcnt lgkmcnt(0)")
        while iW[0] < 5: W(c2, 2)
        npre = 5
    if OPT["cpre"]:
        iW[0] = 5; npre = 5
        a(f"s_mov_b32 s{S_LSW}, 0")
    a(f"s_lshl_b32 s{S_T0}, s{S_M}, 3\nv_lshrrev_b32 v6, 2, v0\nv_add_u32 v6, s{S_T0}, v6\nv_min_u32 v6, 31, v6")
    a(f"v_lshlrev_b32 v6, 4, v6\nv_and_b32 v7, 3, v0\nv_lshl_add_u32 v6, v7, 2, v6")
    a(f"s_lshl_b32 s{S_T0}, s{S_X}, 9\ns_add_u32 s{S_T0}, s{S_T0}, {WS_F1}\nv_add_u32 v6, s{S_T0}, v6")
    poll(a, 6, 7)
    sch.ops = []
    stamp(a, 4)
    A(c2, SRD_X, "sc1", 2)
    if npre < 3: W(c2, 2)
    A(c2, SRD_X, "sc1", 2)
    if npre < 4: W(c2, 2)
    a(f"s_waitcnt vmcnt({sch.wait_for([(2, 'A', 0)])}) lgkmcnt(0)")
    a("s_barrier")
    stamp(a, 5)
    if npre < 5: W(c2, 2)
    A(c2, SRD_X, "sc1", 2)
    for s in range(c2.NST):
        if s + 1 < c2.NST:
            tags = [(2, "A", s+1), (2, "W", 2*s+2), (2, "W", 2*s+3)]
            tags = [t for t in tags if t in sch.ops]
            a(f"s_waitcnt vmcnt({min(63, sch.wait_for(tags))})")
        a("s_barrier")
        if iW[0] < c2.NU: W(c2, 2)
        if iA[0] < c2.NA: A(c2, SRD_X, "sc1", 2)
        if iW[0] < c2.NU: W(c2, 2)
        if s == 4:
            a(f"v_lshlrev_b32 v28, 2, v0\nv_add_u32 v28, {WS_RL}, v28\nv_add_u32 v29, 256, v28")
            a(f"v_and_b32 v30, 31, v0\nv_lshlrev_b32 v30, 3, v30\nv_add_u32 v30, {WS_GE}, v30")
            def side_issue():
                a(f"buffer_load_dword v24, v28, {WSR}, 0 offen sc1\nbuffer_load_dword v25, v29, {WSR}, 0 offen sc1")
                a(f"buffer_load_dwordx2 v[26:27], v30, {WSR}, 0 offen sc1")
            only(a, f"s_cmp_eq_u32 s{S_LW}, 3", side_issue)
            mark2 = len(sch.ops)
        if s == 6:
            def side_check():
                a(f"s_waitcnt vmcnt({len(sch.ops) - mark2})")
                for (vv, va, w) in [(24, 28, 1), (25, 29, 1), (26, 30, 2)]:
                    l0 = lab("Lc")
                    a(f"v_cmp_ne_u32 vcc, s{S_TAG}, v{vv}\ns_cbranch_vccz {l0}")
                    poll(a, va, vv, width=w)
                    a(f"{l0}:")
                a(f"v_cmp_ne_u32 vcc, 0, v27\ns_nop 4\ns_cmp_lg_u64 vcc, 0\ns_cselect_b32 s{S_UNS}, 1, 0")
                write_misc(a, 8, S_UNS)
            only(a, f"s_cmp_eq_u32 s{S_LW}, 3", side_check)
        if OPT["stg"] and s == 5: stage_WF_loads(a, 0, 16); sch.add("stg", 16)
        if OPT["stg"] and s == 6: stage_WF_loads(a, 16, 32); sch.add("stg", 16)
        if s == 7:
            read_misc(a, 8, S_UNS)
    stamp(a, 6)
    if OPT["stg"]:
        a("s_waitcnt vmcnt(0)")
        stage_WF_write(a)
    else:
        fe_l_wpre(a, 0)
    fe_l(a, sch)
    stamp(a, 8)
    joint_l(a)
    stamp(a, 10)
    cond0 = f"s_cmp_eq_u32 s{S_WG}, 0\ns_cselect_b32 s{S_T0}, s{S_LW}, 0\ns_cmp_eq_u32 s{S_T0}, 2"
    for k in range(4): a(f"v_lshlrev_b32 v{48+k}, 3, v0\nv_add_u32 v{48+k}, {WS_G0 + k*512}, v{48+k}")
    def nonce_issue():
        for k in range(4): a(f"buffer_load_dwordx2 v[{52+2*k}:{53+2*k}], v{48+k}, {WSR}, 0 offen sc1")
    only(a, cond0, nonce_issue)
    if OPT["wbl2"]:
        def wb():
            a("buffer_wbl2 sc1")
        only(a, f"s_cmp_eq_u32 s{S_Q}, {OPT['wbq']}\ns_cselect_b32 s{S_T0}, s{S_LW}, 0\ns_cmp_eq_u32 s{S_T0}, 1", wb)
    n = joint_store(a, 0, False)
    a("s_barrier")
    joint_store_issue(a, n, OPT["pace"])
    stamp(a, 11)
    def nonce_update():
        a(f"s_waitcnt vmcnt({n})")
        for k in range(4):
            l0 = lab("Lc")
            a(f"v_cmp_ne_u32 vcc, s{S_TAG}, v{52+2*k}\ns_cbranch_vccz {l0}")
            poll(a, 48+k, 52+2*k, width=2)
            a(f"{l0}:")
        a(f"s_mov_b32 s{S_T0+8}, {WS_NONCE}")
        flag_store(a, S_T0+8, fast_variant=False)
    only(a, cond0, nonce_update)
    n = joint_store(a, 1, True)
    a("s_barrier")
    joint_store_issue(a, n)
    a("L_fin:")
    a("s_waitcnt vmcnt(0)")
    if OPT["dbg"]:
        def dbgw():
            a("s_memrealtime s[74:75]\ns_waitcnt lgkmcnt(0)")
            mk_srd(a, SRD_T, S_PDBG, 256)
            a(f"s_lshl_b32 s{S_T0}, s{S_WG}, 2\nv_mov_b32 v2, s{S_T0}\nv_mov_b32 v3, s76\nv_mov_b32 v4, s74")
            a(f"buffer_store_dword v3, v2, s[{SRD_T}:{SRD_T+3}], 0 offen\nbuffer_store_dword v4, v2, s[{SRD_T}:{SRD_T+3}], 0 offen offset:32")
            a("s_waitcnt vmcnt(0)")
        only(a, f"s_cmp_lt_u32 s{S_WG}, 8\ns_cselect_b32 s{S_T0}, s{S_WAVE}, 1\ns_cmp_eq_u32 s{S_T0}, 0", dbgw)
    stamp(a, 12)
    stamp_flush(a, 14, "L_stx")
    a("L_end:")
    a("s_endpgm")
    a("L_code_end:")
    if OPT["codepf"]:
        a.lines.insert(0, ".set CODE_LAST, L_code_end - L_pc_here - 16")
    return file_text([(None, (256,1,1), (512,1,1), 160*1024)], a.text(), [kernel_desc(KN, 256, 102)])

if __name__ == "__main__":
    for arg in sys.argv[2:]:
        if arg == "--stamp": OPT["stamp"] = True
        elif arg == "--cyc": OPT["cyc"] = True
        elif arg.startswith("--o="):
            k, v = arg[4:].split("=", 1)
            OPT[k] = None if v == "None" else (True if v == "True" else (False if v == "False" else (int(v) if v.isdigit() else v.replace("+", " "))))
    open(sys.argv[1], "w").write(emit())
```

```python
import sys
from asmlib import *
import gen as G
from gen import (f2h, mk_srd, load_ptrs, ids, Conv, swz_of, xfrag_read, wfrag_reads, group_reads, group_mfmas, interleave,
                 gelu_consts, gelu_block, LSched, C2LOG2E, OOB, SWZ_TBL,
                 WS_H, WS_F, WS_P, WS_WO, WS_WF, WS_QE, WS_QR,
                 S_WG, SRD_X, SRD_W, SRD_WS, SRD_OUT, SRD_T, S_PX, S_PW1, S_PW2, S_PG, S_PWF, S_PWG, S_PWO, S_POUT, S_PDBG, S_PWS,
                 S_X, S_Q, S_B, S_QQ, S_M, S_N, S_WAVE, S_LW, S_T0, S_CNT, S_GRP, S_UNS,
                 V_ACC, V_E0, V_E1, V_O, V_W, V_XA0, V_XA1, V_WA0, V_WA1, V_XB, V_WB0, V_WB1, S_SLOTA, S_SLOTW,
                 V_LA, V_LWV, S_OFA, S_OFW, S_LSA, S_LSW)

WS_NONCE = 0x0F30000
WS_G0    = 0x0F31000
WS_F1    = 0x0F32000
WS_F2    = 0x0F33000
WS_F3    = 0x0F34000
WS_RL    = 0x0F35000
WS_GE    = 0x0F36000
WS_STAMP = 0x1000000
S_TAG, S_FAST = 86, 87
MISC = 163584
INBOX = MISC + 64
SPIN_MAX = 40000

OPT = dict(lfirst=True, tlbw=True, cpace=0, fesplit=12, fewreg=True, cpre=False, nobar=False, notanh=False, fastA0=True, wo_pre=6, wbl2=False, wbq=5, seqpre=False, sidec=True, stg=False, tailst=False, cloopcnt=True, hot=False, vtouch=True, sidelate=True, npre=2, t2=False, tx=False, gelupk=True, lprio=0, pace=3, nepi=6, steps=False, wstep=4096, jst=False, wold='', nomfma=False, nowl=False, pk=False, ostage=True, twist=True, wowarm=True, wtouch=None, qperm=0, dbg=False, codepf=True, stamp=False, cyc=False, xpf=None, xld="", scout="nt", scl_fast="", force_slow=False)
S_ST = 88
def tstamp(a, i, which=1):
    if OPT["tailst"] and int(OPT["tailst"]) == which: stamp(a, i, True)
def stamp(a, i, force=False):
    if OPT["tailst"] and i in (7, 8, 9, 13) and not force: return
    if OPT["stamp"]:
        a(f"{'s_memtime' if OPT['cyc'] else 's_memrealtime'} s[74:75]")
        a("s_waitcnt lgkmcnt(0)")
        a(f"s_mov_b32 s{S_ST+i}, s74")
def stamp_flush(a, n, lab):
    if not OPT["stamp"]: return
    a(f"s_and_b32 s{S_T0}, s{S_WAVE}, 3\ns_cmp_eq_u32 s{S_T0}, 0\ns_cbranch_scc0 {lab}")
    a(f"s_lshr_b32 s{S_T0}, s{S_WAVE}, 2\ns_lshl_b32 s{S_T0}, s{S_T0}, 6")
    a(f"s_lshl_b32 s{S_T0+1}, s{S_WG}, 7\ns_add_u32 s{S_T0}, s{S_T0}, s{S_T0+1}")
    a(f"s_add_u32 s{S_T0}, s{S_T0}, {WS_STAMP}")
    for i in range(n):
        a(f"v_mov_b32 v2, s{S_ST+i}\nv_mov_b32 v3, s{S_T0}")
        a(f"buffer_store_dword v2, v3, s[{SRD_WS}:{SRD_WS+3}], 0 offen offset:{4*i}")
    a("s_waitcnt vmcnt(0)")
    a(f"{lab}:")

LABN = [0]
def lab(p="L"):
    LABN[0] += 1
    return f"{p}_{LABN[0]}"

WSR = f"s[{SRD_WS}:{SRD_WS+3}]"

def poll(a, vaddr, vtmp, width=1):
    l0, l1 = lab("Lp"), lab("Lp")
    a(f"s_mov_b32 s{S_T0+16}, 0")
    a(f"{l0}:")
    if width == 1: a(f"buffer_load_dword v{vtmp}, v{vaddr}, {WSR}, 0 offen sc1")
    else: a(f"buffer_load_dwordx2 v[{vtmp}:{vtmp+1}], v{vaddr}, {WSR}, 0 offen sc1")
    a(f"s_add_u32 s{S_T0+16}, s{S_T0+16}, 1")
    a(f"s_cmp_ge_u32 s{S_T0+16}, {SPIN_MAX}")
    a(f"s_cbranch_scc1 {l1}")
    a("s_waitcnt vmcnt(0)")
    a(f"v_cmp_ne_u32 vcc, s{S_TAG}, v{vtmp}")
    a(f"s_cbranch_vccnz {l0}")
    a(f"{l1}:")
    a("s_waitcnt vmcnt(0)")

def flag_store(a, off_sgpr, fast_variant=True):
    a(f"v_mov_b32 v2, s{S_TAG}\nv_mov_b32 v3, s{off_sgpr}")
    a(f"s_mov_b64 s[{S_T0+14}:{S_T0+15}], exec\ns_mov_b64 exec, 1")
    if fast_variant:
        l0, l1 = lab("Lf"), lab("Lf")
        a(f"s_cmp_eq_u32 s{S_FAST}, 0\ns_cbranch_scc1 {l0}")
        a(f"buffer_store_dword v2, v3, {WSR}, 0 offen")
        a(f"s_branch {l1}\n{l0}:")
        a(f"buffer_store_dword v2, v3, {WSR}, 0 offen sc1")
        a(f"{l1}:")
    else:
        a(f"buffer_store_dword v2, v3, {WSR}, 0 offen sc1")
    a(f"s_mov_b64 exec, s[{S_T0+14}:{S_T0+15}]")

def local_stores(a, instrs):
    l0, l1 = lab("Ls"), lab("Ls")
    a(f"s_cmp_eq_u32 s{S_FAST}, 0\ns_cbranch_scc1 {l0}")
    for i in instrs: a(i.replace("{SC}", OPT["scl_fast"]))
    a(f"s_branch {l1}\n{l0}:")
    for i in instrs: a(i.replace("{SC}", "sc1"))
    a(f"{l1}:")

def pair_sync(a, event, partner_xor):
    l0, l1 = lab("Ly"), lab("Ly")
    a("s_waitcnt lgkmcnt(0)")
    a(f"s_xor_b32 s{S_T0+12}, s{S_LW}, {partner_xor}")
    a(f"s_lshl_b32 s{S_T0+12}, s{S_T0+12}, 2\ns_add_u32 s{S_T0+12}, s{S_T0+12}, {INBOX + event*16}")
    a(f"s_lshl_b32 s{S_T0+13}, s{S_LW}, 2\ns_add_u32 s{S_T0+13}, s{S_T0+13}, {INBOX + event*16}")
    a(f"v_mov_b32 v2, s{S_T0+12}\nv_mov_b32 v3, 1\nds_write_b32 v2, v3")
    a(f"v_mov_b32 v2, s{S_T0+13}\ns_mov_b32 s{S_T0+16}, 0")
    a(f"{l0}:")
    a("ds_read_b32 v3, v2")
    a(f"s_add_u32 s{S_T0+16}, s{S_T0+16}, 1\ns_cmp_ge_u32 s{S_T0+16}, {SPIN_MAX*8}\ns_cbranch_scc1 {l1}")
    a("s_waitcnt lgkmcnt(0)")
    a("v_cmp_eq_u32 vcc, 0, v3")
    a(f"s_cbranch_vccnz {l0}")
    a(f"{l1}:")
    a("s_waitcnt lgkmcnt(0)")

def conv_c_loop(a, c, st0):
    t = c.tag
    stamp(a, st0)
    a("s_barrier")
    stamp(a, st0 + 1)
    for r in group_reads(c, V_E0, 0, 0): a(r)
    for r in group_reads(c, V_E0, 1, 1): a(r)
    a(f"s_mov_b32 s{S_CNT}, 0")
    a(f"L_{t}_cloop:")
    SETS = [[V_WA0, V_XA0, V_WA1, V_XA1], [18, 19, 20, 21]]
    def use(r, st):
        return (r.replace(f", v{V_WA0} ", f", v{st[0]} ").replace(f", v{V_XA0} ", f", v{st[1]} ")
                 .replace(f", v{V_WA1} ", f", v{st[2]} ").replace(f", v{V_XA1} ", f", v{st[3]} "))
    for par in range(2):
        es, en = (V_E0, V_E1) if par == 0 else (V_E1, V_E0)
        cur, nxt = SETS[par], SETS[1 - par]
        a("s_waitcnt lgkmcnt(8)")
        interleave(a, group_mfmas(es, 0, 0), [use(r, cur) for r in group_reads(c, es, 2, 2)])
        a("s_waitcnt lgkmcnt(5)")
        sc = []
        if c.idx == 1:
            sc += [f"s_add_u32 s{S_SLOTW}, s{S_SLOTW}, {c.WB}", f"s_cmp_ge_u32 s{S_SLOTW}, {c.RW * c.WB}", f"s_cselect_b32 s{S_SLOTW}, 0, s{S_SLOTW}"]
            if par == 1:
                if c.RA == 2: sc += [f"s_xor_b32 s{S_SLOTA}, s{S_SLOTA}, {c.AB}"]
                else: sc += [f"s_add_u32 s{S_SLOTA}, s{S_SLOTA}, {c.AB}", f"s_cmp_ge_u32 s{S_SLOTA}, {c.RA * c.AB}", f"s_cselect_b32 s{S_SLOTA}, 0, s{S_SLOTA}"]
            xb = V_XB + (2 if par == 0 else 0)
        else:
            sc += [f"s_add_u32 s{S_SLOTW}, s{S_SLOTW}, {2 * c.WB}", f"s_add_u32 s{S_T0}, s{S_SLOTW}, s{S_GRP}",
                   f"s_cmp_ge_u32 s{S_T0}, {c.RW * c.WB}", f"s_cselect_b32 s{S_T0}, {c.RW * c.WB}, 0", f"s_sub_u32 s{S_SLOTW}, s{S_SLOTW}, s{S_T0}",
                   f"s_add_u32 s{S_SLOTA}, s{S_SLOTA}, {2 * c.AB}", f"s_cmp_ge_u32 s{S_SLOTA}, {c.RA * c.AB}",
                   f"s_cselect_b32 s{S_T0}, {c.RA * c.AB}, 0", f"s_sub_u32 s{S_SLOTA}, s{S_SLOTA}, s{S_T0}"]
            xb = V_XB
        rd = [use(r, cur) for r in group_reads(c, es, 3, 3)]
        mf = group_mfmas(es, 1, 1)
        k = 0
        for i, m in enumerate(mf):
            a(m)
            if i < len(rd): a(rd[i])
            else:
                while k < len(sc) and k < 3 * (i - len(rd) + 1): a(sc[k]); k += 1
        while k < len(sc): a(sc[k]); k += 1
        a("s_waitcnt lgkmcnt(5)")
        rd = [use(r, cur) for r in group_reads(c, es, 4, 4)]
        nx = [f"v_add_u32 v{nxt[0]}, s{S_SLOTW}, v{V_WB0}", f"v_add_u32 v{nxt[1]}, s{S_SLOTA}, v{xb}",
              f"v_add_u32 v{nxt[2]}, s{S_SLOTW}, v{V_WB1}", f"v_add_u32 v{nxt[3]}, s{S_SLOTA}, v{xb+1}"]
        mf = group_mfmas(es, 2, 2)
        oth = rd + nx[:3]
        for i, m in enumerate(mf):
            a(m)
            if i < len(oth): a(oth[i])
            if i == len(mf) - 2: a(nx[3])
        if OPT["cloopcnt"] and par == 1:
            pass
        a("s_waitcnt lgkmcnt(0)")
        a("s_barrier")
        interleave(a, group_mfmas(es, 3, 3), [use(r, nxt) for r in group_reads(c, en, 0, 0)])
        r1 = [use(r, nxt) for r in group_reads(c, en, 1, 1)]
        if par == 1:
            mf = group_mfmas(es, 4, 4)
            interleave(a, mf[:-1], r1[:-1])
            a(r1[-1]) if len(r1) >= len(mf) else None
            a(f"s_add_u32 s{S_CNT}, s{S_CNT}, 2")
            a(f"s_cmp_lt_u32 s{S_CNT}, {c.NST}")
            a(mf[-1])
        else:
            interleave(a, group_mfmas(es, 4, 4), r1)
            if c.idx == 2 and OPT["sidec"]:
                l2 = lab("Le")
                a(f"s_cmp_eq_u32 s{S_CNT}, 0\ns_cbranch_scc0 {l2}")
                side_flag_deferred(a)
                a(f"{l2}:")
    a(f"s_cbranch_scc1 L_{t}_cloop")
    a("s_waitcnt lgkmcnt(0)")
    stamp(a, st0 + 2)

V_TW0, V_TW1, V_TR = 236, 237, 238
V_SO = 240
V_GC = 244
V_XW, V_XR = 250, 251
S_GB, S_FA = 73, 72
S_FA = 76

def tbuf_write_addr(a, base, wm_shift):
    a(f"""
    v_and_b32 v2, 15, v0
    v_lshrrev_b32 v3, 4, v0
    s_and_b32 s{S_T0}, s{S_LW}, 1
    s_lshl_b32 s{S_T0}, s{S_T0}, 3
    v_or_b32 v4, s{S_T0}, v3
    v_and_b32 v5, 14, v2
    v_xor_b32 v4, v4, v5
    v_lshlrev_b32 v4, 3, v4
    v_lshl_add_u32 v{V_TW0}, v2, 9, v4
    """)
    if wm_shift:
        a(f"s_lshr_b32 s{S_T0}, s{S_LW}, 1\ns_lshl_b32 s{S_T0}, s{S_T0}, 13\nv_add_u32 v{V_TW0}, s{S_T0}, v{V_TW0}")
    a(f"v_xor_b32 v{V_TW1}, 32, v{V_TW0}")
    if base: a(f"v_add_u32 v{V_TW0}, {base}, v{V_TW0}\nv_add_u32 v{V_TW1}, {base}, v{V_TW1}")

def flag_addr(a, base):
    a(f"s_lshl_b32 s{S_FA}, s{S_X}, 9\ns_lshl_b32 s{S_T0+9}, s{S_Q}, 4\ns_add_u32 s{S_FA}, s{S_FA}, s{S_T0+9}")
    a(f"s_lshl_b32 s{S_T0+9}, s{S_LW}, 2\ns_add_u32 s{S_FA}, s{S_FA}, s{S_T0+9}\ns_add_u32 s{S_FA}, s{S_FA}, {base}")

def wave_flag(a):
    a("s_waitcnt vmcnt(0)")
    flag_store(a, S_FA)

def gelu_block2(a, src, n, tmp, vc, dst):
    if OPT["gelupk"]: return gelu_block(a, src, n, tmp, vc, dst)
    for p in range(n): a(f"v_mul_f32 v{tmp+p}, v{src+p}, v{src+p}")
    for p in range(n): a(f"v_fma_f32 v{tmp+p}, v{tmp+p}, v{vc}, v{vc+2}")
    for p in range(n): a(f"v_mul_f32 v{tmp+p}, v{tmp+p}, v{src+p}")
    for p in range(n): a(f"v_exp_f32 v{tmp+p}, v{tmp+p}")
    for p in range(n): a(f"v_add_f32 v{tmp+p}, 1.0, v{tmp+p}")
    for p in range(n): a(f"v_rcp_f32 v{tmp+p}, v{tmp+p}")
    for p in range(n): a(f"v_mul_f32 v{tmp+p}, v{tmp+p}, v{src+p}")
    for p in range(0, n, 2): a(f"v_cvt_pk_bf16_f32 v{dst+p//2}, v{tmp+p}, v{tmp+p+1}")

def conv1_tail_pre(a):
    tbuf_write_addr(a, 0, True)
    gelu_consts(a, V_GC)
    a(f"s_lshl_b32 s{S_T0}, s{S_LW}, 12\nv_lshl_add_u32 v{V_TR}, v0, 4, s{S_T0}")
    a("v_and_b32 v5, 7, v0\nv_lshrrev_b32 v6, 3, v0\nv_lshlrev_b32 v6, 10, v6")
    for k in range(4):
        a(f"s_and_b32 s{S_T0+2}, s{S_LW}, 1\ns_lshl_b32 s{S_T0+2}, s{S_T0+2}, 2\ns_add_u32 s{S_T0+2}, s{S_T0+2}, {k}")
        a(f"v_xor_b32 v7, s{S_T0+2}, v5\nv_lshl_add_u32 v7, v7, 4, v6\nv_add_u32 v{V_SO+k}, {k*8192}, v7")
    a(f"""
    s_lshl_b32 s{S_GB}, s{S_X}, 19
    s_lshl_b32 s{S_T0+9}, s{S_M}, 17
    s_add_u32 s{S_GB}, s{S_GB}, s{S_T0+9}
    s_lshl_b32 s{S_T0+9}, s{S_N}, 7
    s_add_u32 s{S_GB}, s{S_GB}, s{S_T0+9}
    s_lshl_b32 s{S_T0+9}, s{S_LW}, 15
    s_add_u32 s{S_GB}, s{S_GB}, s{S_T0+9}
    s_add_u32 s{S_GB}, s{S_GB}, {WS_H}
    """)
    flag_addr(a, WS_F1)

def read_tag_fast(a):
    a(f"v_mov_b32 v2, {MISC}\nds_read_b64 v[4:5], v2\ns_waitcnt lgkmcnt(0)\nv_readfirstlane_b32 s{S_TAG}, v4\nv_readfirstlane_b32 s{S_FAST}, v5")

def conv1_tail_c(a):
    a(f"v_mov_b32 v2, {MISC}\nds_read_b64 v[4:5], v2")
    a("s_nop 4")
    for jj in range(4):
        gelu_block2(a, V_ACC + jj*8, 8, 64, V_GC, 72 + jj*4)
        if jj == 0: a(f"v_readfirstlane_b32 s{S_TAG}, v4\nv_readfirstlane_b32 s{S_FAST}, v5") if False else None
        for nb in range(2):
            r = 72 + jj*4 + nb*2
            a(f"ds_write_b64 v{V_TW1 if nb else V_TW0}, v[{r}:{r+1}] offset:{jj*128}")
    tstamp(a, 7)
    pair_sync(a, 0, 1)
    a(f"v_readfirstlane_b32 s{S_TAG}, v4\nv_readfirstlane_b32 s{S_FAST}, v5")
    tstamp(a, 8)
    for k in range(4): a(f"ds_read_b128 v[{24+4*k}:{27+4*k}], v{V_TR} offset:{k*1024}")
    a("s_waitcnt lgkmcnt(0)")
    tstamp(a, 9)
    local_stores(a, [f"buffer_store_dwordx4 v[{24+4*k}:{27+4*k}], v{V_SO+k}, {WSR}, s{S_GB} offen {{SC}}" for k in range(4)])
    c_stores_issued(a)
    if OPT["tailst"] and int(OPT["tailst"]) == 1:
        a("s_waitcnt vmcnt(0)"); tstamp(a, 13)
    wave_flag(a)

def c_stores_issued(a):
    if not OPT["seqpre"]: return
    a(f"s_lshl_b32 s{S_T0}, s{S_LW}, 2\ns_add_u32 s{S_T0}, s{S_T0}, {INBOX + 64}\nv_mov_b32 v2, s{S_T0}\nv_mov_b32 v3, 1\nds_write_b32 v2, v3")

C2_T = 131072
C2_X = C2_T + 8192
def conv2_tail_pre(a):
    a(f"s_lshl_b32 s{S_T0}, s{S_LW}, 12\ns_add_u32 s{S_T0}, s{S_T0}, {C2_X}\nv_lshl_add_u32 v{V_XW}, v0, 4, s{S_T0}")
    a(f"s_xor_b32 s{S_T0}, s{S_LW}, 2\ns_lshl_b32 s{S_T0}, s{S_T0}, 12\ns_add_u32 s{S_T0}, s{S_T0}, {C2_X}\nv_lshl_add_u32 v{V_XR}, v0, 4, s{S_T0}")
    tbuf_write_addr(a, C2_T, False)
    gelu_consts(a, V_GC)
    a(f"s_lshr_b32 s{S_T0}, s{S_LW}, 1\ns_lshl_b32 s{S_T0}, s{S_T0}, 8")
    a(f"v_add_u32 v{V_TW0}, s{S_T0}, v{V_TW0}\nv_add_u32 v{V_TW1}, s{S_T0}, v{V_TW1}")
    a(f"""
    v_lshrrev_b32 v2, 4, v0
    s_and_b32 s{S_T0}, s{S_LW}, 1
    s_lshl_b32 s{S_T0}, s{S_T0}, 3
    v_add_u32 v2, s{S_T0}, v2
    v_bfe_u32 v3, v0, 3, 1
    s_lshr_b32 s{S_T0+1}, s{S_LW}, 1
    s_lshl_b32 s{S_T0+1}, s{S_T0+1}, 1
    v_add_u32 v3, s{S_T0+1}, v3
    v_and_b32 v5, 7, v0
    """)
    for k in range(2):
        a(f"v_add_u32 v6, {4*k}, v2\nv_lshl_add_u32 v7, v6, 2, v3")
        a(f"v_lshlrev_b32 v22, 7, v7\nv_lshl_add_u32 v22, v5, 4, v22\nv_add_u32 v{V_TR+k}, {C2_T}, v22")
        a(f"v_bfe_u32 v22, v6, 1, 3\nv_xor_b32 v22, v22, v5\nv_lshlrev_b32 v22, 4, v22\nv_lshl_add_u32 v{V_SO+k}, v7, 10, v22")
    a(f"""
    s_lshl_b32 s{S_GB}, s{S_X}, 18
    s_lshl_b32 s{S_T0+9}, s{S_M}, 16
    s_add_u32 s{S_GB}, s{S_GB}, s{S_T0+9}
    s_lshl_b32 s{S_T0+9}, s{S_N}, 7
    s_add_u32 s{S_GB}, s{S_GB}, s{S_T0+9}
    s_add_u32 s{S_GB}, s{S_GB}, {WS_F}
    """)
    flag_addr(a, WS_F2)

def conv2_tail_c(a):
    a(f"v_mov_b32 v2, {MISC + 8}\nds_read_b32 v4, v2")
    a("s_nop 4")
    l0, l1 = lab("Lk"), lab("Lk")
    a(f"s_cmp_ge_u32 s{S_LW}, 2\ns_cbranch_scc1 {l0}")
    for q in range(4): a(f"ds_write_b128 v{V_XW}, v[{V_ACC+16+4*q}:{V_ACC+19+4*q}] offset:{q*1024}")
    a(f"s_branch {l1}\n{l0}:")
    for q in range(4): a(f"ds_write_b128 v{V_XW}, v[{V_ACC+4*q}:{V_ACC+3+4*q}] offset:{q*1024}")
    a("s_waitcnt lgkmcnt(0)")
    for r in range(16): a(f"v_mov_b32 v{V_ACC+r}, v{V_ACC+16+r}")
    a(f"{l1}:")
    pair_sync(a, 1, 2)
    a(f"v_readfirstlane_b32 s{S_UNS}, v4")
    tstamp(a, 7, 2)
    for q in range(4): a(f"ds_read_b128 v[{64+4*q}:{67+4*q}], v{V_XR} offset:{q*1024}")
    for q in range(4):
        a(f"s_waitcnt lgkmcnt({3-q})")
        for p in (4*q, 4*q+2):
            a(f"v_pk_add_f32 v[{V_ACC+p}:{V_ACC+p+1}], v[{V_ACC+p}:{V_ACC+p+1}], v[{64+p}:{64+p+1}]")
    for jj in range(2):
        gelu_block2(a, V_ACC + jj*8, 8, 80, V_GC, 72 + jj*4)
        for nb in range(2):
            r = 72 + jj*4 + nb*2
            a(f"ds_write_b64 v{V_TW1 if nb else V_TW0}, v[{r}:{r+1}] offset:{jj*128}")
    tstamp(a, 8, 2)
    pair_sync(a, 2, 1)
    for k in range(2): a(f"ds_read_b128 v[{24+4*k}:{27+4*k}], v{V_TR+k}")
    a("s_waitcnt lgkmcnt(0)")
    tstamp(a, 9, 2)
    local_stores(a, [f"buffer_store_dwordx4 v[{24+4*k}:{27+4*k}], v{V_SO+k}, {WSR}, s{S_GB} offen {{SC}}" for k in range(2)])
    if OPT["tailst"] and int(OPT["tailst"]) == 2:
        a("s_waitcnt vmcnt(0)"); tstamp(a, 13, 2)
    wave_flag(a)

def read_misc(a, off, sreg):
    a(f"v_mov_b32 v2, {MISC + off}\nds_read_b32 v3, v2\ns_waitcnt lgkmcnt(0)\nv_readfirstlane_b32 s{sreg}, v3")
def write_misc(a, off, sreg):
    a(f"v_mov_b32 v2, {MISC + off}\nv_mov_b32 v3, s{sreg}\nds_write_b32 v2, v3\ns_waitcnt lgkmcnt(0)")

V_DUMMY = 200
def x_prefetch(a):
    d = V_DUMMY
    a(f"""
    v_lshlrev_b32 v4, 4, v0
    s_mul_i32 s{S_T0}, s{S_QQ}, 1000
    s_mul_i32 s{S_T0+1}, s{S_Q}, 33
    s_add_u32 s{S_T0}, s{S_T0}, s{S_T0+1}
    s_lshl_b32 s{S_T0+1}, s{S_LW}, 3
    s_add_u32 s{S_T0}, s{S_T0}, s{S_T0+1}
    s_sub_u32 s{S_T0}, s{S_T0}, 6
    s_lshl_b32 s{S_T0}, s{S_T0}, 10
    v_add_u32 v5, s{S_T0}, v4
    """)
    for k in range(9):
        a(f"buffer_load_dwordx4 v[{d}:{d+3}], v5, s[{SRD_X}:{SRD_X+3}], 0 offen {OPT['xpf']}")
        a(f"v_add_u32 v5, 1024, v5")

FE_W = 0
FE_A = 131072
def fe_c(a):
    a("v_and_b32 v2, 15, v0\nv_lshrrev_b32 v3, 4, v0")
    swz_of(a, 2, 4, S_T0+2)
    a(f"v_xor_b32 v4, v4, v3\nv_lshlrev_b32 v4, 4, v4\nv_lshl_add_u32 v8, v2, 7, v4\nv_add_u32 v8, {FE_A}, v8\nv_xor_b32 v9, 64, v8")
    a(f"s_lshl_b32 s{S_T0}, s{S_LW}, 15\nv_lshl_add_u32 v10, v0, 4, s{S_T0}")
    for r in range(16): a(f"v_mov_b32 v{32+r}, 0")
    a(f"""
    v_lshlrev_b32 v4, 11, v2
    v_lshl_add_u32 v{V_SO}, v3, 4, v4
    v_add_u32 v{V_SO+1}, 0x8000, v{V_SO}
    s_lshr_b32 s{S_T0}, s{S_Q}, 2
    s_lshl_b32 s{S_T0}, s{S_T0}, 16
    s_and_b32 s{S_T0+1}, s{S_Q}, 3
    s_lshl_b32 s{S_T0+1}, s{S_T0+1}, 9
    s_add_u32 s{S_T0}, s{S_T0}, s{S_T0+1}
    s_lshl_b32 s{S_T0+1}, s{S_LW}, 7
    s_add_u32 s{S_T0}, s{S_T0}, s{S_T0+1}
    s_lshl_b32 s{S_T0+1}, s{S_X}, 19
    s_add_u32 s{S_T0}, s{S_T0}, s{S_T0+1}
    s_add_u32 s{S_GB}, s{S_T0}, {WS_P}
    v_mov_b32 v6, {f2h(126.0)}
    v_mov_b32 v7, {f2h(-126.0)}
    """)
    flag_addr(a, WS_F3)
    wreg = OPT["fewreg"]
    def wloc(sidx, nbl):
        if wreg and sidx < min(FE_SPLIT, 12): return 128 + (sidx*2 + nbl) * 4
        return 64 + (sidx & 3) * 16 + 8 + 4*nbl
    if wreg:
        a("s_barrier")
        for sidx in range(min(FE_SPLIT, 12)):
            for nbl in range(2):
                r = wloc(sidx, nbl)
                a(f"ds_read_b128 v[{r}:{r+3}], v10 offset:{nbl*16384 + sidx*1024}")
            if sidx % 4 == 3: a("s_waitcnt lgkmcnt(0)")
    def rd(sidx):
        du, h = sidx >> 1, sidx & 1
        reg = 64 + (sidx & 3) * 16
        out = []
        if not (wreg and sidx < min(FE_SPLIT, 12)):
            out = [f"ds_read_b128 v[{reg+8+4*nbl}:{reg+11+4*nbl}], v10 offset:{nbl*16384 + sidx*1024}" for nbl in range(2)]
        out += [f"ds_read_b128 v[{reg+4*tb}:{reg+4*tb+3}], v{8+h} offset:{du*4096 + tb*2048}" for tb in range(2)]
        return out
    for ph in range(4):
        a("s_barrier")
        if ph == 0: stamp(a, 7)
        steps = list(range(4*ph, 4*ph+4))
        n = len(rd(steps[0]))
        for sidx in steps[:3]:
            for r in rd(sidx): a(r)
        for j, sidx in enumerate(steps):
            a(f"s_waitcnt lgkmcnt({[2*n, 2*n, n, 0][j]})")
            reg = 64 + (sidx & 3) * 16
            mf = []
            for tb in range(2):
                for nbl in range(2):
                    acc = 32 + (tb*2 + nbl) * 4
                    w = wloc(sidx, nbl)
                    mf.append(f"v_mfma_f32_16x16x32_bf16 v[{acc}:{acc+3}], v[{w}:{w+3}], v[{reg+4*tb}:{reg+4*tb+3}], v[{acc}:{acc+3}]")
            interleave(a, mf, rd(steps[3]) if j == 0 else [])
    a("s_barrier")
    stamp(a, 8)
    a("s_nop 7")
    a(f"s_mov_b32 s{S_T0}, {f2h(C2LOG2E)}")
    for r in range(16): a(f"v_mul_f32 v{32+r}, s{S_T0}, v{32+r}")
    l0 = lab("Lr")
    a(f"s_cmp_eq_u32 s{S_UNS}, 0\ns_cbranch_scc0 {l0}")
    for r in range(16): a(f"v_med3_f32 v{32+r}, v{32+r}, v7, v6")
    for r in range(16): a(f"v_exp_f32 v{32+r}, v{32+r}")
    a(f"{l0}:")
    st = []
    for tb in range(2):
        for nbl in range(2):
            acc = 32 + (tb*2 + nbl) * 4
            st.append(f"buffer_store_dwordx4 v[{acc}:{acc+3}], v{V_SO+tb}, {WSR}, s{S_GB} offen offset:{nbl*64} {{SC}}")
    local_stores(a, st)
    wave_flag(a)

FE_SPLIT = 12
def fe_l_wpre(a, half):
    s0, s1 = (0, FE_SPLIT) if half == 0 else (FE_SPLIT, 16)
    a(f"s_and_b32 s{S_T0}, s{S_Q}, 3\ns_lshl_b32 s{S_T0}, s{S_T0}, 17\ns_add_u32 s{S_T0}, s{S_T0}, {WS_WF}")
    a(f"s_lshl_b32 s{S_T0+1}, s{S_LW}, 15\ns_add_u32 s{S_T0}, s{S_T0}, s{S_T0+1}")
    a("v_lshlrev_b32 v5, 4, v0")
    n = 0
    for st in range(s0, s1):
        for nb in range(2):
            off = nb * 16384 + st * 1024
            a(f"s_add_u32 m0, s{S_T0+1}, {FE_W + off}")
            a(f"s_add_u32 s{S_T0+2}, s{S_T0}, {off}")
            a(f"buffer_load_dwordx4 v5, {WSR}, s{S_T0+2} offen {OPT['wold']} lds")
            n += 1
    return n

def fe_l(a, sch):
    a(f"s_lshr_b32 s{S_T0}, s{S_Q}, 3\ns_lshl_b32 s{S_T0}, s{S_T0}, 7\ns_lshl_b32 s{S_T0+1}, s{S_X}, 9\ns_add_u32 s{S_T0}, s{S_T0}, s{S_T0+1}\ns_add_u32 s{S_T0}, s{S_T0}, {WS_F2}")
    a(f"v_and_b32 v6, 31, v0\nv_lshlrev_b32 v6, 2, v6\nv_add_u32 v6, s{S_T0}, v6")
    a(f"v_lshrrev_b32 v2, 3, v0\ns_lshl_b32 s{S_T0}, s{S_LW}, 3\nv_add_u32 v2, s{S_T0}, v2\nv_and_b32 v3, 7, v0")
    swz_of(a, 2, 4, S_T0+2)
    a(f"v_xor_b32 v4, v4, v3\nv_lshlrev_b32 v4, 4, v4\nv_lshl_add_u32 v4, v2, 10, v4")
    if OPT["fewreg"]:
        a("s_waitcnt vmcnt(0) lgkmcnt(0)")
        a("s_barrier")
    poll(a, 6, 7)
    stamp(a, 7)
    a(f"s_lshr_b32 s{S_T0}, s{S_Q}, 2\ns_lshl_b32 s{S_T0}, s{S_T0}, 15\ns_lshl_b32 s{S_T0+1}, s{S_X}, 18\ns_add_u32 s{S_T0}, s{S_T0}, s{S_T0+1}\ns_add_u32 s{S_T0}, s{S_T0}, {WS_F}")
    a(f"s_lshl_b32 s{S_T0+1}, s{S_LW}, 10")
    a(f"s_mov_b32 s{S_T0+8}, s{S_T0}\ns_mov_b32 s{S_T0+9}, s{S_T0+1}")
    def fdma(d0, d1):
        for du in range(d0, d1):
            a(f"s_add_u32 m0, s{S_T0+9}, {FE_A + du*4096}")
            a(f"s_add_u32 s{S_T0+2}, s{S_T0+8}, {du*128}")
            a(f"buffer_load_dwordx4 v4, {WSR}, s{S_T0+2} offen sc1 lds")
    def wowarm():
        if not OPT["wowarm"]: return 0
        a(f"s_lshl_b32 s{S_T0}, s{S_Q}, 14\ns_lshl_b32 s{S_T0+1}, s{S_LW}, 12\ns_add_u32 s{S_T0}, s{S_T0}, s{S_T0+1}\ns_add_u32 s{S_T0}, s{S_T0}, {WS_WO}")
        a("v_lshlrev_b32 v5, 4, v0")
        for k in range(4): a(f"buffer_load_dwordx4 v[{V_DUMMY}:{V_DUMMY+3}], v5, {WSR}, s{S_T0} offen offset:{k*1024} {OPT['wold']}")
        return 4
    if FE_SPLIT == 16:
        fdma(0, 8)
        for ph in range(4):
            a(f"s_waitcnt vmcnt({6 - 2*ph}) lgkmcnt(0)")
            a("s_barrier")
        wowarm()
        a("s_barrier")
        return
    fdma(0, 4)
    a("s_waitcnt vmcnt(2) lgkmcnt(0)")
    a("s_barrier")
    fdma(4, 8)
    nw = fe_l_wpre(a, 1) if not OPT["stg"] else 0
    a(f"s_waitcnt vmcnt({4 + nw})")
    a("s_barrier")
    nwarm = wowarm()
    a(f"s_waitcnt vmcnt({2 + nw + nwarm})")
    a("s_barrier")
    a(f"s_waitcnt vmcnt({nwarm})")
    a("s_barrier")
    a("s_barrier")

J_ACT = 0
J_P   = 65536
J_Q   = 65536 + 16384
def joint_l(a):
    a(f"s_mov_b32 s{S_T0}, {WS_QE}\ns_cmp_eq_u32 s{S_UNS}, 0\ns_cselect_b32 s{S_T0}, s{S_T0}, {WS_QR}")
    a(f"s_lshl_b32 s{S_T0+1}, s{S_B}, 14\ns_add_u32 s{S_T0}, s{S_T0}, s{S_T0+1}")
    a(f"s_lshl_b32 s{S_T0+1}, s{S_LW}, 8\ns_add_u32 s{S_T0}, s{S_T0}, s{S_T0+1}")
    a(f"s_lshl_b32 s{S_T0+1}, s{S_LW}, 12")
    a("v_lshrrev_b32 v2, 4, v0\nv_and_b32 v3, 15, v0\nv_lshlrev_b32 v3, 4, v3\nv_lshl_add_u32 v4, v2, 10, v3")
    for j in range(4):
        a(f"s_add_u32 m0, s{S_T0+1}, {J_Q + j*1024}")
        a("s_nop 0")
        a(f"buffer_load_dwordx4 v4, {WSR}, s{S_T0} offen sc1 lds")
        a(f"s_add_u32 s{S_T0}, s{S_T0}, 4096")
    a(f"""
    v_lshrrev_b32 v2, 3, v0
    v_and_b32 v3, 7, v0
    v_and_b32 v5, 6, v2
    v_xor_b32 v3, v3, v5
    v_lshlrev_b32 v3, 4, v3
    v_lshl_add_u32 v5, v2, 11, v3
    s_lshr_b32 s{S_T0}, s{S_Q}, 2
    s_lshl_b32 s{S_T0}, s{S_T0}, 6
    s_lshl_b32 s{S_T0+2}, s{S_X}, 9
    s_add_u32 s{S_T0}, s{S_T0}, s{S_T0+2}
    s_add_u32 s{S_T0}, s{S_T0}, {WS_F3}
    v_and_b32 v6, 15, v0
    v_lshlrev_b32 v6, 2, v6
    v_add_u32 v9, s{S_T0}, v6
    s_waitcnt vmcnt(0)
    """)
    a(f"v_and_b32 v6, 7, v0\nv_lshlrev_b32 v6, 4, v6\ns_lshl_b32 s{S_T0}, s{S_LW}, 12\ns_add_u32 s{S_T0}, s{S_T0}, {J_Q}\nv_add_u32 v6, s{S_T0}, v6")
    for sidx in range(16):
        for hh in range(2):
            r = 128 + sidx*8 + hh*4
            a(f"ds_read_b128 v[{r}:{r+3}], v6 offset:{sidx*256 + hh*128}")
        if sidx % 4 == 3: a("s_waitcnt lgkmcnt(0)")
    poll(a, 9, 14)
    stamp(a, 9)
    a(f"""
    s_lshl_b32 s{S_T0}, s{S_X}, 19
    s_lshl_b32 s{S_T0+1}, s{S_Q}, 14
    s_add_u32 s{S_T0}, s{S_T0}, s{S_T0+1}
    s_add_u32 s{S_T0}, s{S_T0}, {WS_P}
    s_lshl_b32 s{S_T0+1}, s{S_LW}, 7
    s_add_u32 s{S_T0}, s{S_T0}, s{S_T0+1}
    s_lshl_b32 s{S_T0+1}, s{S_LW}, 10
    """)
    for k in range(4):
        a(f"s_add_u32 m0, s{S_T0+1}, {J_P + k*4096}")
        a("s_nop 0")
        a(f"buffer_load_dwordx4 v5, {WSR}, s{S_T0} offen sc1 lds")
        a(f"s_add_u32 s{S_T0}, s{S_T0}, 512")
    a(f"""
    v_lshrrev_b32 v2, 3, v0
    v_and_b32 v5, 6, v2
    s_lshl_b32 s{S_T0}, s{S_LW}, 1
    v_xor_b32 v5, s{S_T0}, v5
    v_lshlrev_b32 v5, 4, v5
    v_lshl_add_u32 v7, v2, 7, v5
    v_add_u32 v7, {J_P}, v7
    s_lshl_b32 s{S_T0}, s{S_LW}, 10
    v_lshlrev_b32 v8, 4, v0
    v_add_u32 v8, s{S_T0}, v8
    v_mov_b32 v10, 1.0
    v_mov_b32 v11, 1.0
    v_mov_b32 v12, -2.0
    v_mov_b32 v13, -2.0
    s_waitcnt vmcnt(0)
    s_barrier
    """)
    def prd(sidx):
        r = 16 + (sidx & 1) * 8
        return [f"ds_read_b128 v[{r}:{r+3}], v7 offset:{sidx*1024}", f"ds_read_b128 v[{r+4}:{r+7}], v7 offset:{sidx*1024 + 16}"]
    def body(safe):
        for r in prd(0): a(r)
        for sidx in range(16 if not OPT["notanh"] else 2):
            if sidx + 1 < 16:
                for r in prd(sidx+1): a(r)
            if sidx in (0, 2): a("s_waitcnt lgkmcnt(2)")
            elif sidx + 1 < 16: a("s_waitcnt lgkmcnt(3)")
            else: a("s_waitcnt lgkmcnt(1)")
            if sidx >= 4 and not OPT["nobar"]:
                a("s_barrier")
            p = 16 + (sidx & 1) * 8
            q = 128 + sidx * 8
            t = 32
            pk = OPT["pk"]
            if safe:
                if pk:
                    for e in range(0, 8, 2): a(f"v_pk_fma_f32 v[{t+e}:{t+e+1}], v[{p+e}:{p+e+1}], v[{q+e}:{q+e+1}], v[10:11]")
                else:
                    for e in range(8): a(f"v_fma_f32 v{t+e}, v{p+e}, v{q+e}, 1.0")
            else:
                for e in range(8): a(f"v_add_f32 v{t+e}, v{p+e}, v{q+e}")
                for e in range(8): a(f"v_exp_f32 v{t+e}, v{t+e}")
                for e in range(8): a(f"v_add_f32 v{t+e}, 1.0, v{t+e}")
            for e in range(8): a(f"v_rcp_f32 v{t+e}, v{t+e}")
            if pk:
                for e in range(0, 8, 2): a(f"v_pk_fma_f32 v[{t+e}:{t+e+1}], v[{t+e}:{t+e+1}], v[12:13], v[10:11]")
            else:
                for e in range(8): a(f"v_fma_f32 v{t+e}, v{t+e}, -2.0, 1.0")
            w = 40 + (sidx & 1) * 4
            for e in range(0, 8, 2): a(f"v_cvt_pk_bf16_f32 v{w+e//2}, v{t+e}, v{t+e+1}")
            a(f"ds_write_b128 v8, v[{w}:{w+3}] offset:{J_ACT + sidx*4096}")
            if sidx == 1:
                a("s_waitcnt lgkmcnt(0)")
                a("s_barrier")
        a("s_waitcnt lgkmcnt(1)")
        if not OPT["nobar"]: a("s_barrier")
        a("s_waitcnt lgkmcnt(0)")
        if not OPT["nobar"]: a("s_barrier")
    l0, l1 = lab("Lu"), lab("Lu")
    if OPT["lprio"]: a(f"s_setprio {OPT['lprio']}")
    a(f"s_cmp_eq_u32 s{S_UNS}, 0\ns_cbranch_scc0 {l0}")
    body(True)
    a(f"s_branch {l1}\n{l0}:")
    body(False)
    a(f"{l1}:")

J_O = 98304
NEPI = 4
def interleave2(a, mf, others):
    n = len(others); k = 0
    for i, m in enumerate(mf):
        a(m)
        take = -(-(n - k) // (len(mf) - i))
        for _ in range(take):
            a(others[k]); k += 1

def joint_store(a, p, allwaves):
    nrow = 8 if allwaves else 16
    wv = S_WAVE if allwaves else S_LW
    sh = 3 if allwaves else 4
    a(f"""
    v_lshrrev_b32 v2, 5, v0
    v_and_b32 v3, 31, v0
    s_lshl_b32 s{S_T0}, s{wv}, {sh + 9}
    s_add_u32 s{S_T0}, s{S_T0}, {J_O + p*32768}
    v_lshl_add_u32 v4, v0, 4, s{S_T0}
    v_lshrrev_b32 v5, 3, v3
    v_lshlrev_b32 v5, 8, v5
    v_and_b32 v6, 7, v3
    v_lshl_add_u32 v5, v6, 4, v5
    v_lshl_add_u32 v5, v2, 10, v5
    s_mul_i32 s{S_T0}, s{S_B}, 1000
    s_mul_i32 s{S_T0+1}, s{S_QQ}, 250
    s_add_u32 s{S_T0}, s{S_T0}, s{S_T0+1}
    s_lshl_b32 s{S_T0+1}, s{S_Q}, 3
    s_add_u32 s{S_T0}, s{S_T0}, s{S_T0+1}
    s_lshl_b32 s{S_T0}, s{S_T0}, 13
    s_lshl_b32 s{S_T0+2}, s{wv}, {sh + 10}
    s_add_u32 s{S_T0}, s{S_T0}, s{S_T0+2}
    s_add_u32 s{S_T0}, s{S_T0}, {p*128}
    s_sub_u32 s{S_T0+3}, 250, s{S_T0+1}
    s_lshl_b32 s{S_T0+3}, s{S_T0+3}, 3
    s_lshl_b32 s{S_T0+2}, s{wv}, {sh}
    s_cmp_gt_u32 s{S_T0+3}, s{S_T0+2}
    s_cselect_b32 s{S_T0+2}, 0, {hex(OOB)}
    v_add_u32 v5, s{S_T0}, v5
    v_or_b32 v5, s{S_T0+2}, v5
    """)
    return nrow // 2

def joint_store_issue(a, ninstr, pace=None):
    for k in range(ninstr): a(f"ds_read_b128 v[{16+4*k}:{19+4*k}], v4 offset:{k*1024}")
    for k in range(ninstr):
        a(f"s_waitcnt lgkmcnt({ninstr-1-k})")
        if pace is not None and k > pace: a(f"s_waitcnt vmcnt({pace})")
        a(f"s_mov_b32 s{S_T0}, {k*2048}")
        a(f"buffer_store_dwordx4 v[{16+4*k}:{19+4*k}], v5, s[{SRD_OUT}:{SRD_OUT+3}], s{S_T0} offen {OPT['scout']}")

def joint_c(a):
    ACC = 128; WR = 48; AF = 12; NF = 20; TMP = 44
    def acc(rb, cb): return ACC + (cb*2 + rb) * 16
    a(f"s_lshl_b32 s{S_T0+4}, s{S_LW}, 17\ns_add_u32 s{S_T0+4}, s{S_T0+4}, {WS_WO}")
    a("v_lshlrev_b32 v4, 4, v0")
    def wreg(f): return WR + (f % NF) * 4
    def wld(f):
        out = [f"buffer_load_dwordx4 v[{wreg(f)}:{wreg(f)+3}], v4, {WSR}, s{S_T0+4} offen offset:{(f%4)*1024} {OPT['wold']}"]
        if f % 4 == 3: out.append(f"s_add_u32 s{S_T0+4}, s{S_T0+4}, 4096")
        return out
    vm = []
    issued = 0
    while issued < int(OPT["wo_pre"]):
        for r in wld(issued): a(r)
        vm.append(issued); issued += 1
    a("v_and_b32 v2, 31, v0\nv_lshrrev_b32 v3, 5, v0\nv_lshlrev_b32 v5, 10, v3\nv_lshl_add_u32 v5, v2, 4, v5")
    a(f"s_lshl_b32 s{S_T0}, s{S_LW}, 7\ns_add_u32 s{S_T0}, s{S_T0}, {J_O}\nv_lshlrev_b32 v7, 11, v3\nv_lshl_add_u32 v7, v2, 2, v7\nv_add_u32 v7, s{S_T0}, v7")
    a("s_barrier")
    while issued < NF:
        for r in wld(issued): a(r)
        vm.append(issued); issued += 1
    a("s_barrier")
    stamp(a, 10)
    def ard(n):
        sidx = n & 15
        r = AF + (n & 1) * 16
        return [f"ds_read_b128 v[{r+4*(2*h+rb)}:{r+4*(2*h+rb)+3}], v5 offset:{J_ACT + sidx*4096 + h*2048 + rb*512}" for h in range(2) for rb in range(2)]
    def epi(half):
        out = []
        for rb in range(2):
            for r in range(16):
                tmp = TMP + ((rb*16 + r) & 3)
                out.append(f"v_cvt_pk_bf16_f32 v{tmp}, v{acc(rb, 2*half) + r}, v{acc(rb, 2*half+1) + r}")
                out.append(f"ds_write_b32 v7, v{tmp} offset:{half*32768 + (32*rb + (r&3) + 8*(r>>2))*512}")
        return out
    for r in ard(0): a(r)
    pend = []
    consumed = 0
    for n in range(32):
        p, sidx = n >> 4, n & 15
        cbs = [0, 1, 2] if p == 0 else [3]
        nfr = 2 * len(cbs)
        first = consumed
        if OPT["steps"]: a("s_memtime s[74:75]")
        need = first + nfr - 1
        last = vm.index(need)
        if OPT["steps"]:
            a("s_waitcnt lgkmcnt(0)\nv_writelane_b32 v1, s74, %d\ns_memtime s[74:75]" % (2*n))
        a(f"s_waitcnt vmcnt({len(vm) - 1 - last}) lgkmcnt(0)")
        if OPT["steps"]: a("v_writelane_b32 v1, s74, %d" % (2*n+1))
        if p == 0 and 2 <= sidx + 1 <= 15 and not OPT["nobar"]:
            a("s_barrier")
        if n == 16 + NEPI:
            a("s_barrier")
        others = ard(n + 1) if n + 1 < 32 else []
        lim = min(128, first + NF)
        ld = []
        while issued < lim:
            ld += wld(issued); vm.append(issued); issued += 1
        others = others + ld
        if p == 1 and pend:
            k = min(len(pend), -(-64 // NEPI))
            others += pend[:k]; pend = pend[k:]
        mf = []
        af = AF + (n & 1) * 16
        for h in range(2):
            for rb in range(2):
                for ci, cb in enumerate(cbs):
                    d = acc(rb, cb)
                    w = wreg(first + h * len(cbs) + ci)
                    c = "0" if (sidx == 0 and h == 0) else f"v[{d}:{d+15}]"
                    mf.append(f"v_mfma_f32_32x32x16_bf16 v[{d}:{d+15}], v[{af+4*(2*h+rb)}:{af+4*(2*h+rb)+3}], v[{w}:{w+3}], {c}")
        interleave2(a, mf, others)
        consumed += nfr
        if n == 15:
            pend = epi(0)
    assert not pend and consumed == 128
    stamp(a, 11)
    a("s_nop 7\ns_nop 7")
    for o in epi(1): a(o)
    a("s_waitcnt lgkmcnt(0)")
    if OPT["steps"]:
        a(f"s_lshl_b32 s{S_T0}, s{S_WG}, 10\ns_lshl_b32 s{S_T0+1}, s{S_LW}, 8\ns_add_u32 s{S_T0}, s{S_T0}, s{S_T0+1}\ns_add_u32 s{S_T0}, s{S_T0}, {WS_STAMP + 0x10000}")
        a(f"v_lshlrev_b32 v2, 2, v0\nbuffer_store_dword v1, v2, {WSR}, s{S_T0} offen")
    n = joint_store(a, 1, True)
    a("s_barrier")
    joint_store_issue(a, n)

def relayout_loads(a, R=32):
    U = S_T0 + 8
    a(f"s_mov_b32 s{U}, s{S_WG}")
    a(f"s_lshr_b32 s{U+1}, s{U}, 2\ns_and_b32 s{U+1}, s{U+1}, 15\ns_and_b32 s{U+2}, s{U}, 3")
    a(f"s_cmp_ge_u32 s{U}, 64")
    a(f"s_cselect_b32 s{SRD_T}, s{S_PWF}, s{S_PWO}")
    a(f"s_cselect_b32 s{SRD_T+1}, s{S_PWF+1}, s{S_PWO+1}")
    a(f"s_and_b32 s{SRD_T+1}, s{SRD_T+1}, 0xffff")
    a(f"s_mov_b32 s{SRD_T+2}, 524288\ns_mov_b32 s{SRD_T+3}, 0x20000")
    a(f"""
    v_and_b32 v2, 15, v0
    v_lshrrev_b32 v3, 4, v0
    v_lshlrev_b32 v4, 13, v3
    v_lshl_add_u32 v4, v2, 4, v4
    s_lshl_b32 s{U+3}, s{U+1}, 15
    s_lshl_b32 s{U+4}, s{U+2}, 8
    s_add_u32 s{U+3}, s{U+3}, s{U+4}
    v_add_u32 v4, s{U+3}, v4
    v_add_u32 v5, 4096, v4
    """)
    for e in range(8):
        a(f"buffer_load_dwordx4 v[{R+4*e}:{R+3+4*e}], v{4 + (e>>2)}, s[{SRD_T}:{SRD_T+3}], 0 offen offset:{(e&3)*1024}")

RL_LDS = 154624
def relayout_finish(a, nyounger, R=32):
    U = S_T0 + 8
    a(f"s_mov_b32 s{U}, s{S_WG}")
    a(f"s_lshr_b32 s{U+1}, s{U}, 2\ns_and_b32 s{U+1}, s{U+1}, 15\ns_and_b32 s{U+2}, s{U}, 3")
    a("v_and_b32 v2, 15, v0\nv_lshrrev_b32 v3, 4, v0")
    l0, l1 = lab("Lw"), lab("Lw")
    a(f"s_cmp_ge_u32 s{U}, 64\ns_cbranch_scc1 {l0}")
    a(f"""
    v_and_b32 v6, 7, v2
    v_lshlrev_b32 v5, 6, v6
    v_and_b32 v6, 1, v3
    v_lshl_add_u32 v5, v6, 9, v5
    v_lshrrev_b32 v6, 1, v3
    v_lshl_add_u32 v5, v6, 12, v5
    v_lshrrev_b32 v6, 3, v2
    v_lshl_add_u32 v5, v6, 11, v5
    v_add_u32 v5, {RL_LDS}, v5
    """)
    for b in range(8): a(f"v_add_u32 v{24+b}, {(b&1)*1024 + (b>>1)*16}, v5")
    a(f"s_lshl_b32 s{U+3}, s{U+2}, 17\ns_add_u32 s{U+3}, s{U+3}, {WS_WO}")
    a(f"s_mul_i32 s{U+4}, s{U+1}, 6144\ns_add_u32 s{U+4}, s{U+4}, s{U+3}")
    a(f"s_lshl_b32 s{U+5}, s{U+1}, 11\ns_add_u32 s{U+5}, s{U+5}, s{U+3}\ns_add_u32 s{U+5}, s{U+5}, 98304")
    a(f"s_mov_b32 s{U+6}, 0")
    a(f"s_branch {l1}\n{l0}:")
    a(f"""
    v_lshrrev_b32 v5, 1, v2
    v_lshlrev_b32 v5, 10, v5
    v_and_b32 v6, 1, v2
    v_lshl_add_u32 v5, v6, 7, v5
    v_lshl_add_u32 v5, v3, 8, v5
    v_add_u32 v5, {RL_LDS}, v5
    """)
    for b in range(8): a(f"v_add_u32 v{24+b}, {b*16}, v5")
    a(f"s_lshl_b32 s{U+4}, s{U+2}, 17\ns_lshl_b32 s{U+5}, s{U+1}, 10\ns_add_u32 s{U+4}, s{U+4}, s{U+5}\ns_add_u32 s{U+4}, s{U+4}, {WS_WF}")
    a(f"s_mov_b32 s{U+6}, 1")
    a(f"{l1}:")
    a(f"s_mov_b32 s{U+1}, 0x05040100\ns_mov_b32 s{U+2}, 0x07060302")
    a(f"s_waitcnt vmcnt({nyounger})")
    for b in range(8):
        d = b >> 1
        sel = U + 1 + (b & 1)
        for m in range(4):
            lo, hi = R + 4*(2*m) + d, R + 4*(2*m+1) + d
            a(f"v_perm_b32 v{64+4*b+m}, v{hi}, v{lo}, s{sel}")
        a(f"ds_write_b128 v{24+b}, v[{64+4*b}:{67+4*b}]")
    a(f"v_lshlrev_b32 v2, 4, v0\nv_add_u32 v3, {RL_LDS}, v2\ns_waitcnt lgkmcnt(0)")
    for f in range(8): a(f"ds_read_b128 v[{64+4*f}:{67+4*f}], v3 offset:{f*1024}")
    l2, l3 = lab("Lw"), lab("Lw")
    a(f"s_cmp_eq_u32 s{U+6}, 0\ns_cbranch_scc0 {l2}")
    for f in range(8):
        h, cb = f >> 2, f & 3
        if cb < 3: a(f"s_add_u32 s{U+1}, s{U+4}, {(3*h + cb)*1024}")
        else: a(f"s_add_u32 s{U+1}, s{U+5}, {h*1024}")
        a(f"s_waitcnt lgkmcnt({7-f})")
        a(f"buffer_store_dwordx4 v[{64+4*f}:{67+4*f}], v2, {WSR}, s{U+1} offen sc1")
    a(f"s_branch {l3}\n{l2}:")
    for f in range(8):
        a(f"s_add_u32 s{U+1}, s{U+4}, {f*16384}")
        a(f"s_waitcnt lgkmcnt({7-f})")
        a(f"buffer_store_dwordx4 v[{64+4*f}:{67+4*f}], v2, {WSR}, s{U+1} offen sc1")
    a(f"{l3}:")

def relayout_flag(a):
    U = S_T0 + 8
    a(f"s_lshl_b32 s{U}, s{S_WG}, 2\ns_add_u32 s{U}, s{U}, {WS_RL}")
    a("s_waitcnt vmcnt(0)")
    flag_store(a, U, fast_variant=False)

GE_LDS = 17408
def ge_loads(a):
    U = S_T0 + 8
    a(f"s_sub_u32 s{U}, s{S_WG}, 224")
    mk_srd(a, SRD_T, S_PWG, 524288)
    a(f"""
    v_lshrrev_b32 v2, 1, v0
    v_and_b32 v3, 1, v0
    v_lshlrev_b32 v3, 4, v3
    v_lshl_add_u32 v2, v2, 10, v3
    s_lshl_b32 s{U+1}, s{U}, 5
    v_add_u32 v2, s{U+1}, v2
    s_mov_b32 s{U+2}, 0
    """)
    for k in range(16):
        a(f"s_mov_b32 m0, {GE_LDS + k*1024}")
        a(f"s_nop 0")
        a(f"buffer_load_dwordx4 v2, s[{SRD_T}:{SRD_T+3}], s{U+2} offen lds")
        a(f"s_add_u32 s{U+2}, s{U+2}, 32768")
    mk_srd(a, SRD_T, S_PG, 16384)
    a(f"""
    v_and_b32 v4, 15, v0
    v_lshrrev_b32 v5, 4, v0
    v_lshlrev_b32 v6, 10, v4
    v_lshl_add_u32 v6, v5, 4, v6
    """)
    for sidx in range(16):
        a(f"buffer_load_dwordx4 v[{64+4*sidx}:{67+4*sidx}], v6, s[{SRD_T}:{SRD_T+3}], 0 offen offset:{sidx*64}")

GE_R = 100
def ge_loads_c(a):
    U = S_T0 + 8
    a(f"s_sub_u32 s{U}, s{S_WG}, 224")
    mk_srd(a, SRD_T, S_PWG, 524288)
    a(f"""
    v_lshrrev_b32 v2, 1, v0
    v_and_b32 v3, 1, v0
    v_lshlrev_b32 v3, 4, v3
    v_lshl_add_u32 v2, v2, 10, v3
    s_lshl_b32 s{U+1}, s{U}, 5
    v_add_u32 v2, s{U+1}, v2
    s_mov_b32 s{U+2}, 0
    """)
    for k in range(16):
        a(f"buffer_load_dwordx4 v[{GE_R+4*k}:{GE_R+3+4*k}], v2, s[{SRD_T}:{SRD_T+3}], s{U+2} offen")
        a(f"s_add_u32 s{U+2}, s{U+2}, 32768")

def ge_stage_l(a, nyounger):
    a(f"v_lshlrev_b32 v2, 4, v0\nv_add_u32 v2, {GE_LDS}, v2")
    a(f"s_waitcnt vmcnt({nyounger})")
    for k in range(16):
        a(f"ds_write_b128 v2, v[{GE_R+4*k}:{GE_R+3+4*k}] offset:{k*1024}")
    a("s_waitcnt lgkmcnt(0)")
    a(f"v_mov_b32 v2, {INBOX + 48}\nv_mov_b32 v3, 1\nds_write_b32 v2, v3\ns_waitcnt lgkmcnt(0)")

G_R = 172
def ge_gloads_c(a):
    mk_srd(a, SRD_T, S_PG, 16384)
    a("v_lshrrev_b32 v4, 2, v0\nv_and_b32 v5, 3, v0\nv_lshlrev_b32 v6, 10, v4\nv_lshl_add_u32 v6, v5, 4, v6")
    for sidx in range(16):
        a(f"buffer_load_dwordx4 v[{G_R+4*sidx}:{G_R+3+4*sidx}], v6, s[{SRD_T}:{SRD_T+3}], 0 offen offset:{sidx*64}")

def ge_finish_c(a):
    a("v_and_b32 v4, 15, v0\nv_lshrrev_b32 v5, 4, v0\nv_lshl_add_u32 v4, v4, 2, v5\nv_lshlrev_b32 v4, 2, v4")
    for r in range(64):
        a(f"ds_bpermute_b32 v{G_R+r}, v4, v{G_R+r}")
        if r % 8 == 7: a("s_waitcnt lgkmcnt(0)")
    l0, l1 = lab("Lg"), lab("Lg")
    a(f"v_mov_b32 v2, {INBOX + 48}\ns_mov_b32 s{S_T0+16}, 0\n{l0}:\nds_read_b32 v3, v2")
    a(f"s_add_u32 s{S_T0+16}, s{S_T0+16}, 1\ns_cmp_ge_u32 s{S_T0+16}, {SPIN_MAX*8}\ns_cbranch_scc1 {l1}")
    a(f"s_waitcnt lgkmcnt(0)\nv_cmp_eq_u32 vcc, 0, v3\ns_cbranch_vccnz {l0}\n{l1}:\ns_waitcnt lgkmcnt(0)")
    ge_finish(a, G_R, True)

def ge_finish(a, GR=64, defer=False):
    U = S_T0 + 8
    TR = 128 if GR == 64 else 64
    a(f"s_sub_u32 s{U}, s{S_WG}, 224")
    a(f"""
    v_and_b32 v4, 15, v0
    v_lshrrev_b32 v5, 4, v0
    v_lshrrev_b32 v7, 2, v4
    v_lshl_add_u32 v7, v5, 3, v7
    v_lshlrev_b32 v7, 5, v7
    v_and_b32 v6, 3, v4
    v_lshl_add_u32 v7, v6, 3, v7
    v_add_u32 v7, {GE_LDS}, v7
    v_mov_b32 v32, 0
    v_mov_b32 v33, 0
    v_mov_b32 v34, 0
    v_mov_b32 v35, 0
    s_waitcnt vmcnt(0)
    """)
    for sidx in range(16):
        r = TR + 4*sidx
        a(f"ds_read_b64_tr_b16 v[{r}:{r+1}], v7 offset:{sidx*1024}")
        a(f"ds_read_b64_tr_b16 v[{r+2}:{r+3}], v7 offset:{sidx*1024 + 128}")
        if sidx % 4 == 3: a("s_waitcnt lgkmcnt(0)")
    for sidx in range(16):
        r = TR + 4*sidx
        a(f"v_mfma_f32_16x16x32_bf16 v[32:35], v[{r}:{r+3}], v[{GR+4*sidx}:{GR+3+4*sidx}], v[32:35]")
    a("s_nop 7\ns_nop 7")
    a(f"s_mov_b32 s{U+1}, {f2h(C2LOG2E)}")
    for r in range(4): a(f"v_mul_f32 v{32+r}, s{U+1}, v{32+r}")
    a(f"v_max3_f32 v40, abs(v32), abs(v33), abs(v34)\nv_max_f32 v40, abs(v35), v40")
    a(f"v_mov_b32 v42, {f2h(96.0)}")
    a(f"v_cmp_nle_f32 vcc, v40, v42")
    for r in range(4): a(f"v_exp_f32 v{36+r}, v{32+r}")
    a("s_nop 1")
    a(f"s_cmp_lg_u64 vcc, 0\ns_cselect_b32 s{U+3}, 1, 0")
    a(f"""
    v_lshrrev_b32 v9, 3, v4
    v_lshlrev_b32 v9, 14, v9
    v_and_b32 v10, 7, v4
    v_lshl_add_u32 v9, v10, 4, v9
    v_lshl_add_u32 v9, v5, 7, v9
    s_lshl_b32 s{U+1}, s{U}, 9
    v_add_u32 v9, s{U+1}, v9
    v_add_u32 v10, {WS_QR}, v9
    v_add_u32 v9, {WS_QE}, v9
    buffer_store_dwordx4 v[32:35], v10, {WSR}, 0 offen sc1
    buffer_store_dwordx4 v[36:39], v9, {WSR}, 0 offen sc1
    """)
    if defer:
        a(f"s_lshl_b32 s{S_SIDEA}, s{U}, 3\ns_add_u32 s{S_SIDEA}, s{S_SIDEA}, {WS_GE}\ns_mov_b32 s{S_SIDEV}, s{U+3}\ns_mov_b32 s{S_SIDEK}, 2")
        return
    a(f"""
    s_lshl_b32 s{U+1}, s{U}, 3
    s_add_u32 s{U+1}, s{U+1}, {WS_GE}
    v_mov_b32 v12, s{U+1}
    v_mov_b32 v10, s{S_TAG}
    v_mov_b32 v11, s{U+3}
    s_waitcnt vmcnt(0)
    s_mov_b64 s[{S_T0+14}:{S_T0+15}], exec
    s_mov_b64 exec, 1
    buffer_store_dwordx2 v[10:11], v12, {WSR}, 0 offen sc1
    s_mov_b64 exec, s[{S_T0+14}:{S_T0+15}]
    """)

S_SIDEA, S_SIDEV, S_SIDEK = 5, 6, 7
def side_flag_deferred(a):
    l0, l1 = lab("Ld"), lab("Ld")
    a(f"s_cmp_eq_u32 s{S_SIDEK}, 0\ns_cbranch_scc1 {l0}")
    a(f"v_mov_b32 v22, s{S_TAG}\nv_mov_b32 v23, s{S_SIDEV}\nv_mov_b32 v24, s{S_SIDEA}")
    a("s_waitcnt vmcnt(0)")
    a(f"s_mov_b64 s[{S_T0+14}:{S_T0+15}], exec\ns_mov_b64 exec, 1")
    a(f"s_cmp_eq_u32 s{S_SIDEK}, 1\ns_cbranch_scc1 {l1}")
    a(f"buffer_store_dwordx2 v[22:23], v24, {WSR}, 0 offen sc1")
    a(f"s_branch {l1}_e\n{l1}:")
    a(f"buffer_store_dword v22, v24, {WSR}, 0 offen sc1")
    a(f"{l1}_e:")
    a(f"s_mov_b64 exec, s[{S_T0+14}:{S_T0+15}]\ns_mov_b32 s{S_SIDEK}, 0")
    a(f"{l0}:")

def l_setup_w(a):
    a(f"""
    v_lshrrev_b32 v4, 3, v0
    v_lshrrev_b32 v5, 1, v4
    v_and_b32 v5, 1, v5
    s_and_b32 s{S_T0}, s{S_LW}, 1
    s_lshl_b32 s{S_T0}, s{S_T0}, 1
    v_or_b32 v5, s{S_T0}, v5
    v_lshlrev_b32 v5, 1, v5
    v_and_b32 v6, 7, v0
    v_xor_b32 v6, v6, v5
    v_lshlrev_b32 v6, 4, v6
    s_lshl_b32 s{S_T0}, s{S_LW}, 3
    v_add_u32 v4, s{S_T0}, v4
    v_lshl_add_u32 v{V_LWV}, v4, 10, v6
    """)

def l_setup_a(a, c, row_base_sgpr, lo_valid, hi_valid, issue=None):
    na = (c.nA + 3) // 4
    a(f"v_lshrrev_b32 v2, 3, v0\nv_and_b32 v3, 7, v0")
    a(f"s_lshl_b32 s{S_T0}, s{S_LW}, 3\ns_mov_b32 s{S_T0+1}, {c.MAGIC}\ns_mov_b32 s{S_T0+2}, {hex(SWZ_TBL)}")
    a(f"v_mov_b32 v7, {hex(OOB)}\nv_add_u32 v4, s{S_T0}, v2")
    for k in range(na):
        a(f"""
        v_mul_u32_u24 v5, s{S_T0+1}, v4
        v_lshrrev_b32 v5, 16, v5
        v_mul_u32_u24 v6, {c.RS}, v5
        v_sub_u32 v6, v4, v6
        v_and_b32 v20, 3, v5
        v_lshl_add_u32 v20, v6, 2, v20
        v_lshrrev_b32 v21, 2, v5
        v_lshl_add_u32 v20, v20, 1, v21
        v_add_u32 v20, s{row_base_sgpr}, v20
        v_lshlrev_b32 v21, 1, v6
        v_and_b32 v21, 28, v21
        v_lshrrev_b32 v21, v21, s{S_T0+2}
        v_and_b32 v21, 7, v21
        v_xor_b32 v21, v21, v3
        v_lshlrev_b32 v21, 4, v21
        v_lshl_add_u32 v21, v20, 10, v21
        v_subrev_u32 v22, {lo_valid}, v20
        v_cmp_gt_u32 vcc, {hi_valid}, v22
        v_cndmask_b32 v21, v7, v21, vcc
        """) if False else None
        a(f"""
        v_mul_u32_u24 v5, s{S_T0+1}, v4
        v_lshrrev_b32 v5, 16, v5
        v_mul_u32_u24 v6, {c.RS}, v5
        v_sub_u32 v6, v4, v6
        v_and_b32 v20, 3, v5
        v_lshl_add_u32 v20, v6, 2, v20
        v_lshrrev_b32 v21, 2, v5
        v_lshl_add_u32 v20, v20, 1, v21
        v_add_u32 v20, s{row_base_sgpr}, v20
        v_subrev_u32 v22, {lo_valid}, v20
        v_cmp_gt_u32 vcc, {hi_valid}, v22
        v_lshlrev_b32 v21, 1, v6
        v_and_b32 v21, 28, v21
        v_lshrrev_b32 v21, v21, s{S_T0+2}
        v_and_b32 v21, 7, v21
        v_xor_b32 v21, v21, v3
        v_lshlrev_b32 v21, 4, v21
        v_lshl_add_u32 v21, v20, 10, v21
        v_cndmask_b32 v{V_LA+k}, v7, v21, vcc
        """)
        if 8 * (4*k + 3) + 7 >= 8 * c.RS:
            a(f"v_cmp_gt_u32 vcc, {8*c.RS}, v4\ns_nop 1\nv_cndmask_b32 v{V_LA+k}, v7, v{V_LA+k}, vcc")
        if issue is not None: issue(k)
        if k + 1 < na: a("v_add_u32 v4, 32, v4")

S_PA, S_PWX = 3, 4
def l_issue_A(a, c, srdA, pol, idx, part=None):
    na = (c.nA + 3) // 4
    ks = range(na) if part is None else (range(0, 5) if part == 0 else range(5, na))
    a(f"s_xor_b32 s{S_OFA}, s{S_PA}, {(idx if not OPT['hot'] else 0)*128}")
    a(f"s_lshl_b32 s{S_T0}, s{S_LW}, 10\ns_add_u32 s{S_T0}, s{S_T0}, s{S_LSA}")
    for k in ks:
        extra = (4 * k + 3 >= c.nA)
        if extra:
            l0 = lab("Lx")
            a(f"s_cmp_lt_u32 s{S_LW}, {c.nA - 4 * k}\ns_cbranch_scc0 {l0}")
        a(f"s_add_u32 m0, s{S_T0}, {k*4096}")
        a("s_nop 0")
        a(f"buffer_load_dwordx4 v{V_LA+k}, s[{srdA}:{srdA+3}], s{S_OFA} offen {pol} lds")
        if extra: a(f"{l0}:")
    if part == 0: return
    step = c.AB if c.idx == 1 else 2 * c.AB
    a(f"s_add_u32 s{S_LSA}, s{S_LSA}, {step}")
    a(f"s_cmp_ge_u32 s{S_LSA}, {c.RA * c.AB}")
    a(f"s_cselect_b32 s{S_T0}, {c.RA * c.AB}, 0")
    a(f"s_sub_u32 s{S_LSA}, s{S_LSA}, s{S_T0}")

def l_issue_W(a, c, srdW, idx):
    a(f"s_lshl_b32 s{S_T0}, s{S_LW}, 10\ns_add_u32 s{S_T0}, s{S_T0}, s{S_LSW}\ns_xor_b32 s{S_T0+1}, s{S_PWX}, {(idx if not OPT['hot'] else idx & 1)*32768}")
    for tap in range(5):
        a(f"s_add_u32 m0, s{S_T0}, {c.WOFF + tap*4096}")
        if tap: a(f"s_add_u32 s{S_T0+1}, s{S_T0+1}, 524288")
        else: a("s_nop 0")
        a(f"buffer_load_dwordx4 v{V_LWV}, s[{srdW}:{srdW+3}], s{S_T0+1} offen lds")
    a(f"s_add_u32 s{S_LSW}, s{S_LSW}, {c.WB}")
    a(f"s_cmp_ge_u32 s{S_LSW}, {c.RW * c.WB}")
    a(f"s_cselect_b32 s{S_LSW}, 0, s{S_LSW}")

S_TCH = 73
SRD_H2 = SRD_T
def w_touch(a, ptr, unit, ncls):
    if not OPT["wtouch"] or unit >= 16: return
    mode = OPT["wtouch"]
    a(f"s_lshl_b32 s{S_TCH}, s{S_Q}, 10\ns_add_u32 s{S_TCH}, s{S_TCH}, {unit*32768}")
    if mode == "c3":
        a(f"s_lshl_b32 s{S_T0+2}, s{S_LW}, 19\ns_add_u32 s{S_TCH}, s{S_TCH}, s{S_T0+2}\ns_add_u32 s{S_TCH}, s{S_TCH}, 384")
        a(f"s_load_dword s76, s[{ptr}:{ptr+1}], s{S_TCH}")
        l0 = lab("Lt")
        a(f"s_cmp_eq_u32 s{S_LW}, 0\ns_cbranch_scc0 {l0}")
        a(f"s_add_u32 s{S_TCH}, s{S_TCH}, {4*524288}")
        a(f"s_load_dword s76, s[{ptr}:{ptr+1}], s{S_TCH}")
        a(f"{l0}:")
    else:
        ntap = int(mode)
        a(f"s_lshl_b32 s{S_T0+2}, s{S_LW}, 8\ns_add_u32 s{S_TCH}, s{S_TCH}, s{S_T0+2}")
        for tap in range(ntap):
            a(f"s_load_dword s76, s[{ptr}:{ptr+1}], s{S_TCH}")
            a(f"s_add_u32 s{S_T0+2}, s{S_TCH}, 128")
            a(f"s_load_dword s76, s[{ptr}:{ptr+1}], s{S_T0+2}")
            if tap + 1 < ntap: a(f"s_add_u32 s{S_TCH}, s{S_TCH}, 524288")

V_STG = 100
def stage_W2_loads(a, c, srd, nunit):
    for u in range(nunit):
        a(f"s_xor_b32 s{S_T0+1}, s{S_PWX}, {u*32768}")
        for tap in range(5):
            r = V_STG + (u*5 + tap) * 4
            if tap: a(f"s_add_u32 s{S_T0+1}, s{S_T0+1}, 524288")
            a(f"buffer_load_dwordx4 v[{r}:{r+3}], v{V_LWV}, s[{srd}:{srd+3}], s{S_T0+1} offen")
def stage_W2_write(a, c, nunit):
    a(f"s_lshl_b32 s{S_T0}, s{S_LW}, 10\nv_lshl_add_u32 v2, v0, 4, s{S_T0}")
    for u in range(nunit):
        a(f"v_add_u32 v3, {c.WOFF + u*c.WB}, v2")
        for tap in range(5):
            r = V_STG + (u*5 + tap) * 4
            a(f"ds_write_b128 v3, v[{r}:{r+3}] offset:{tap*4096}")
def stage_WF_loads(a, k0, k1):
    a(f"s_and_b32 s{S_T0}, s{S_Q}, 3\ns_lshl_b32 s{S_T0}, s{S_T0}, 17\ns_add_u32 s{S_T0}, s{S_T0}, {WS_WF}")
    a(f"s_lshl_b32 s{S_T0+1}, s{S_LW}, 15\ns_add_u32 s{S_T0}, s{S_T0}, s{S_T0+1}\nv_lshlrev_b32 v5, 4, v0")
    for k in range(k0, k1):
        r = V_STG + 4*k
        if k % 4 == 0 or k == k0: a(f"s_add_u32 s{S_T0+2}, s{S_T0}, {(k//4)*4096}")
        a(f"buffer_load_dwordx4 v[{r}:{r+3}], v5, {WSR}, s{S_T0+2} offen offset:{(k%4)*1024} {OPT['wold']}")
def stage_WF_write(a):
    a(f"s_lshl_b32 s{S_T0}, s{S_LW}, 15\nv_lshl_add_u32 v2, v0, 4, s{S_T0}")
    for k in range(32):
        r = V_STG + 4*k
        a(f"ds_write_b128 v2, v[{r}:{r+3}] offset:{FE_W + k*1024}")

V_TCH = 19
def vtouch8(a, srd, u0, vtmp=2):
    if not OPT["vtouch"]: return
    a(f"v_lshrrev_b32 v{vtmp}, 3, v0\nv_lshlrev_b32 v{vtmp}, 19, v{vtmp}\nv_and_b32 v{vtmp+1}, 7, v0\nv_lshl_add_u32 v{vtmp}, v{vtmp+1}, 15, v{vtmp}")
    a(f"s_lshl_b32 s{S_T0}, s{S_Q}, 10\ns_add_u32 s{S_T0}, s{S_T0}, {384 + u0*32768}\nv_add_u32 v{vtmp}, s{S_T0}, v{vtmp}")
    a(f"v_cmp_gt_u32 vcc, 40, v0\nv_mov_b32 v{vtmp+1}, {hex(OOB)}\ns_nop 0\nv_cndmask_b32 v{vtmp}, v{vtmp+1}, v{vtmp}, vcc")
    a(f"buffer_load_dword v{V_DUMMY+8}, v{vtmp}, s[{srd}:{srd+3}], 0 offen")

def only(a, cond_lines, body):
    l0 = lab("Lo")
    a(cond_lines)
    a(f"s_cbranch_scc0 {l0}")
    body()
    a(f"{l0}:")

def emit():
    global NEPI, FE_SPLIT
    NEPI = int(OPT["nepi"])
    FE_SPLIT = int(OPT["fesplit"])
    c1, c2 = Conv(1), Conv(2)
    a = Asm()
    kernel_begin(a, KN)
    a(f"s_cmp_ge_u32 s{S_WG}, 256\ns_cbranch_scc1 L_end")
    load_ptrs(a)
    if OPT["codepf"]:
        a("s_getpc_b64 s[4:5]")
        a("L_pc_here:")
        a(f"s_lshr_b32 s6, s{S_WG}, 3")
        a("s_lshl_b32 s6, s6, 3")
        a("v_lshrrev_b32 v1, 6, v0")
        a("v_add_u32 v1, s6, v1")
        a("v_and_b32 v1, 63, v1")
        a("v_lshlrev_b32 v1, 10, v1")
        a("v_and_b32 v2, 63, v0")
        a("v_lshl_add_u32 v1, v2, 4, v1")
        a(f"v_min_u32 v1, CODE_LAST, v1")
        a(f"global_load_dwordx4 v[{V_DUMMY+4}:{V_DUMMY+7}], v1, s[4:5]")
    stamp(a, 0)
    if OPT["dbg"]:
        a("s_memrealtime s[74:75]\ns_waitcnt lgkmcnt(0)\ns_mov_b32 s76, s74")
    ids(a)
    if OPT["qperm"]:
        a(f"s_xor_b32 s{S_Q}, s{S_Q}, {OPT['qperm']}")
    a(f"s_lshr_b32 s{S_M}, s{S_Q}, 3\ns_and_b32 s{S_N}, s{S_Q}, 7")
    a("s_waitcnt lgkmcnt(0)")
    mk_srd(a, SRD_WS, S_PWS, 0x10000000)
    a(f"s_mul_i32 s{S_T0}, s{S_B}, 4096000")
    mk_srd(a, SRD_X, S_PX, 4096000, add=f"s{S_T0}")
    mk_srd(a, SRD_W, S_PW1, 2621440)
    mk_srd(a, SRD_OUT, S_POUT, 16384000)
    head = a
    if OPT["lfirst"]:
        a(f"s_cmp_lt_u32 s{S_WAVE}, 4\ns_cbranch_scc1 L_Cwaves")
    else:
        a(f"s_cmp_ge_u32 s{S_WAVE}, 4\ns_cbranch_scc1 L_Lwaves")
    a = Asm()
    a("L_Cwaves:")
    def nonce_load():
        a(f"v_mov_b32 v30, {WS_NONCE}\nbuffer_load_dword v31, v30, {WSR}, 0 offen sc1")
    only(a, f"s_cmp_eq_u32 s{S_LW}, 3", nonce_load)
    only(a, f"s_cmp_eq_u32 s{S_LW}, 1", lambda: vtouch8(a, SRD_W, 0))
    if OPT["tlbw"]:
        def tlb_warm():
            a(f"s_lshl_b32 s{S_T0}, s{S_X}, 19\ns_lshl_b32 s{S_T0+1}, s{S_X}, 18")
            offs = [(S_T0, WS_H), (S_T0, WS_H + 0x40000), (S_T0+1, WS_F), (S_T0, WS_P), (S_T0, WS_P + 0x40000)]
            a(f"v_mov_b32 v2, {WS_F1}")
            for i, (sr, base) in enumerate(offs):
                a(f"s_add_u32 s{S_T0+2}, s{sr}, {base}\nv_writelane_b32 v2, s{S_T0+2}, {i+1}")
            for i, base in enumerate([WS_WO, WS_WO + 0x40000, WS_WF, WS_WF + 0x40000, WS_QE, WS_F3]):
                a(f"s_mov_b32 s{S_T0+2}, {base}\nv_writelane_b32 v2, s{S_T0+2}, {i+6}")
            a(f"buffer_load_dword v{V_DUMMY+9}, v2, {WSR}, 0 offen")
            a(f"s_mul_i32 s{S_T0}, s{S_B}, 1000\ns_mul_i32 s{S_T0+1}, s{S_QQ}, 250\ns_add_u32 s{S_T0}, s{S_T0}, s{S_T0+1}\ns_lshl_b32 s{S_T0+1}, s{S_Q}, 3\ns_add_u32 s{S_T0}, s{S_T0}, s{S_T0+1}\ns_lshl_b32 s{S_T0}, s{S_T0}, 13")
            a(f"v_and_b32 v2, 1, v0\nv_mul_u32_u24 v2, {63*1024}, v2\nv_add_u32 v2, s{S_T0}, v2")
            a(f"buffer_load_dword v{V_DUMMY+10}, v2, s[{SRD_OUT}:{SRD_OUT+3}], 0 offen")
        only(a, f"s_cmp_eq_u32 s{S_LW}, 0", tlb_warm)
    def zero_inbox():
        a(f"v_lshlrev_b32 v2, 2, v0\nv_add_u32 v2, {MISC}, v2\nv_mov_b32 v3, 0\nds_write_b32 v2, v3\ns_waitcnt lgkmcnt(0)")
    only(a, f"s_cmp_eq_u32 s{S_LW}, 0", zero_inbox)
    G.conv_c_setup(a, c1)
    conv1_tail_pre(a)
    a("s_barrier")
    def nonce_pub():
        a("s_waitcnt vmcnt(0)")
        a(f"v_add_u32 v31, 1, v31\ns_nop 0\nv_readfirstlane_b32 s{S_TAG}, v31")
        a(f"s_getreg_b32 s{S_T0}, hwreg(HW_REG_XCC_ID, 0, 4)")
        a(f"s_lshl_b32 s{S_T0+1}, s{S_X}, 8\ns_lshl_b32 s{S_T0+2}, s{S_Q}, 3\ns_add_u32 s{S_T0+1}, s{S_T0+1}, s{S_T0+2}\ns_add_u32 s{S_T0+1}, s{S_T0+1}, {WS_G0}")
        a(f"v_mov_b32 v28, s{S_TAG}\nv_mov_b32 v29, s{S_T0}\nv_mov_b32 v30, s{S_T0+1}")
        a(f"s_mov_b64 s[{S_T0+14}:{S_T0+15}], exec\ns_mov_b64 exec, 1")
        a(f"buffer_store_dwordx2 v[28:29], v30, {WSR}, 0 offen sc1")
        a(f"s_mov_b64 exec, s[{S_T0+14}:{S_T0+15}]")
        write_misc(a, 0, S_TAG)
    only(a, f"s_cmp_eq_u32 s{S_LW}, 3", nonce_pub)
    RLC = f"s_cmp_lt_u32 s{S_WG}, 128\ns_cselect_b32 s{S_T0}, s{S_LW}, 0\ns_cmp_eq_u32 s{S_T0}, 1"
    GEC = f"s_cmp_ge_u32 s{S_WG}, 224\ns_cselect_b32 s{S_T0}, s{S_LW}, 0\ns_cmp_eq_u32 s{S_T0}, 2"
    if OPT["sidec"]:
        only(a, RLC, lambda: relayout_loads(a, 172))
        only(a, GEC, lambda: ge_gloads_c(a))
    if OPT["xpf"] is not None: x_prefetch(a)
    conv_c_loop(a, c1, 1)
    conv1_tail_c(a)
    stamp(a, 4)
    if OPT["sidec"]:
        a(f"s_mov_b32 s{S_SIDEK}, 0\ns_mov_b32 s{S_SIDEA}, 0\ns_mov_b32 s{S_SIDEV}, 0")
        def rlj():
            relayout_finish(a, 1, 172)
            a(f"s_lshl_b32 s{S_SIDEA}, s{S_WG}, 2\ns_add_u32 s{S_SIDEA}, s{S_SIDEA}, {WS_RL}\ns_mov_b32 s{S_SIDEK}, 1")
        only(a, RLC, rlj)
        only(a, GEC, lambda: ge_finish_c(a))
    if OPT["cpre"]:
        mk_srd(a, SRD_W, S_PW2, 2621440)
        l_setup_w(a)
        a(f"s_add_u32 s{S_PA}, s{S_M}, s{S_N}\ns_and_b32 s{S_PA}, s{S_PA}, 1\ns_lshl_b32 s{S_PWX}, s{S_PA}, 16\ns_lshl_b32 s{S_T0}, s{S_N}, 7\ns_add_u32 s{S_PWX}, s{S_PWX}, s{S_T0}")
        a(f"s_mov_b32 s{S_LSW}, {2 * c2.WB}")
        for u in (2, 3, 4):
            l_issue_W(a, c2, SRD_W, u)
            if OPT["cpace"] is not None and u < 4: a(f"s_waitcnt vmcnt({OPT['cpace']})")
    a(f"s_lshr_b32 s{S_GRP}, s{S_LW}, 1\ns_mul_i32 s{S_GRP}, s{S_GRP}, {c2.WB}")
    G.conv_c_setup(a, c2)
    conv2_tail_pre(a)
    if OPT["cpre"]: a("s_waitcnt vmcnt(0)")
    b = Asm()
    a("s_barrier")
    stamp(a, 5)
    save = OPT["stamp"]; OPT["stamp"] = False
    conv_c_loop(b, c2, 0)
    OPT["stamp"] = save
    lines = b.lines
    i0 = next(i for i, l in enumerate(lines) if l.strip() == "s_barrier")
    a.lines += lines[i0+1:]
    stamp(a, 6)
    conv2_tail_c(a)
    stamp(a, 13)
    fe_c(a)
    stamp(a, 9)
    joint_c(a)
    a("s_branch L_fin")
    cpart = a
    a = Asm()
    a("L_Lwaves:")
    sch = LSched()
    nA1, nA2 = c1.nA // 4, c2.nA // 4
    iA = [0]; iW = [0]
    def A(c, srd, pol, tag):
        l_issue_A(a, c, srd, pol, iA[0]); sch.add((tag, "A", iA[0]), c.nA // 4); iA[0] += 1
    def W(c, tag):
        l_issue_W(a, c, SRD_W, iW[0]); sch.add((tag, "W", iW[0]), 5); iW[0] += 1
    l_setup_w(a)
    a(f"s_mov_b32 s{S_LSA}, 0\ns_mov_b32 s{S_LSW}, 0")
    if OPT["twist"]:
        a(f"s_add_u32 s{S_PA}, s{S_M}, s{S_N}\ns_and_b32 s{S_PA}, s{S_PA}, 1")
    else:
        a(f"s_mov_b32 s{S_PA}, 0")
    a(f"s_lshl_b32 s{S_PWX}, s{S_PA}, 16\ns_lshl_b32 s{S_PA}, s{S_PA}, 7\ns_lshl_b32 s{S_T0}, s{S_N}, 7\ns_add_u32 s{S_PWX}, s{S_PWX}, s{S_T0}")
    W(c1, 1)
    a(f"s_mul_i32 s{S_T0+8}, s{S_QQ}, 1000\ns_lshl_b32 s{S_T0+9}, s{S_M}, 8\ns_add_u32 s{S_T0+8}, s{S_T0+8}, s{S_T0+9}\ns_sub_u32 s{S_T0+8}, s{S_T0+8}, 6")
    if OPT["fastA0"]:
        a(f"s_xor_b32 s{S_OFA}, s{S_PA}, 0\ns_lshl_b32 s{S_T0+4}, s{S_LW}, 10")
        def iss(k):
            extra = (4 * k + 3 >= c1.nA)
            if extra:
                l0 = lab("Lx")
                a(f"s_cmp_lt_u32 s{S_LW}, {c1.nA - 4 * k}\ns_cbranch_scc0 {l0}")
            a(f"s_add_u32 m0, s{S_T0+4}, {k*4096}\ns_nop 0")
            a(f"buffer_load_dwordx4 v{V_LA+k}, s[{SRD_X}:{SRD_X+3}], s{S_OFA} offen {OPT['xld']} lds")
            if extra: a(f"{l0}:")
        l_setup_a(a, c1, S_T0+8, 0, 4000, iss)
        a(f"s_mov_b32 s{S_LSA}, {c1.AB}")
        sch.add((1, "A", 0), c1.nA // 4); iA[0] = 1
    else:
        l_setup_a(a, c1, S_T0+8, 0, 4000)
        A(c1, SRD_X, OPT["xld"], 1)
    stamp(a, 1)
    a("s_barrier")
    W(c1, 1)
    if OPT["wtouch"] and OPT["tx"]:
        a(f"s_mul_i32 s{S_T0+2}, s{S_QQ}, 1000\ns_mul_i32 s{S_T0+3}, s{S_Q}, 33\ns_add_u32 s{S_T0+2}, s{S_T0+2}, s{S_T0+3}")
        a(f"s_lshl_b32 s{S_T0+3}, s{S_LW}, 3\ns_add_u32 s{S_T0+2}, s{S_T0+2}, s{S_T0+3}\ns_sub_u32 s{S_T0+2}, s{S_T0+2}, 6")
        for j in range(9):
            a(f"s_add_i32 s{S_T0+3}, s{S_T0+2}, {j}\ns_max_i32 s{S_T0+3}, s{S_T0+3}, 0\ns_min_i32 s{S_T0+3}, s{S_T0+3}, 3999")
            a(f"s_lshl_b32 s{S_T0+3}, s{S_T0+3}, 10\ns_add_u32 s{S_T0+3}, s{S_T0+3}, 384")
            a(f"s_load_dword s76, s[{SRD_X}:{SRD_X+1}], s{S_T0+3}")
    need1 = lambda s: [(1, "A", s // 2), (1, "W", s)]
    a(f"s_waitcnt vmcnt({sch.wait_for(need1(0))})")
    a("s_barrier")
    stamp(a, 2)
    def Apart(part):
        l_issue_A(a, c1, SRD_X, OPT["xld"], iA[0], part)
        n0 = 5; n1 = c1.nA // 4 - 5
        sch.add((1, "A", iA[0]), n0 if part == 0 else n1)
        if part == 1: iA[0] += 1
    if c1.RA == 2:
        A(c1, SRD_X, OPT["xld"], 1); W(c1, 1); W(c1, 1)
    else:
        A(c1, SRD_X, OPT["xld"], 1); W(c1, 1); Apart(0)
    for u in (4, 5, 6, 7, 8): w_touch(a, S_PW1, u, 8)
    for s in range(c1.NST):
        if s + 1 < c1.NST:
            nw_ = min(63, sch.wait_for(need1(s+1)))
            if s == 14 and OPT["sidec"]:
                l0, l1 = lab("Lv"), lab("Lv")
                a(f"s_cmp_ge_u32 s{S_WG}, 224\ns_cselect_b32 s{S_T0}, s{S_LW}, 0\ns_cmp_eq_u32 s{S_T0}, 2\ns_cbranch_scc1 {l0}")
                a(f"s_waitcnt vmcnt({nw_})\ns_branch {l1}\n{l0}:\ns_waitcnt vmcnt({min(63, nw_ + 16)})\n{l1}:")
            else:
                a(f"s_waitcnt vmcnt({nw_})")
        a("s_barrier")
        if c1.RA == 2:
            if s % 2 == 1 and iA[0] < c1.NA: A(c1, SRD_X, OPT["xld"], 1)
            if iW[0] < c1.NU: W(c1, 1)
        else:
            if iW[0] < c1.NU: W(c1, 1)
            if iA[0] < c1.NA: Apart(1 if s % 2 == 0 else 0)
        w_touch(a, S_PW1, s + 9, 8)
        if OPT["vtouch"] and s in (1, 7, 9):
            def tch(s=s):
                if s == 1: vtouch8(a, SRD_W, 8)
                else:
                    mk_srd(a, SRD_T, S_PW2, 2621440)
                    vtouch8(a, SRD_T, 0 if s == 7 else 8)
            only(a, f"s_cmp_eq_u32 s{S_LW}, 3", tch)
        if s >= 8 and OPT["t2"]:
            w_touch(a, S_PW2, 2*(s-8), 8); w_touch(a, S_PW2, 2*(s-8) + 1, 8)
        if OPT["stg"] and s in (12, 13):
            if s == 12:
                mk_srd(a, SRD_T, S_PW2, 2621440)
                stage_W2_loads(a, c2, SRD_T, 3)
                sch.add("stg", 15)
            else:
                sch.add("stg", 10)
                b = Asm(); stage_W2_loads(b, c2, SRD_T, 5)
                keep = False
                for l in b.lines:
                    if f"{3*32768}" in l and "s_xor" in l: keep = True
                    if keep: a(l.strip())
        if s == 13 and OPT["sidec"]:
            only(a, f"s_cmp_ge_u32 s{S_WG}, 224\ns_cselect_b32 s{S_T0}, s{S_LW}, 0\ns_cmp_eq_u32 s{S_T0}, 2", lambda: ge_loads_c(a))
        if s == 2:
            mk_srd(a, SRD_T, S_PW2, 2621440)
            a(f"s_mul_i32 s{S_T0+2}, s{S_WG}, 12288\ns_mul_i32 s{S_T0+3}, s{S_LW}, 3072\ns_add_u32 s{S_T0+2}, s{S_T0+2}, s{S_T0+3}")
            a(f"v_lshl_add_u32 v4, v0, 4, s{S_T0+2}")
            for k in range(3): a(f"buffer_load_dwordx4 v[{V_DUMMY}:{V_DUMMY+3}], v4, s[{SRD_T}:{SRD_T+3}], 0 offen offset:{k*1024}")
            mk_srd(a, SRD_T, S_PWG, 524288)
            a(f"s_lshl_b32 s{S_T0+2}, s{S_WG}, 11\ns_lshl_b32 s{S_T0+3}, s{S_LW}, 9\ns_add_u32 s{S_T0+2}, s{S_T0+2}, s{S_T0+3}")
            a(f"v_and_b32 v4, 31, v0\nv_lshl_add_u32 v4, v4, 4, s{S_T0+2}")
            a(f"buffer_load_dwordx4 v[{V_DUMMY}:{V_DUMMY+3}], v4, s[{SRD_T}:{SRD_T+3}], 0 offen")
            sch.add("pf", 4)
        if s == 3:
            read_misc(a, 0, S_TAG)
            a(f"s_lshl_b32 s{S_T0+1}, s{S_X}, 8\ns_add_u32 s{S_T0+1}, s{S_T0+1}, {WS_G0}")
            a(f"v_and_b32 v28, 31, v0\nv_lshlrev_b32 v28, 3, v28\nv_add_u32 v28, s{S_T0+1}, v28")
            def xcc_issue():
                a(f"buffer_load_dwordx2 v[26:27], v28, {WSR}, 0 offen sc1")
            only(a, f"s_cmp_eq_u32 s{S_LW}, 0", xcc_issue)
            mark1 = len(sch.ops)
        if s == 7:
            def xcc_check():
                a(f"s_waitcnt vmcnt({len(sch.ops) - mark1})")
                l0 = lab("Lc")
                a(f"s_mov_b32 s{S_T0+16}, 0\nv_cmp_ne_u32 vcc, s{S_TAG}, v26\ns_cbranch_vccz {l0}")
                poll(a, 28, 26, width=2)
                a(f"{l0}:")
                a(f"s_getreg_b32 s{S_T0}, hwreg(HW_REG_XCC_ID, 0, 4)")
                a(f"v_cmp_ne_u32 vcc, s{S_T0}, v27\ns_nop 4\ns_cmp_eq_u64 vcc, 0\ns_cselect_b32 s{S_FAST}, 1, 0")
                a(f"s_cmp_ge_u32 s{S_T0+16}, {SPIN_MAX}\ns_cselect_b32 s{S_FAST}, 0, s{S_FAST}")
                if OPT["force_slow"]: a(f"s_mov_b32 s{S_FAST}, 0")
                write_misc(a, 4, S_FAST)
            only(a, f"s_cmp_eq_u32 s{S_LW}, 0", xcc_check)
        if s == 6 and not OPT["sidec"]:
            only(a, f"s_cmp_lt_u32 s{S_WG}, 128\ns_cselect_b32 s{S_T0}, s{S_LW}, 0\ns_cmp_eq_u32 s{S_T0}, 1", lambda: relayout_loads(a))
            mark3 = len(sch.ops)
        if s == 11 and not OPT["sidelate"] and not OPT["sidec"]:
            only(a, f"s_cmp_lt_u32 s{S_WG}, 128\ns_cselect_b32 s{S_T0}, s{S_LW}, 0\ns_cmp_eq_u32 s{S_T0}, 1", lambda: relayout_finish(a, len(sch.ops) - mark3))
        if s == 13 and not OPT["sidelate"] and not OPT["sidec"]:
            only(a, f"s_cmp_ge_u32 s{S_WG}, 224\ns_cselect_b32 s{S_T0}, s{S_LW}, 0\ns_cmp_eq_u32 s{S_T0}, 2", lambda: ge_loads(a))
    stamp(a, 3)
    mk_srd(a, SRD_W, S_PW2, 2621440)
    a(f"s_lshl_b32 s{S_T0}, s{S_X}, 19\ns_add_u32 s{S_T0}, s{S_T0}, {WS_H}")
    mk_srd(a, SRD_X, S_PWS, 0x100000, add=f"s{S_T0}")
    iA[0] = 0; iW[0] = 0
    a(f"s_mov_b32 s{S_LSA}, 0\ns_mov_b32 s{S_LSW}, 0")
    if not OPT["sidelate"] and not OPT["sidec"]:
        only(a, f"s_cmp_lt_u32 s{S_WG}, 128\ns_cselect_b32 s{S_T0}, s{S_LW}, 0\ns_cmp_eq_u32 s{S_T0}, 1", lambda: relayout_flag(a))
        only(a, f"s_cmp_ge_u32 s{S_WG}, 224\ns_cselect_b32 s{S_T0}, s{S_LW}, 0\ns_cmp_eq_u32 s{S_T0}, 2", lambda: ge_finish(a))
    npre = int(OPT["npre"])
    if OPT["stg"]:
        npre = 5
        a("s_waitcnt vmcnt(0)")
        stage_W2_write(a, c2, 5)
        iW[0] = 5
        a(f"s_mov_b32 s{S_LSW}, 0")
    else:
        for _ in range(npre): W(c2, 2)
    if OPT["sidec"]:
        only(a, f"s_cmp_ge_u32 s{S_WG}, 224\ns_cselect_b32 s{S_T0}, s{S_LW}, 0\ns_cmp_eq_u32 s{S_T0}, 2", lambda: ge_stage_l(a, 0 if OPT["stg"] else 5*npre))
    def rl_job():
        relayout_finish(a, 0 if OPT["stg"] else 5*npre); relayout_flag(a)
    if OPT["sidelate"] and not OPT["sidec"]: only(a, f"s_cmp_lt_u32 s{S_WG}, 128\ns_cselect_b32 s{S_T0}, s{S_LW}, 0\ns_cmp_eq_u32 s{S_T0}, 1", rl_job)
    def ge_job():
        a("s_waitcnt lgkmcnt(0)")
        ge_loads(a); ge_finish(a)
    if OPT["sidelate"] and not OPT["sidec"]: only(a, f"s_cmp_ge_u32 s{S_WG}, 224\ns_cselect_b32 s{S_T0}, s{S_LW}, 0\ns_cmp_eq_u32 s{S_T0}, 2", ge_job)
    a(f"s_lshl_b32 s{S_T0+8}, s{S_M}, 7")
    a(f"s_cmp_eq_u32 s{S_QQ}, 0\ns_cselect_b32 s{S_T0+10}, 2, 0")
    a(f"s_cmp_eq_u32 s{S_QQ}, 3\ns_cselect_b32 s{S_T0+11}, 0, 522\ns_add_u32 s{S_T0+11}, s{S_T0+11}, 502")
    a(f"s_sub_u32 s{S_T0+11}, s{S_T0+11}, s{S_T0+10}")
    l_setup_a(a, c2, S_T0+8, f"s{S_T0+10}", f"s{S_T0+11}")
    if OPT["seqpre"]:
        l0, l1 = lab("Lq"), lab("Lq")
        a(f"v_mov_b32 v2, {INBOX + 64}\ns_mov_b32 s{S_T0+16}, 0\n{l0}:\nds_read_b128 v[4:7], v2")
        a(f"s_add_u32 s{S_T0+16}, s{S_T0+16}, 1\ns_cmp_ge_u32 s{S_T0+16}, {SPIN_MAX*8}\ns_cbranch_scc1 {l1}")
        a(f"s_waitcnt lgkmcnt(0)\nv_and_b32 v4, v4, v5\nv_and_b32 v6, v6, v7\nv_and_b32 v4, v4, v6\nv_cmp_eq_u32 vcc, 0, v4\ns_cbranch_vccnz {l0}\n{l1}:\ns_waitcnt lgkmcnt(0)")
        while iW[0] < 5: W(c2, 2)
        npre = 5
    if OPT["cpre"]:
        iW[0] = 5; npre = 5
        a(f"s_mov_b32 s{S_LSW}, 0")
    a(f"s_lshl_b32 s{S_T0}, s{S_M}, 3\nv_lshrrev_b32 v6, 2, v0\nv_add_u32 v6, s{S_T0}, v6\nv_min_u32 v6, 31, v6")
    a(f"v_lshlrev_b32 v6, 4, v6\nv_and_b32 v7, 3, v0\nv_lshl_add_u32 v6, v7, 2, v6")
    a(f"s_lshl_b32 s{S_T0}, s{S_X}, 9\ns_add_u32 s{S_T0}, s{S_T0}, {WS_F1}\nv_add_u32 v6, s{S_T0}, v6")
    poll(a, 6, 7)
    sch.ops = []
    stamp(a, 4)
    A(c2, SRD_X, "sc1", 2)
    if npre < 3: W(c2, 2)
    A(c2, SRD_X, "sc1", 2)
    if npre < 4: W(c2, 2)
    a(f"s_waitcnt vmcnt({sch.wait_for([(2, 'A', 0)])}) lgkmcnt(0)")
    a("s_barrier")
    stamp(a, 5)
    if npre < 5: W(c2, 2)
    A(c2, SRD_X, "sc1", 2)
    for s in range(c2.NST):
        if s + 1 < c2.NST:
            tags = [(2, "A", s+1), (2, "W", 2*s+2), (2, "W", 2*s+3)]
            tags = [t for t in tags if t in sch.ops]
            a(f"s_waitcnt vmcnt({min(63, sch.wait_for(tags))})")
        a("s_barrier")
        if iW[0] < c2.NU: W(c2, 2)
        if iA[0] < c2.NA: A(c2, SRD_X, "sc1", 2)
        if iW[0] < c2.NU: W(c2, 2)
        if s == 4:
            a(f"v_lshlrev_b32 v28, 2, v0\nv_add_u32 v28, {WS_RL}, v28\nv_add_u32 v29, 256, v28")
            a(f"v_and_b32 v30, 31, v0\nv_lshlrev_b32 v30, 3, v30\nv_add_u32 v30, {WS_GE}, v30")
            def side_issue():
                a(f"buffer_load_dword v24, v28, {WSR}, 0 offen sc1\nbuffer_load_dword v25, v29, {WSR}, 0 offen sc1")
                a(f"buffer_load_dwordx2 v[26:27], v30, {WSR}, 0 offen sc1")
            only(a, f"s_cmp_eq_u32 s{S_LW}, 3", side_issue)
            mark2 = len(sch.ops)
        if s == 6:
            def side_check():
                a(f"s_waitcnt vmcnt({len(sch.ops) - mark2})")
                for (vv, va, w) in [(24, 28, 1), (25, 29, 1), (26, 30, 2)]:
                    l0 = lab("Lc")
                    a(f"v_cmp_ne_u32 vcc, s{S_TAG}, v{vv}\ns_cbranch_vccz {l0}")
                    poll(a, va, vv, width=w)
                    a(f"{l0}:")
                a(f"v_cmp_ne_u32 vcc, 0, v27\ns_nop 4\ns_cmp_lg_u64 vcc, 0\ns_cselect_b32 s{S_UNS}, 1, 0")
                write_misc(a, 8, S_UNS)
            only(a, f"s_cmp_eq_u32 s{S_LW}, 3", side_check)
        if OPT["stg"] and s == 5: stage_WF_loads(a, 0, 16); sch.add("stg", 16)
        if OPT["stg"] and s == 6: stage_WF_loads(a, 16, 32); sch.add("stg", 16)
        if s == 7:
            read_misc(a, 8, S_UNS)
    stamp(a, 6)
    if OPT["stg"]:
        a("s_waitcnt vmcnt(0)")
        stage_WF_write(a)
    else:
        fe_l_wpre(a, 0)
    fe_l(a, sch)
    stamp(a, 8)
    joint_l(a)
    stamp(a, 10)
    cond0 = f"s_cmp_eq_u32 s{S_WG}, 0\ns_cselect_b32 s{S_T0}, s{S_LW}, 0\ns_cmp_eq_u32 s{S_T0}, 2"
    for k in range(4): a(f"v_lshlrev_b32 v{48+k}, 3, v0\nv_add_u32 v{48+k}, {WS_G0 + k*512}, v{48+k}")
    def nonce_issue():
        for k in range(4): a(f"buffer_load_dwordx2 v[{52+2*k}:{53+2*k}], v{48+k}, {WSR}, 0 offen sc1")
    only(a, cond0, nonce_issue)
    if OPT["wbl2"]:
        def wb():
            a("buffer_wbl2 sc1")
        only(a, f"s_cmp_eq_u32 s{S_Q}, {OPT['wbq']}\ns_cselect_b32 s{S_T0}, s{S_LW}, 0\ns_cmp_eq_u32 s{S_T0}, 1", wb)
    n = joint_store(a, 0, False)
    a("s_barrier")
    joint_store_issue(a, n, OPT["pace"])
    stamp(a, 11)
    def nonce_update():
        a(f"s_waitcnt vmcnt({n})")
        for k in range(4):
            l0 = lab("Lc")
            a(f"v_cmp_ne_u32 vcc, s{S_TAG}, v{52+2*k}\ns_cbranch_vccz {l0}")
            poll(a, 48+k, 52+2*k, width=2)
            a(f"{l0}:")
        a(f"s_mov_b32 s{S_T0+8}, {WS_NONCE}")
        flag_store(a, S_T0+8, fast_variant=False)
    only(a, cond0, nonce_update)
    n = joint_store(a, 1, True)
    a("s_barrier")
    joint_store_issue(a, n)
    lpart = a
    a = head
    if OPT["lfirst"]:
        a.lines += lpart.lines + ["    s_branch L_fin"] + cpart.lines
    else:
        a.lines += cpart.lines + lpart.lines
    a("L_fin:")
    a("s_waitcnt vmcnt(0)")
    if OPT["dbg"]:
        def dbgw():
            a("s_memrealtime s[74:75]\ns_waitcnt lgkmcnt(0)")
            mk_srd(a, SRD_T, S_PDBG, 256)
            a(f"s_lshl_b32 s{S_T0}, s{S_WG}, 2\nv_mov_b32 v2, s{S_T0}\nv_mov_b32 v3, s76\nv_mov_b32 v4, s74")
            a(f"buffer_store_dword v3, v2, s[{SRD_T}:{SRD_T+3}], 0 offen\nbuffer_store_dword v4, v2, s[{SRD_T}:{SRD_T+3}], 0 offen offset:32")
            a("s_waitcnt vmcnt(0)")
        only(a, f"s_cmp_lt_u32 s{S_WG}, 8\ns_cselect_b32 s{S_T0}, s{S_WAVE}, 1\ns_cmp_eq_u32 s{S_T0}, 0", dbgw)
    stamp(a, 12)
    stamp_flush(a, 14, "L_stx")
    a("L_end:")
    a("s_endpgm")
    a("L_code_end:")
    if OPT["codepf"]:
        a.lines.insert(0, ".set CODE_LAST, L_code_end - L_pc_here - 16")
    return file_text([(None, (256,1,1), (512,1,1), 160*1024)], a.text(), [kernel_desc(KN, 256, 102)])

if __name__ == "__main__":
    for arg in sys.argv[2:]:
        if arg == "--stamp": OPT["stamp"] = True
        elif arg == "--cyc": OPT["cyc"] = True
        elif arg.startswith("--o="):
            k, v = arg[4:].split("=", 1)
            OPT[k] = None if v == "None" else (True if v == "True" else (False if v == "False" else (int(v) if v.isdigit() else v.replace("+", " "))))
    open(sys.argv[1], "w").write(emit())
```
